```python
import torch

def _softmax(x, axis=-1):
    return torch.softmax(x, dim=axis)
def _gelu(x):
    return torch.nn.functional.gelu(x, approximate="tanh")
def _silu(x):
    return torch.nn.functional.silu(x)
def _sigmoid(x):
    return torch.sigmoid(x)
def _layernorm(x, axis=-1, eps=1e-5):
    m = x.mean(dim=axis, keepdim=True)
    v = x.var(dim=axis, keepdim=True, unbiased=False)
    return (x - m) / torch.sqrt(v + eps)
def _scatter_add(tgt, idx, src, axis=0):
    return tgt.clone().index_add_(axis, idx, src)
def _segment_sum(src, seg, n):
    out = torch.zeros((n,) + src.shape[1:], dtype=src.dtype)
    return out.index_add_(0, seg, src)
def _pad(x, pw):
    flat = tuple(v for pair in reversed(pw) for v in pair)
    return torch.nn.functional.pad(x, flat)

kernel_name = 'interleave_layers__sliding_block_cached__dense_activation_gelu__decode'

def setup_inputs():

    _w = (lambda a: (lambda t: t.to(torch.bfloat16) if t.is_floating_point() else t)(torch.as_tensor(a)))
    def _A_setup():
        B, Sq, D = 1, 1, 512
        Hq, Hkv, Sk, Dh = 32, 8, 65536, 128
        assert Hq % Hkv == 0, (Hq, Hkv)
        return {
            "x": _w((lambda *s: torch.randn(*s, dtype=torch.bfloat16) * 0.05)(B, Sq, D)),
            "k_cache": _w((lambda *s: torch.randn(*s, dtype=torch.bfloat16) * 0.8)(B, Hkv, Sk, Dh)),
            "v_cache": _w((lambda *s: torch.randn(*s, dtype=torch.bfloat16) * 1.6)(B, Hkv, Sk, Dh)),
            "wq": _w((lambda *s: torch.randn(*s, dtype=torch.bfloat16) * 0.8)(D, Hq * Dh) * (D ** -0.5)),
            "wo": _w((lambda *s: torch.randn(*s, dtype=torch.bfloat16) * 1.6)(Hq * Dh, D) * ((Hq * Dh) ** -0.5)),
        }
    _A_in = _A_setup()

    def _B_setup():
        B, S, D, F = 1, 1, 512, 1792
        return {
            "x": _w((lambda *s: torch.randn(*s, dtype=torch.bfloat16) * 0.05)(B, S, D)),
            "w1": _w((lambda *s: torch.randn(*s, dtype=torch.bfloat16) * 1.6)(D, F) * (D ** -0.5)),
            "b1": _w((lambda *s: torch.randn(*s, dtype=torch.bfloat16) * 1.6)(F) * 0.01),
            "w2": _w((lambda *s: torch.randn(*s, dtype=torch.bfloat16) * 0.2)(F, D) * (F ** -0.5)),
            "b2": _w((lambda *s: torch.randn(*s, dtype=torch.bfloat16) * 0.2)(D) * 0.01),
        }
    _B_in = _B_setup()

    return {
        "A_x": _A_in["x"],
        "A_k_cache": _A_in["k_cache"],
        "A_v_cache": _A_in["v_cache"],
        "A_wq": _A_in["wq"],
        "A_wo": _A_in["wo"],
        "B_x": _B_in["x"],
        "B_w1": _B_in["w1"],
        "B_b1": _B_in["b1"],
        "B_w2": _B_in["w2"],
        "B_b2": _B_in["b2"],
    }

def reference(A_x, A_k_cache, A_v_cache, A_wq, A_wo, B_x, B_w1, B_b1, B_w2, B_b2):
    def _A_ref(x, k_cache, v_cache, wq, wo):
        B, Sq, D = x.shape
        Hq, Dh = 32, 128
        Hkv, Sk = k_cache.shape[1], k_cache.shape[2]
        W = min(4096, max(256, Sk // 4))
        rep = Hq // Hkv
        q = (lambda x, *d: x.permute(*d))((x @ wq).reshape(B, Sq, Hq, Dh), 0, 2, 1, 3)
        k = (lambda x, n, axis: torch.repeat_interleave(x, n, dim=axis))(k_cache[:, :, Sk - W:, :], rep, axis=1)
        v = (lambda x, n, axis: torch.repeat_interleave(x, n, dim=axis))(v_cache[:, :, Sk - W:, :], rep, axis=1)
        scores = torch.einsum("bhqd,bhkd->bhqk", q, k) * (Dh ** -0.5)
        p = _softmax(scores, axis=-1)
        o = torch.einsum("bhqk,bhkd->bhqd", p, v)
        return (lambda x, *d: x.permute(*d))(o, 0, 2, 1, 3).reshape(B, Sq, Hq * Dh) @ wo

    def _B_ref(x, w1, b1, w2, b2):
        h = torch.einsum("bsd,df->bsf", x, w1) + b1
        h = _gelu(h)
        return torch.einsum("bsf,fd->bsd", h, w2) + b2

    x = A_x
    x = x + _A_ref(_layernorm(x, axis=-1), A_k_cache, A_v_cache, A_wq, A_wo)
    x = x + _B_ref(_layernorm(x, axis=-1), B_w1, B_b1, B_w2, B_b2)
    x = x + _A_ref(_layernorm(x, axis=-1), A_k_cache, A_v_cache, A_wq, A_wo)
    x = x + _B_ref(_layernorm(x, axis=-1), B_w1, B_b1, B_w2, B_b2)
    return x
```

```python
import sys, struct

NAME = "interleave_layers__sliding_block_cached__dense_activation_gelu__decode"
HEADER = open("cdna_kernels/%s.s.ref" % NAME).read().split("; Override launch geometry")[0]

def f2u(x): return struct.unpack("<I", struct.pack("<f", x))[0]

class Asm:
    def __init__(s): s.L = []; s.n = 0
    def __call__(s, t): s.L.append("    " + t)
    def lab(s, l): s.L.append(l + ":")
    def new(s, p="L"): s.n += 1; return "%s_%d" % (p, s.n)
    def c(s, t): s.L.append("    ; " + t)
A = Asm()
def v(i): return "v%d" % i
def vr(i, n): return "v[%d:%d]" % (i, i + n - 1)
def sr(i, n=2): return "s[%d:%d]" % (i, i + n - 1)

sG, sS, sW = 3, 4, 5
sTA, sTB, sE = 6, 7, 8
sT0, sT1, sT2 = 9, 10, 11
sX, sK, sV, sWQ, sWO, sW1, sB1 = 16, 18, 20, 22, 24, 28, 30
sW2, sB2, sOUT, sDBG, sWS = 32, 34, 36, 38, 40
sF, sSl, sPB = 42, 44, 46
sIT = 48
sM = 50
sLOG2E, sSCALE, sINV512, sPLO, sPHI, sC1, sC2, sEPS, sHM = 54, 55, 56, 57, 58, 59, 60, 61, 62
sKB = 12
sVB = 14
sO = 64
sTB2 = 80

F_OFF = 0x100000
S_OFF = 0x900000
QB_OFF = 0x000000
AG_OFF = 0x010000
ML_OFF = 0x020000
XB_OFF = 0x040000
PO_OFF = 0x100000
RS_OFF = 0x300000

L_WQ = 0
L_W1 = 16384
L_XN = 24576
L_AT = 28672
AT_STRIDE = 2080
LDS_SIZE = L_AT + 4 * AT_STRIDE

vTID, vLANE = 0, 1
vQA, vPOST, vPLD, vMLLD, vRSST, vXLD, vAGLD, vTRA = 2, 3, 4, 5, 6, 7, 8, 9
vXR0, vXR1 = 10, 11
vB1, vB20, vB21 = 12, 13, 14
vXNW, vXNR = 15, 16
vATW, vATR = 17, 18
vT0, vT1, vT2, vT3, vT4, vT5 = 20, 21, 22, 23, 24, 25
vX = 28
vK = 32
vVT = 64
vWO = 96
vW2 = 128
vB = 144
vA = 208
vS0 = 240
NVGPR = 256

LIMIT = 400000

def nop(n):
    A("s_nop %d" % (n - 1))

def allreduce(reg, tmp, op):
    ins = "v_add_f32" if op == "add" else "v_max_f32"
    for ctl in ["quad_perm:[1,0,3,2]", "quad_perm:[2,3,0,1]", "row_half_mirror", "row_mirror"]:
        nop(2)
        A("%s_dpp %s, %s, %s %s row_mask:0xf bank_mask:0xf" % (ins, v(reg), v(reg), v(reg), ctl))
    xrow(reg, tmp, op)

def xrow(reg, tmp, op):
    ins = "v_add_f32" if op == "add" else "v_max_f32"
    for sw in ["v_permlane16_swap_b32", "v_permlane32_swap_b32"]:
        A("v_mov_b32 %s, %s" % (v(tmp), v(reg)))
        nop(2)
        A("%s %s, %s" % (sw, v(reg), v(tmp)))
        nop(2)
        A("%s %s, %s, %s" % (ins, v(reg), v(reg), v(tmp)))

def xrow_multi(regs, tmps, op):
    ins = "v_add_f32" if op == "add" else "v_max_f32"
    for sw in ["v_permlane16_swap_b32", "v_permlane32_swap_b32"]:
        for r, t in zip(regs, tmps):
            A("v_mov_b32 %s, %s" % (v(t), v(r)))
        nop(2)
        for r, t in zip(regs, tmps):
            A("%s %s, %s" % (sw, v(r), v(t)))
        nop(2)
        for r, t in zip(regs, tmps):
            A("%s %s, %s, %s" % (ins, v(r), v(r), v(t)))

def xor8_multi(regs, op):
    ins = "v_add_f32" if op == "add" else "v_max_f32"
    nop(2)
    for r in regs:
        A("%s_dpp %s, %s, %s row_ror:8 row_mask:0xf bank_mask:0xf" % (ins, v(r), v(r), v(r)))

def poll(loads, dual=True, acc=None):
    acc = vT5 if acc is None else acc
    lp = A.new("Lpoll")
    A("s_mov_b32 s%d, 0" % sIT)
    A.lab(lp)
    if dual:
        A("s_and_b32 s%d, s%d, 7" % (sT0, sIT))
        A("s_cmp_eq_u32 s%d, 7" % sT0)
        A("s_cselect_b32 s%d, s%d, s%d" % (sPB, sSl, sF))
        A("s_cselect_b32 s%d, s%d, s%d" % (sPB + 1, sSl + 1, sF + 1))
        base = sPB
    else:
        base = sSl
    for (d, a, off) in loads:
        A("global_load_dwordx4 %s, %s, %s offset:%d sc1" % (vr(d, 4), v(a), sr(base), off))
    A("s_add_u32 s%d, s%d, 1" % (sIT, sIT))
    A("s_cmp_gt_u32 s%d, %d" % (sIT, LIMIT))
    A("s_cbranch_scc1 L_end")
    A("s_waitcnt vmcnt(0)")
    first = True
    for (d, a, off) in loads:
        A("v_xor_b32 %s, s%d, %s" % (v(vT3), sTA, v(d + 2)))
        A("v_xor_b32 %s, s%d, %s" % (v(vT4), sTB, v(d + 3)))
        if first:
            A("v_or_b32 %s, %s, %s" % (v(acc), v(vT3), v(vT4)))
            first = False
        else:
            A("v_or3_b32 %s, %s, %s, %s" % (v(acc), v(vT3), v(vT4), v(acc)))
    A("v_cmp_ne_u32 vcc, 0, %s" % v(acc))
    A("s_cbranch_vccnz %s" % lp)

def publish(dreg, areg, fast=True):
    if fast:
        A("global_store_dwordx4 %s, %s, %s" % (v(areg), vr(dreg, 4), sr(sF)))
    A("global_store_dwordx4 %s, %s, %s sc1" % (v(areg), vr(dreg, 4), sr(sSl)))

def layernorm():
    f = [vS0 + i for i in range(8)]
    for i in range(4):
        A("v_lshlrev_b32 %s, 16, %s" % (v(f[2 * i]), v(vX + i)))
        A("v_and_b32 %s, 0xffff0000, %s" % (v(f[2 * i + 1]), v(vX + i)))
    A("v_add_f32 %s, %s, %s" % (v(vT0), v(f[0]), v(f[1])))
    A("v_add_f32 %s, %s, %s" % (v(vT1), v(f[2]), v(f[3])))
    A("v_add_f32 %s, %s, %s" % (v(vT2), v(f[4]), v(f[5])))
    A("v_add_f32 %s, %s, %s" % (v(vT3), v(f[6]), v(f[7])))
    A("v_add_f32 %s, %s, %s" % (v(vT0), v(vT0), v(vT1)))
    A("v_add_f32 %s, %s, %s" % (v(vT2), v(vT2), v(vT3)))
    A("v_add_f32 %s, %s, %s" % (v(vT0), v(vT0), v(vT2)))
    allreduce(vT0, vT1, "add")
    A("v_mul_f32 %s, s%d, %s" % (v(vT0), sINV512, v(vT0)))
    A("v_sub_f32 %s, %s, %s" % (v(vT2), v(f[0]), v(vT0)))
    A("v_mul_f32 %s, %s, %s" % (v(vT1), v(vT2), v(vT2)))
    for i in range(1, 8):
        A("v_sub_f32 %s, %s, %s" % (v(vT2), v(f[i]), v(vT0)))
        A("v_fmac_f32 %s, %s, %s" % (v(vT1), v(vT2), v(vT2)))
    allreduce(vT1, vT2, "add")
    A("v_mul_f32 %s, s%d, %s" % (v(vT1), sINV512, v(vT1)))
    A("v_cvt_pk_bf16_f32 %s, %s, %s" % (v(vT2), v(vT0), v(vT1)))
    A("v_lshlrev_b32 %s, 16, %s" % (v(vT0), v(vT2)))
    A("v_and_b32 %s, 0xffff0000, %s" % (v(vT1), v(vT2)))
    A("v_add_f32 %s, s%d, %s" % (v(vT1), sEPS, v(vT1)))
    A("v_cvt_pk_bf16_f32 %s, %s, %s" % (v(vT1), v(vT1), v(vT1)))
    A("v_and_b32 %s, 0xffff0000, %s" % (v(vT1), v(vT1)))
    A("v_sqrt_f32 %s, %s" % (v(vT1), v(vT1)))
    nop(1)
    A("v_cvt_pk_bf16_f32 %s, %s, %s" % (v(vT1), v(vT1), v(vT1)))
    A("v_and_b32 %s, 0xffff0000, %s" % (v(vT1), v(vT1)))
    A("v_rcp_f32 %s, %s" % (v(vT1), v(vT1)))
    for i in range(8):
        A("v_sub_f32 %s, %s, %s" % (v(f[i]), v(f[i]), v(vT0)))
    for i in range(4):
        A("v_cvt_pk_bf16_f32 %s, %s, %s" % (v(vT2), v(f[2 * i]), v(f[2 * i + 1])))
        A("v_lshlrev_b32 %s, 16, %s" % (v(f[2 * i]), v(vT2)))
        A("v_and_b32 %s, 0xffff0000, %s" % (v(f[2 * i + 1]), v(vT2)))
    for i in range(8):
        A("v_mul_f32 %s, %s, %s" % (v(f[i]), v(f[i]), v(vT1)))
    for i in range(4):
        A("v_cvt_pk_bf16_f32 %s, %s, %s" % (v(vS0 + 12 + i), v(f[2 * i]), v(f[2 * i + 1])))
    A("ds_write_b128 %s, %s" % (v(vXNW), vr(vS0 + 12, 4)))

def prefetch_B(lds_base, rowbytes):
    for c in range(16):
        off = lds_base + c * 32 * rowbytes
        A("ds_read_b64_tr_b16 %s, %s offset:%d" % (vr(vB + 4 * c, 2), v(vTRA if rowbytes == 32 else vT0), off))
        A("ds_read_b64_tr_b16 %s, %s offset:%d" % (vr(vB + 4 * c + 2, 2), v(vTRA if rowbytes == 32 else vT0), off + 4 * rowbytes))

def gemv(acc):
    for c in range(8):
        A("ds_read_b128 %s, %s offset:%d" % (vr(vA + 4 * c, 4), v(vXNR), c * 64))
    for c in range(16):
        A("s_waitcnt lgkmcnt(%d)" % (7 if c < 9 else 15 - c))
        A("v_mfma_f32_16x16x32_bf16 %s, %s, %s, %s" % (vr(acc, 4), vr(vA + 4 * (c % 8), 4), vr(vB + 4 * c, 4), "0" if c == 0 else vr(acc, 4)))
        if c < 8:
            A("ds_read_b128 %s, %s offset:%d" % (vr(vA + 4 * c, 4), v(vXNR), (c + 8) * 64))
    nop(8); nop(2)

def wave0_begin():
    l = A.new("Lw0skip")
    A("s_cmp_lg_u32 s%d, 0" % sW)
    A("s_cbranch_scc1 %s" % l)
    return l

def set_tags(d):
    A("v_mov_b32 %s, s%d" % (v(d + 2), sTA))
    A("v_mov_b32 %s, s%d" % (v(d + 3), sTB))

def reduce_hops(idx, mlp, last):
    T = vS0
    A.c("---- RS consumer %d" % idx)
    A("v_add_u32 %s, 0x%x, %s" % (v(vT0), RS_OFF + idx * 0x100000, v(vPLD)))
    poll([(vA + 4 * i, vT0, 1024 * i) for i in range(4)])
    for d in range(2):
        A("v_add_f32 %s, %s, %s" % (v(T + d), v(vA + d), v(vA + 4 + d)))
        A("v_add_f32 %s, %s, %s" % (v(T + 4 + d), v(vA + 8 + d), v(vA + 12 + d)))
        A("v_add_f32 %s, %s, %s" % (v(T + d), v(T + d), v(T + 4 + d)))
    xor8_multi([T, T + 1], "add")
    xrow_multi([T, T + 1], [T + 4, T + 5], "add")
    set_tags(T)
    A("s_lshl_b32 s%d, s%d, 7" % (sT0, sG))
    A("v_and_b32 %s, 7, %s" % (v(vT0), v(vLANE)))
    A("v_lshlrev_b32 %s, 4, %s" % (v(vT0), v(vT0)))
    A("v_add_u32 %s, s%d, %s" % (v(vT0), sT0, v(vT0)))
    A("s_lshl_b32 s%d, s%d, 10" % (sT0, sS))
    A("s_add_u32 s%d, s%d, 0x%x" % (sT0, sT0, XB_OFF + idx * 0x8000))
    A("v_add_u32 %s, s%d, %s" % (v(vT0), sT0, v(vT0)))
    A("s_mov_b64 exec, 0xff")
    publish(T, vT0, fast=False)
    A("s_mov_b64 exec, -1")
    A.c("---- X consumer %d" % idx)
    A("v_add_u32 %s, 0x%x, %s" % (v(vT0), XB_OFF + idx * 0x8000, v(vXLD)))
    poll([(vA, vT0, 0)], dual=False)
    xor8_multi([vA, vA + 1], "add")
    xrow_multi([vA, vA + 1], [T + 4, T + 5], "add")
    A("v_cvt_pk_bf16_f32 %s, %s, %s" % (v(vT1), v(vA), v(vA + 1)))
    A("v_lshlrev_b32 %s, 16, %s" % (v(vA), v(vT1)))
    A("v_and_b32 %s, 0xffff0000, %s" % (v(vA + 1), v(vT1)))
    if mlp:
        A("v_add_f32 %s, %s, %s" % (v(vA), v(vA), v(vB20)))
        A("v_add_f32 %s, %s, %s" % (v(vA + 1), v(vA + 1), v(vB21)))
        A("v_cvt_pk_bf16_f32 %s, %s, %s" % (v(vT1), v(vA), v(vA + 1)))
        A("v_lshlrev_b32 %s, 16, %s" % (v(vA), v(vT1)))
        A("v_and_b32 %s, 0xffff0000, %s" % (v(vA + 1), v(vT1)))
    A("v_add_f32 %s, %s, %s" % (v(vA), v(vA), v(vXR0)))
    A("v_add_f32 %s, %s, %s" % (v(vA + 1), v(vA + 1), v(vXR1)))
    A("v_cvt_pk_bf16_f32 %s, %s, %s" % (v(T), v(vA), v(vA + 1)))
    A("v_lshlrev_b32 %s, 16, %s" % (v(vXR0), v(T)))
    A("v_and_b32 %s, 0xffff0000, %s" % (v(vXR1), v(T)))
    if not last:
        A("v_mov_b32_dpp %s, %s quad_perm:[1,1,3,3] row_mask:0xf bank_mask:0xf" % (v(T + 1), v(T)))
        set_tags(T)
        A("s_lshl_b32 s%d, s%d, 11" % (sT0, sG))
        A("s_lshl_b32 s%d, s%d, 6" % (sT1, sS))
        A("s_add_u32 s%d, s%d, s%d" % (sT0, sT0, sT1))
        A("s_add_u32 s%d, s%d, 0x%x" % (sT0, sT0, AG_OFF + idx * 0x4000))
        A("v_and_b32 %s, 6, %s" % (v(vT0), v(vLANE)))
        A("v_lshlrev_b32 %s, 3, %s" % (v(vT0), v(vT0)))
        A("v_add_u32 %s, s%d, %s" % (v(vT0), sT0, v(vT0)))
        A("s_mov_b64 exec, 0x55")
        publish(T, vT0)
        A("s_mov_b64 exec, -1")
    else:
        l = A.new("Lnoout")
        A("s_cmp_lg_u32 s%d, 0" % sG)
        A("s_cbranch_scc1 %s" % l)
        A("s_lshl_b32 s%d, s%d, 5" % (sT0, sS))
        A("v_lshlrev_b32 %s, 2, %s" % (v(vT0), v(vLANE)))
        A("v_add_u32 %s, s%d, %s" % (v(vT0), sT0, v(vT0)))
        A("s_mov_b64 exec, 0xff")
        A("global_store_dword %s, %s, %s" % (v(vT0), v(T), sr(sOUT)))
        A("s_mov_b64 exec, -1")
        A("s_cmp_lg_u32 s%d, 0" % sS)
        A("s_cbranch_scc1 %s" % l)
        A("s_add_u32 s%d, s%d, 1" % (sT0, sE))
        A("v_mov_b32 %s, s%d" % (v(vT1), sT0))
        A("v_mov_b32 %s, 0" % v(vT0))
        A("s_mov_b64 exec, 1")
        A("global_store_dword %s, %s, %s" % (v(vT0), v(vT1), sr(sWS)))
        A("s_mov_b64 exec, -1")
        A.lab(l)

def poll_AG(idx):
    A("v_add_u32 %s, 0x%x, %s" % (v(vT0), AG_OFF + idx * 0x4000, v(vAGLD)))
    poll([(vA, vT0, 0), (vA + 4, vT0, 16)])
    A("v_mov_b32 %s, %s" % (v(vX), v(vA)))
    A("v_mov_b32 %s, %s" % (v(vX + 1), v(vA + 1)))
    A("v_mov_b32 %s, %s" % (v(vX + 2), v(vA + 4)))
    A("v_mov_b32 %s, %s" % (v(vX + 3), v(vA + 5)))

def build():
    A("s_cmp_ge_u32 s2, 256")
    A("s_cbranch_scc1 L_end")
    A("s_load_dwordx16 s[16:31], s[0:1], 0")
    A("s_load_dwordx8 s[32:39], s[0:1], 64")
    A("s_load_dwordx2 s[40:41], s[0:1], 96")
    A("s_and_b32 s%d, s2, 7" % sG)
    A("s_lshr_b32 s%d, s2, 3" % sS)
    A("v_and_b32 %s, 63, v0" % v(vLANE))
    A("v_lshrrev_b32 %s, 6, v0" % v(vT0))
    nop(1)
    A("v_readfirstlane_b32 s%d, %s" % (sW, v(vT0)))
    for (r, val) in [(sLOG2E, f2u(1.4426950408889634)), (sSCALE, f2u(0.08838834764831845)), (sINV512, f2u(1.0 / 512)),
                     (sPLO, 0x05040100), (sPHI, 0x07060302),
                     (sC1, f2u(-2 * 0.7978845608028654 * 1.4426950408889634)),
                     (sC2, f2u(-2 * 0.7978845608028654 * 0.044715 * 1.4426950408889634)), (sEPS, f2u(1e-5))]:
        A("s_mov_b32 s%d, 0x%08x" % (r, val))
    A("v_and_b32 %s, 15, %s" % (v(vT1), v(vLANE)))
    A("v_lshrrev_b32 %s, 4, %s" % (v(vT2), v(vLANE)))
    A("s_lshl_b32 s%d, s%d, 11" % (sT0, sG))
    A("v_lshlrev_b32 %s, 9, %s" % (v(vQA), v(vT1)))
    A("v_lshl_add_u32 %s, %s, 5, %s" % (v(vQA), v(vT2), v(vQA)))
    A("v_add_u32 %s, s%d, %s" % (v(vQA), sT0, v(vQA)))
    A("v_lshlrev_b32 %s, 5, %s" % (v(vAGLD), v(vLANE)))
    A("v_add_u32 %s, s%d, %s" % (v(vAGLD), sT0, v(vAGLD)))
    A("v_lshrrev_b32 %s, 2, %s" % (v(vT3), v(vT1)))
    A("v_lshl_add_u32 %s, %s, 3, %s" % (v(vT3), v(vT2), v(vT3)))
    A("v_and_b32 %s, 3, %s" % (v(vT4), v(vT1)))
    A("v_lshlrev_b32 %s, 5, %s" % (v(vTRA), v(vT3)))
    A("v_lshl_add_u32 %s, %s, 3, %s" % (v(vTRA), v(vT4), v(vTRA)))
    A("v_lshrrev_b32 %s, 3, v0" % v(vT3))
    A("s_lshl_b32 s%d, s%d, 5" % (sT1, sG))
    A("v_add_u32 %s, s%d, %s" % (v(vT3), sT1, v(vT3)))
    A("v_lshlrev_b32 %s, 5, %s" % (v(vT3), v(vT3)))
    A("v_add_u32 %s, s%d, %s" % (v(vT3), sS, v(vT3)))
    A("v_lshlrev_b32 %s, 7, %s" % (v(vT3), v(vT3)))
    A("v_and_b32 %s, 7, v0" % v(vT4))
    A("v_lshl_add_u32 %s, %s, 4, %s" % (v(vPOST), v(vT4), v(vT3)))
    A("v_mov_b32 %s, %s" % (v(vRSST), v(vPOST)))
    A("s_add_u32 s%d, s%d, s%d" % (sT1, sT1, sS))
    A("s_lshl_b32 s%d, s%d, 12" % (sT1, sT1))
    A("v_lshlrev_b32 %s, 4, %s" % (v(vPLD), v(vLANE)))
    A("v_add_u32 %s, s%d, %s" % (v(vPLD), sT1, v(vPLD)))
    A("s_lshl_b32 s%d, s%d, 2" % (sT1, sG))
    A("s_lshr_b32 s%d, s%d, 3" % (sT2, sS))
    A("s_add_u32 s%d, s%d, s%d" % (sT1, sT1, sT2))
    A("s_lshl_b32 s%d, s%d, 9" % (sT1, sT1))
    A("v_lshrrev_b32 %s, 3, %s" % (v(vT3), v(vLANE)))
    A("v_lshlrev_b32 %s, 4, %s" % (v(vMLLD), v(vT3)))
    A("v_add_u32 %s, s%d, %s" % (v(vMLLD), sT1, v(vMLLD)))
    A("s_lshl_b32 s%d, s%d, 10" % (sT1, sS))
    A("v_lshlrev_b32 %s, 4, %s" % (v(vXLD), v(vLANE)))
    A("v_add_u32 %s, s%d, %s" % (v(vXLD), sT1, v(vXLD)))
    A("s_lshl_b32 s%d, s%d, 10" % (sT1, sW))
    A("s_add_u32 s%d, s%d, %d" % (sT1, sT1, L_XN))
    A("v_lshlrev_b32 %s, 4, %s" % (v(vXNW), v(vLANE)))
    A("v_add_u32 %s, s%d, %s" % (v(vXNW), sT1, v(vXNW)))
    A("v_lshlrev_b32 %s, 4, %s" % (v(vXNR), v(vT2)))
    A("v_add_u32 %s, s%d, %s" % (v(vXNR), sT1, v(vXNR)))
    A("s_mul_i32 s%d, s%d, %d" % (sT1, sW, AT_STRIDE))
    A("s_add_u32 s%d, s%d, %d" % (sT1, sT1, L_AT))
    A("v_lshlrev_b32 %s, 9, %s" % (v(vATW), v(vT1)))
    A("v_lshl_add_u32 %s, %s, 4, %s" % (v(vATW), v(vT2), v(vATW)))
    A("v_add_u32 %s, s%d, %s" % (v(vATW), sT1, v(vATW)))
    A("s_lshl_b32 s%d, s%d, 9" % (sT1, sW))
    A("s_add_u32 s%d, s%d, %d" % (sT1, sT1, L_AT))
    A("v_lshlrev_b32 %s, 3, %s" % (v(vATR), v(vLANE)))
    A("v_add_u32 %s, s%d, %s" % (v(vATR), sT1, v(vATR)))
    A("s_waitcnt lgkmcnt(0)")
    A("s_load_dword s%d, %s, 0" % (sE, sr(sWS)))
    A("v_lshlrev_b32 %s, 4, %s" % (v(vT3), v(vLANE)))
    A("global_load_dwordx4 %s, %s, %s" % (vr(vX, 4), v(vT3), sr(sX)))
    A("v_and_b32 %s, 7, %s" % (v(vT3), v(vLANE)))
    A("v_lshlrev_b32 %s, 2, %s" % (v(vT3), v(vT3)))
    A("s_lshl_b32 s%d, s%d, 5" % (sT1, sS))
    A("v_add_u32 %s, s%d, %s" % (v(vT3), sT1, v(vT3)))
    A("global_load_dword %s, %s, %s" % (v(vXR1), v(vT3), sr(sX)))
    A("global_load_dword %s, %s, %s" % (v(vB21), v(vT3), sr(sB2)))
    A("v_lshrrev_b32 %s, 1, v0" % v(vT3))
    A("v_lshlrev_b32 %s, 13, %s" % (v(vT3), v(vT3)))
    A("v_and_b32 %s, 1, v0" % v(vT4))
    A("v_lshl_add_u32 %s, %s, 4, %s" % (v(vT3), v(vT4), v(vT3)))
    A("s_lshl_b32 s%d, s%d, 10" % (sT0, sG))
    A("s_add_u32 s%d, s%d, s%d" % (sT0, sT0, sT1))
    A("v_add_u32 %s, s%d, %s" % (v(vT3), sT0, v(vT3)))
    for i in range(4):
        if i:
            A("v_add_u32 %s, 0x100000, %s" % (v(vT3), v(vT3)))
        A("global_load_dwordx4 %s, %s, %s" % (vr(vB + 4 * i, 4), v(vT3), sr(sWQ)))
    A("s_lshl_b32 s%d, s%d, 24" % (sT0, sG))
    A("s_lshl_b32 s%d, s%d, 15" % (sT1, sS))
    A("s_add_u32 s%d, s%d, s%d" % (sT0, sT0, sT1))
    A("s_lshl_b32 s%d, s%d, 13" % (sT1, sW))
    A("s_add_u32 s%d, s%d, s%d" % (sT0, sT0, sT1))
    A("s_add_u32 s%d, s%d, %d" % (sT0, sT0, 61440 * 256))
    A("s_add_u32 s%d, s%d, s%d" % (sKB, sK, sT0))
    A("s_addc_u32 s%d, s%d, 0" % (sKB + 1, sK + 1))
    A("s_add_u32 s%d, s%d, s%d" % (sVB, sV, sT0))
    A("s_addc_u32 s%d, s%d, 0" % (sVB + 1, sV + 1))
    A("v_lshlrev_b32 %s, 8, %s" % (v(vT3), v(vT1)))
    A("v_lshl_add_u32 %s, %s, 4, %s" % (v(vT3), v(vT2), v(vT3)))
    A("v_add_u32 %s, 0x1000, %s" % (v(vT4), v(vT3)))
    for T in range(2):
        for c in range(4):
            A("global_load_dwordx4 %s, %s, %s offset:%d" % (vr(vK + (T * 4 + c) * 4, 4), v(vT3 if T == 0 else vT4), sr(sKB), c * 64))
    A("v_lshlrev_b32 %s, 10, %s" % (v(vT3), v(vT2)))
    A("v_lshl_add_u32 %s, %s, 4, %s" % (v(vT3), v(vT1), v(vT3)))
    A("v_add_u32 %s, 0x1000, %s" % (v(vT4), v(vT3)))
    VRAW = vWO
    for j in range(8):
        A("global_load_dwordx4 %s, %s, %s offset:%d" % (vr(VRAW + 4 * j, 4), v(vT3 if j < 4 else vT4), sr(sVB), (j % 4) * 256))
    A("s_add_u32 s%d, s%d, 0x%x" % (sF, sWS, F_OFF))
    A("s_addc_u32 s%d, s%d, 0" % (sF + 1, sWS + 1))
    A("s_add_u32 s%d, s%d, 0x%x" % (sSl, sWS, S_OFF))
    A("s_addc_u32 s%d, s%d, 0" % (sSl + 1, sWS + 1))
    A("s_waitcnt lgkmcnt(0)")
    A("s_xor_b32 s%d, s%d, 0x9e3779b9" % (sTA, sE))
    A("s_mul_i32 s%d, s%d, 0x85ebca6b" % (sTB, sE))
    A("s_add_u32 s%d, s%d, 0xc2b2ae35" % (sTB, sTB))
    A("s_waitcnt vmcnt(16)")
    A("v_lshlrev_b32 %s, 4, v0" % v(vT3))
    for i in range(4):
        A("ds_write_b128 %s, %s offset:%d" % (v(vT3), vr(vB + 4 * i, 4), L_WQ + i * 4096))
    A("v_lshlrev_b32 %s, 16, %s" % (v(vXR0), v(vXR1)))
    A("v_and_b32 %s, 0xffff0000, %s" % (v(vXR1), v(vXR1)))
    A("v_lshlrev_b32 %s, 16, %s" % (v(vB20), v(vB21)))
    A("v_and_b32 %s, 0xffff0000, %s" % (v(vB21), v(vB21)))
    A("s_waitcnt lgkmcnt(0)")
    A("s_barrier")

    def vtranspose():
        A.c("V transpose")
        for i in range(8):
            q = i // 2
            sel = sPLO if i % 2 == 0 else sPHI
            for p in range(4):
                A("v_perm_b32 %s, %s, %s, s%d" % (v(vVT + 4 * i + p), v(VRAW + 4 * (2 * p + 1) + q), v(VRAW + 4 * (2 * p) + q), sel))

    for L in range(2):
        A.c("================= layer %d : q-proj" % L)
        l0 = wave0_begin()
        prefetch_B(L_WQ, 32)
        if L == 1:
            poll_AG(1)
        layernorm()
        gemv(vS0)
        T = vS0 + 4
        nop(2)
        for e in range(4):
            A("v_mov_b32_dpp %s, %s quad_perm:[%d,%d,%d,%d] row_mask:0xf bank_mask:0xf" % (v(T + 4 + e), v(vS0), e, e, e, e))
        A("v_cvt_pk_bf16_f32 %s, %s, %s" % (v(T), v(T + 4), v(T + 5)))
        A("v_cvt_pk_bf16_f32 %s, %s, %s" % (v(T + 1), v(T + 6), v(T + 7)))
        set_tags(T)
        A("s_lshl_b32 s%d, s%d, 11" % (sT0, sG))
        A("s_lshl_b32 s%d, s%d, 6" % (sT1, sS))
        A("s_add_u32 s%d, s%d, s%d" % (sT0, sT0, sT1))
        A("s_add_u32 s%d, s%d, 0x%x" % (sT0, sT0, QB_OFF + L * 0x4000))
        A("v_and_b32 %s, 12, %s" % (v(vT0), v(vLANE)))
        A("v_lshlrev_b32 %s, 2, %s" % (v(vT0), v(vT0)))
        A("v_add_u32 %s, s%d, %s" % (v(vT0), sT0, v(vT0)))
        A("s_mov_b64 exec, 0x1111")
        publish(T, vT0)
        A("s_mov_b64 exec, -1")
        A.lab(l0)
        if L == 0:
            A("s_waitcnt vmcnt(0)")
            vtranspose()

        A.c("================= layer %d : attention" % L)
        Q = vB
        for c in range(4):
            for e in range(4):
                A("v_mov_b32 %s, 0" % v(Q + 8 * c + e))
        A("v_add_u32 %s, 0x%x, %s" % (v(vT0), QB_OFF + L * 0x4000, v(vQA)))
        A("s_mov_b32 s%d, 0x000f000f" % sM)
        A("s_mov_b32 s%d, 0x000f000f" % (sM + 1))
        A("s_mov_b64 exec, %s" % sr(sM))
        poll([(Q + 8 * c + 4 * hh, vT0, c * 128 + hh * 16) for c in range(4) for hh in range(2)])
        for c in range(4):
            A("v_mov_b32 %s, %s" % (v(Q + 8 * c + 2), v(Q + 8 * c + 4)))
            A("v_mov_b32 %s, %s" % (v(Q + 8 * c + 3), v(Q + 8 * c + 5)))
        A("s_mov_b64 exec, -1")
        if L == 0:
            A.c("issue wo loads (raw into vWO+16..31)")
            A("s_lshl_b32 s%d, s%d, 2" % (sT0, sG))
            A("s_lshr_b32 s%d, s%d, 3" % (sT1, sS))
            A("s_add_u32 s%d, s%d, s%d" % (sT0, sT0, sT1))
            A("s_lshl_b32 s%d, s%d, 7" % (sT0, sT0))
            A("s_and_b32 s%d, s%d, 7" % (sT1, sS))
            A("s_add_u32 s%d, s%d, s%d" % (sT0, sT0, sT1))
            A("s_lshl_b32 s%d, s%d, 10" % (sT0, sT0))
            A("v_lshlrev_b32 %s, 2, v0" % v(vT0))
            A("v_add_u32 %s, s%d, %s" % (v(vT0), sT0, v(vT0)))
            for k in range(16):
                if k:
                    A("v_add_u32 %s, 0x2000, %s" % (v(vT0), v(vT0)))
                A("global_load_dword %s, %s, %s" % (v(vWO + 16 + k), v(vT0), sr(sWO)))
        S = vS0
        nop(2)
        for T in range(2):
            for c in range(4):
                A("v_mfma_f32_16x16x32_bf16 %s, %s, %s, %s" % (vr(S + 4 * T, 4), vr(vK + (T * 4 + c) * 4, 4), vr(Q + 8 * c, 4), "0" if c == 0 else vr(S + 4 * T, 4)))
        nop(8); nop(2)
        P = vS0 + 8
        for rnd in range(2):
            for i in range(4):
                A("v_cvt_pk_bf16_f32 %s, %s, %s" % (v(P + i), v(S + 2 * i), v(S + 2 * i + 1)))
            for i in range(4):
                A("v_lshlrev_b32 %s, 16, %s" % (v(S + 2 * i), v(P + i)))
                A("v_and_b32 %s, 0xffff0000, %s" % (v(S + 2 * i + 1), v(P + i)))
            if rnd == 0:
                for i in range(8):
                    A("v_mul_f32 %s, s%d, %s" % (v(S + i), sSCALE, v(S + i)))
        A("v_max3_f32 %s, %s, %s, %s" % (v(vT0), v(S), v(S + 1), v(S + 2)))
        A("v_max3_f32 %s, %s, %s, %s" % (v(vT1), v(S + 3), v(S + 4), v(S + 5)))
        A("v_max3_f32 %s, %s, %s, %s" % (v(vT0), v(S + 6), v(S + 7), v(vT0)))
        A("v_max_f32 %s, %s, %s" % (v(vT0), v(vT0), v(vT1)))
        xrow(vT0, vT1, "max")
        A("v_mul_f32 %s, s%d, %s" % (v(vT2), sLOG2E, v(vT0)))
        for i in range(8):
            A("v_fma_f32 %s, %s, s%d, -%s" % (v(S + i), v(S + i), sLOG2E, v(vT2)))
        for i in range(8):
            A("v_exp_f32 %s, %s" % (v(S + i), v(S + i)))
        nop(1)
        for i in range(4):
            A("v_cvt_pk_bf16_f32 %s, %s, %s" % (v(P + i), v(S + 2 * i), v(S + 2 * i + 1)))
        A("v_add_f32 %s, %s, %s" % (v(vT1), v(S), v(S + 1)))
        A("v_add_f32 %s, %s, %s" % (v(vT2), v(S + 2), v(S + 3)))
        A("v_add_f32 %s, %s, %s" % (v(vT3), v(S + 4), v(S + 5)))
        A("v_add_f32 %s, %s, %s" % (v(vT4), v(S + 6), v(S + 7)))
        D = vA
        for i in range(8):
            A("v_mfma_f32_16x16x32_bf16 %s, %s, %s, 0" % (vr(D + 4 * i, 4), vr(vVT + 4 * i, 4), vr(P, 4)))
        A("v_add_f32 %s, %s, %s" % (v(vT1), v(vT1), v(vT2)))
        A("v_add_f32 %s, %s, %s" % (v(vT3), v(vT3), v(vT4)))
        A("v_add_f32 %s, %s, %s" % (v(vT1), v(vT1), v(vT3)))
        xrow(vT1, vT2, "add")
        nop(8)
        A("s_mov_b64 exec, %s" % sr(sM))
        for i in range(8):
            A("ds_write_b128 %s, %s offset:%d" % (v(vATW), vr(D + 4 * i, 4), i * 64))
        A("s_mov_b64 exec, 0xf")
        A("s_mul_i32 s%d, s%d, %d" % (sT1, sW, AT_STRIDE))
        A("s_add_u32 s%d, s%d, %d" % (sT1, sT1, L_AT + 2048))
        A("v_lshlrev_b32 %s, 3, %s" % (v(vT2), v(vLANE)))
        A("v_add_u32 %s, s%d, %s" % (v(vT2), sT1, v(vT2)))
        A("ds_write_b64 %s, %s" % (v(vT2), vr(vT0, 2)))
        A("s_mov_b64 exec, -1")
        A("s_waitcnt lgkmcnt(0)")
        A("s_barrier")
        R = vA
        A("s_lshl_b32 s%d, s%d, 3" % (sT1, sW))
        A("s_add_u32 s%d, s%d, %d" % (sT1, sT1, L_AT + 2048))
        A("v_mov_b32 %s, s%d" % (v(vT2), sT1))
        for w in range(4):
            A("ds_read_b64 %s, %s offset:%d" % (vr(R + 8 + 2 * w, 2), v(vT2), w * AT_STRIDE))
        for w in range(4):
            A("ds_read_b64 %s, %s offset:%d" % (vr(R + 2 * w, 2), v(vATR), w * AT_STRIDE))
        A("s_waitcnt lgkmcnt(4)")
        A("v_max_f32 %s, %s, %s" % (v(vT0), v(R + 8), v(R + 10)))
        A("v_max3_f32 %s, %s, %s, %s" % (v(vT0), v(R + 12), v(R + 14), v(vT0)))
        for w in range(4):
            A("v_sub_f32 %s, %s, %s" % (v(R + 8 + 2 * w), v(R + 8 + 2 * w), v(vT0)))
            A("v_mul_f32 %s, s%d, %s" % (v(R + 8 + 2 * w), sLOG2E, v(R + 8 + 2 * w)))
        for w in range(4):
            A("v_exp_f32 %s, %s" % (v(R + 8 + 2 * w), v(R + 8 + 2 * w)))
        A("s_waitcnt lgkmcnt(0)")
        G = vS0
        A("v_mul_f32 %s, %s, %s" % (v(G), v(R + 8), v(R)))
        A("v_mul_f32 %s, %s, %s" % (v(G + 1), v(R + 8), v(R + 1)))
        A("v_mul_f32 %s, %s, %s" % (v(G + 5), v(R + 8), v(R + 9)))
        for w in range(1, 4):
            A("v_fmac_f32 %s, %s, %s" % (v(G), v(R + 8 + 2 * w), v(R + 2 * w)))
            A("v_fmac_f32 %s, %s, %s" % (v(G + 1), v(R + 8 + 2 * w), v(R + 2 * w + 1)))
            A("v_fmac_f32 %s, %s, %s" % (v(G + 5), v(R + 8 + 2 * w), v(R + 9 + 2 * w)))
        A("v_mov_b32 %s, %s" % (v(G + 4), v(vT0)))
        set_tags(G)
        set_tags(G + 4)
        A("v_add_u32 %s, 0x%x, %s" % (v(vT0), PO_OFF + L * 0x100000, v(vPOST)))
        publish(G, vT0)
        A("s_lshl_b32 s%d, s%d, 2" % (sT0, sG))
        A("s_add_u32 s%d, s%d, s%d" % (sT0, sT0, sW))
        A("s_lshl_b32 s%d, s%d, 5" % (sT0, sT0))
        A("s_add_u32 s%d, s%d, s%d" % (sT0, sT0, sS))
        A("s_lshl_b32 s%d, s%d, 4" % (sT0, sT0))
        A("s_add_u32 s%d, s%d, 0x%x" % (sT0, sT0, ML_OFF + L * 0x4000))
        A("v_mov_b32 %s, s%d" % (v(vT1), sT0))
        A("s_mov_b64 exec, 1")
        publish(G + 4, vT1)
        A("s_mov_b64 exec, -1")

        A.c("================= layer %d : combine + o-proj" % L)
        O = vB
        A("v_add_u32 %s, 0x%x, %s" % (v(vT0), PO_OFF + L * 0x100000, v(vPLD)))
        A("v_add_u32 %s, 0x%x, %s" % (v(vT1), ML_OFF + L * 0x4000, v(vMLLD)))
        poll([(O + 4 * i, vT0, 1024 * i) for i in range(4)] + [(O + 16 + 4 * i, vT1, 128 * i) for i in range(4)])
        if L == 0:
            A.c("unpack wo ; issue w1/w2/b1 loads")
            for k in range(16):
                A("v_lshlrev_b32 %s, 16, %s" % (v(vWO + k), v(vWO + 16 + k)))
                A("v_and_b32 %s, 0xffff0000, %s" % (v(vWO + 16 + k), v(vWO + 16 + k)))
            A("s_min_u32 s%d, s2, 223" % sT0)
            A("s_lshl_b32 s%d, s%d, 4" % (sT1, sT0))
            A("v_mul_u32_u24 %s, 0xe00, v0" % v(vT2))
            A("v_add_u32 %s, s%d, %s" % (v(vT2), sT1, v(vT2)))
            A("global_load_dwordx4 %s, %s, %s" % (vr(vB + 32, 4), v(vT2), sr(sW1)))
            A("v_add_u32 %s, 0x%x, %s" % (v(vT2), 256 * 3584, v(vT2)))
            A("global_load_dwordx4 %s, %s, %s" % (vr(vB + 36, 4), v(vT2), sr(sW1)))
            A("v_and_b32 %s, 7, %s" % (v(vT2), v(vLANE)))
            A("v_lshlrev_b32 %s, 1, %s" % (v(vT2), v(vT2)))
            A("v_add_u32 %s, s%d, %s" % (v(vT2), sT1, v(vT2)))
            A("global_load_ushort %s, %s, %s" % (v(vB1), v(vT2), sr(sB1)))
            A("s_lshl_b32 s%d, s%d, 13" % (sT1, sT0))
            A("v_lshlrev_b32 %s, 2, v0" % v(vT2))
            A("v_add_u32 %s, s%d, %s" % (v(vT2), sT1, v(vT2)))
            A("v_add_u32 %s, 0x1000, %s" % (v(vT3), v(vT2)))
            for k in range(8):
                A("global_load_dword %s, %s, %s offset:%d" % (v(vW2 + 8 + k), v(vT2 if k < 4 else vT3), sr(sW2), (k % 4) * 1024))
        ML = O + 16
        A("v_max_f32 %s, %s, %s" % (v(vT0), v(ML), v(ML + 4)))
        A("v_max3_f32 %s, %s, %s, %s" % (v(vT0), v(ML + 8), v(ML + 12), v(vT0)))
        xor8_multi([vT0], "max")
        xrow(vT0, vT1, "max")
        for i in range(4):
            A("v_sub_f32 %s, %s, %s" % (v(ML + 4 * i), v(ML + 4 * i), v(vT0)))
            A("v_mul_f32 %s, s%d, %s" % (v(ML + 4 * i), sLOG2E, v(ML + 4 * i)))
        for i in range(4):
            A("v_exp_f32 %s, %s" % (v(ML + 4 * i), v(ML + 4 * i)))
        nop(1)
        T = vS0
        A("v_mul_f32 %s, %s, %s" % (v(T), v(ML), v(O)))
        A("v_mul_f32 %s, %s, %s" % (v(T + 1), v(ML), v(O + 1)))
        A("v_mul_f32 %s, %s, %s" % (v(T + 2), v(ML), v(ML + 1)))
        for i in range(1, 4):
            A("v_fmac_f32 %s, %s, %s" % (v(T), v(ML + 4 * i), v(O + 4 * i)))
            A("v_fmac_f32 %s, %s, %s" % (v(T + 1), v(ML + 4 * i), v(O + 4 * i + 1)))
            A("v_fmac_f32 %s, %s, %s" % (v(T + 2), v(ML + 4 * i), v(ML + 4 * i + 1)))
        xor8_multi([T, T + 1, T + 2], "add")
        xrow_multi([T, T + 1, T + 2], [T + 4, T + 5, T + 6], "add")
        A("v_rcp_f32 %s, %s" % (v(T + 2), v(T + 2)))
        nop(1)
        A("v_mul_f32 %s, %s, %s" % (v(T), v(T), v(T + 2)))
        A("v_mul_f32 %s, %s, %s" % (v(T + 1), v(T + 1), v(T + 2)))
        A("v_cvt_pk_bf16_f32 %s, %s, %s" % (v(T + 2), v(T), v(T + 1)))
        A("v_lshlrev_b32 %s, 16, %s" % (v(T), v(T + 2)))
        A("v_and_b32 %s, 0xffff0000, %s" % (v(T + 1), v(T + 2)))
        nop(1)
        for j in range(8):
            A("v_readlane_b32 s%d, %s, %d" % (sO + 2 * j, v(T), j))
            A("v_readlane_b32 s%d, %s, %d" % (sO + 2 * j + 1, v(T + 1), j))
        nop(2)
        G = vS0 + 8
        A("v_mul_f32 %s, s%d, %s" % (v(G), sO, v(vWO)))
        A("v_mul_f32 %s, s%d, %s" % (v(G + 1), sO, v(vWO + 16)))
        for k in range(1, 16):
            A("v_fmac_f32 %s, s%d, %s" % (v(G), sO + k, v(vWO + k)))
            A("v_fmac_f32 %s, s%d, %s" % (v(G + 1), sO + k, v(vWO + 16 + k)))
        set_tags(G)
        A("v_add_u32 %s, 0x%x, %s" % (v(vT0), RS_OFF + (2 * L) * 0x100000, v(vRSST)))
        publish(G, vT0)

        l0 = wave0_begin()
        reduce_hops(2 * L, mlp=False, last=False)
        A.lab(l0)

        A.c("================= layer %d : MLP" % L)
        if L == 0:
            A("s_waitcnt vmcnt(0)")
            A("v_lshlrev_b32 %s, 4, v0" % v(vT0))
            A("ds_write_b128 %s, %s offset:%d" % (v(vT0), vr(vB + 32, 4), L_W1))
            A("ds_write_b128 %s, %s offset:%d" % (v(vT0), vr(vB + 36, 4), L_W1 + 4096))
            for k in range(8):
                A("v_lshlrev_b32 %s, 16, %s" % (v(vW2 + k), v(vW2 + 8 + k)))
                A("v_and_b32 %s, 0xffff0000, %s" % (v(vW2 + 8 + k), v(vW2 + 8 + k)))
            A("v_lshlrev_b32 %s, 16, %s" % (v(vB1), v(vB1)))
            A("s_waitcnt lgkmcnt(0)")
            A("s_barrier")
        A("v_and_b32 %s, 15, %s" % (v(vT1), v(vLANE)))
        A("v_lshrrev_b32 %s, 4, %s" % (v(vT2), v(vLANE)))
        A("v_lshrrev_b32 %s, 2, %s" % (v(vT3), v(vT1)))
        A("v_lshl_add_u32 %s, %s, 3, %s" % (v(vT3), v(vT2), v(vT3)))
        A("v_and_b32 %s, 1, %s" % (v(vT4), v(vT1)))
        A("v_lshlrev_b32 %s, 4, %s" % (v(vT0), v(vT3)))
        A("v_lshl_add_u32 %s, %s, 3, %s" % (v(vT0), v(vT4), v(vT0)))
        prefetch_B(L_W1, 16)
        poll_AG(2 * L)
        layernorm()
        gemv(vS0)
        T = vS0
        A("v_cvt_pk_bf16_f32 %s, %s, %s" % (v(T), v(T), v(T)))
        A("v_and_b32 %s, 0xffff0000, %s" % (v(T), v(T)))
        A("v_add_f32 %s, %s, %s" % (v(T), v(T), v(vB1)))
        A("v_cvt_pk_bf16_f32 %s, %s, %s" % (v(T), v(T), v(T)))
        A("v_and_b32 %s, 0xffff0000, %s" % (v(T), v(T)))
        A("v_mul_f32 %s, %s, %s" % (v(T + 1), v(T), v(T)))
        A("v_mov_b32 %s, s%d" % (v(T + 2), sC1))
        A("v_fmac_f32 %s, s%d, %s" % (v(T + 2), sC2, v(T + 1)))
        A("v_mul_f32 %s, %s, %s" % (v(T + 2), v(T + 2), v(T)))
        A("v_exp_f32 %s, %s" % (v(T + 2), v(T + 2)))
        nop(1)
        A("v_add_f32 %s, 1.0, %s" % (v(T + 2), v(T + 2)))
        A("v_rcp_f32 %s, %s" % (v(T + 2), v(T + 2)))
        nop(1)
        A("v_mul_f32 %s, %s, %s" % (v(T), v(T), v(T + 2)))
        A("v_cvt_pk_bf16_f32 %s, %s, %s" % (v(T), v(T), v(T)))
        A("v_and_b32 %s, 0xffff0000, %s" % (v(T), v(T)))
        nop(1)
        for k in range(8):
            A("v_readlane_b32 s%d, %s, %d" % (sO + k, v(T), k))
        A("s_cmp_lt_u32 s2, 224")
        for k in range(8):
            A("s_cselect_b32 s%d, s%d, 0" % (sO + k, sO + k))
        nop(2)
        G = vS0 + 8
        A("v_mul_f32 %s, s%d, %s" % (v(G), sO, v(vW2)))
        A("v_mul_f32 %s, s%d, %s" % (v(G + 1), sO, v(vW2 + 8)))
        for k in range(1, 8):
            A("v_fmac_f32 %s, s%d, %s" % (v(G), sO + k, v(vW2 + k)))
            A("v_fmac_f32 %s, s%d, %s" % (v(G + 1), sO + k, v(vW2 + 8 + k)))
        set_tags(G)
        A("v_add_u32 %s, 0x%x, %s" % (v(vT0), RS_OFF + (2 * L + 1) * 0x100000, v(vRSST)))
        publish(G, vT0)
        l0 = wave0_begin()
        reduce_hops(2 * L + 1, mlp=True, last=(L == 1))
        A.lab(l0)
    A.lab("L_end")
    A("s_endpgm")

build()
out = HEADER
out += "; Override launch geometry by editing the next line (default: block=256,\n"
out += "; @launch grid=(256,1,1) block=(256,1,1) lds=%d\n" % LDS_SIZE
out += '.amdgcn_target "amdgcn-amd-amdhsa--gfx950"\n.text\n.globl %s_kernel\n.p2align 8\n.type %s_kernel,@function\n%s_kernel:\n' % (NAME, NAME, NAME)
out += "\n".join(A.L) + "\n"
out += """.section .rodata,"a"
.p2align 6
.amdhsa_kernel %s_kernel
  .amdhsa_next_free_vgpr %d
  .amdhsa_next_free_sgpr 96
  .amdhsa_accum_offset %d
  .amdhsa_group_segment_fixed_size 0
  .amdhsa_kernarg_size 104
  .amdhsa_user_sgpr_count 2
  .amdhsa_user_sgpr_kernarg_segment_ptr 1
  .amdhsa_system_sgpr_workgroup_id_x 1
.end_amdhsa_kernel
""" % (NAME, NVGPR, NVGPR)
dst = sys.argv[1] if len(sys.argv) > 1 else "cdna_kernels/%s.s" % NAME
open(dst, "w").write(out)
print("wrote", dst, len(A.L), "lines")
```

```python
import sys, struct, os

NAME = "interleave_layers__sliding_block_cached__dense_activation_gelu__decode"
HEADER = open("cdna_kernels/%s.s.ref" % NAME).read().split("; Override launch geometry")[0]
def f2u(x): return struct.unpack("<I", struct.pack("<f", x))[0]

class Asm:
    def __init__(s): s.L = []; s.n = 0
    def __call__(s, t): s.L.append("    " + t)
    def lab(s, l): s.L.append(l + ":")
    def new(s, p="L"): s.n += 1; return "%s_%d" % (p, s.n)
    def c(s, t): s.L.append("    ; " + t)
A = Asm()
def v(i): return "v%d" % i
def vr(i, n): return "v[%d:%d]" % (i, i + n - 1)
def sr(i, n=2): return "s[%d:%d]" % (i, i + n - 1)

NT = " nt"
STAMPS = int(os.environ.get("STAMPS", "0"))
SEL = os.environ.get("STSEL", "").split(",")
STW = int(os.environ.get("STW", "0"))

sG, sS, sW = 3, 4, 5
sTA, sTB, sE = 6, 7, 8
sT0, sT1, sT2 = 9, 10, 11
sKB, sVB = 12, 14
sX, sK, sV, sWQ, sWO, sW1, sB1 = 16, 18, 20, 22, 24, 28, 30
sW2, sB2, sOUT, sDBG, sWS = 32, 34, 36, 38, 40
sF = 42
sMODE, sXCC, sTBX, sIT = 44, 45, 46, 48
sM = 50
sLOG2E, sSCALE, sINV512, sPLO, sPHI, sC1, sC2, sEPS = 54, 55, 56, 57, 58, 59, 60, 61
sL = 63
sO = 64

F_OFF = 0x100000
QB_OFF = 0x000000
ML_OFF = 0x004000
AG_OFF = 0x008000
XB_OFF = 0x010000
PO_OFF = 0x100000
RS_OFF = 0x200000
LAYER_STRIDE = 0x400000

L_WQ = 0
L_W1 = 16384
L_XN = 24576
L_Q = L_XN + 2048
L_O = L_Q + 1024
L_MODE = L_O + 64
L_AT = L_MODE + 64
AT_STRIDE = 2080
LDS_SIZE = L_AT + 4 * AT_STRIDE

vLANE = 1
vQLD, vPOST, vPLD, vMLLD, vXLD, vAGLD, vTRA = 2, 3, 4, 5, 7, 8, 9
vXR0, vXR1 = 10, 11
vB1, vB20, vB21 = 12, 13, 14
vXNW, vXNR = 15, 16
vATW, vATR = 17, 18
vTR1 = 19
vT0, vT1, vT2, vT3, vT4, vT5 = 20, 21, 22, 23, 24, 25
vQST, vXST, vAGST = 26, 27, 6
vQRD = 2
vMLST = 4
vX = 28
vK = 32
vVT = 64
vWO = 96
vW2 = 128
vB = 144
vA = 208
vS0 = 240
NVGPR = 256
LIMIT = 400000

PRO = []; LOO = []
def stamp(name, loop=True):
    if not STAMPS: return
    if SEL != [""] and name not in SEL and name != "start": return
    A("s_memrealtime s[82:83]")
    A("s_waitcnt lgkmcnt(0)")
    if not loop:
        if name not in PRO: PRO.append(name)
        A("s_mov_b32 s%d, s82" % (84 + PRO.index(name)))
    else:
        if name not in LOO: LOO.append(name)
        i = 4 + 2 * LOO.index(name)
        assert i + 1 < 18
        A("s_cmp_eq_u32 s%d, 0" % sL)
        A("s_cselect_b32 s%d, s82, s%d" % (84 + i, 84 + i))
        A("s_cselect_b32 s%d, s%d, s82" % (84 + i + 1, 84 + i + 1))
def dump_stamps():
    if not STAMPS: return
    l = A.new("Lst")
    A("s_cmp_lg_u32 s%d, %d" % (sW, STW))
    A("s_cbranch_scc1 %s" % l)
    A("s_lshl_b32 s%d, s2, 7" % sT0)
    A("s_add_u32 s%d, s%d, 0x2000000" % (sT0, sT0))
    A("v_mov_b32 %s, s%d" % (v(vT0), sT0))
    A("s_mov_b64 exec, 1")
    for i in range(18):
        A("v_mov_b32 %s, s%d" % (v(vT1), 84 + i))
        A("global_store_dword %s, %s, %s offset:%d" % (v(vT0), v(vT1), sr(sWS), 4 * i))
        A("s_nop 1")
    A("s_mov_b64 exec, -1")
    A.lab(l)

def nop(n): A("s_nop %d" % (n - 1))
DPPM = " row_mask:0xf bank_mask:0xf"

def dpp_reduce(regs, ctls, op):
    ins = "v_add_f32" if op == "add" else "v_max_f32"
    for ctl in ctls:
        nop(2 if len(regs) == 1 else 1)
        for r in regs:
            A("%s_dpp %s, %s, %s %s%s" % (ins, v(r), v(r), v(r), ctl, DPPM))

def xrow(regs, tmps, op):
    ins = "v_add_f32" if op == "add" else "v_max_f32"
    for sw in ["v_permlane16_swap_b32", "v_permlane32_swap_b32"]:
        for r, t in zip(regs, tmps):
            A("v_mov_b32 %s, %s" % (v(t), v(r)))
        nop(2 if len(regs) == 1 else 1)
        for r, t in zip(regs, tmps):
            A("%s %s, %s" % (sw, v(r), v(t)))
        nop(2 if len(regs) == 1 else 1)
        for r, t in zip(regs, tmps):
            A("%s %s, %s, %s" % (ins, v(r), v(r), v(t)))

def poll(loads, xcc=False):
    acc = vT5
    lp = A.new("Lpoll")
    A("s_mov_b32 s%d, 0" % sIT)
    A.lab(lp)
    for (d, a, off) in loads:
        A("global_load_dwordx4 %s, %s, %s offset:%d sc1" % (vr(d, 4), v(a), sr(sF), off))
    A("s_add_u32 s%d, s%d, 1" % (sIT, sIT))
    A("s_cmp_gt_u32 s%d, %d" % (sIT, LIMIT))
    A("s_cbranch_scc1 L_end")
    n = len(loads)
    for i, (d, a, off) in enumerate(loads):
        A("s_waitcnt vmcnt(%d)" % (n - 1 - i))
        A("v_xor_b32 %s, s%d, %s" % (v(vT3), sTA, v(d + 2)))
        A("v_xor_b32 %s, s%d, %s" % (v(vT4), sTB, v(d + 3)))
        if xcc:
            A("v_lshrrev_b32 %s, 3, %s" % (v(vT4), v(vT4)))
        if i == 0:
            A("v_or_b32 %s, %s, %s" % (v(acc), v(vT3), v(vT4)))
        else:
            A("v_or3_b32 %s, %s, %s, %s" % (v(acc), v(vT3), v(vT4), v(acc)))
    A("v_cmp_ne_u32 vcc, 0, %s" % v(acc))
    A("s_cbranch_vccnz %s" % lp)

def publish(dreg, areg, off=0, fast=True):
    o = " offset:%d" % off if off else ""
    if fast:
        l1 = A.new("Lpf"); l2 = A.new("Lpe")
        A("s_cmp_eq_u32 s%d, 1" % sMODE)
        A("s_cbranch_scc1 %s" % l1)
        A("global_store_dwordx4 %s, %s, %s%s sc1" % (v(areg), vr(dreg, 4), sr(sF), o))
        A("s_branch %s" % l2)
        A.lab(l1)
        A("global_store_dwordx4 %s, %s, %s%s" % (v(areg), vr(dreg, 4), sr(sF), o))
        A.lab(l2)
    else:
        A("global_store_dwordx4 %s, %s, %s%s sc1" % (v(areg), vr(dreg, 4), sr(sF), o))

def set_tags(d):
    A("v_mov_b32 %s, s%d" % (v(d + 2), sTA))
    A("v_mov_b32 %s, s%d" % (v(d + 3), sTB))

def layernorm(X, ldsoff):
    f = [vS0 + i for i in range(8)]
    d = [vS0 + 8 + i for i in range(8)]
    for i in range(4):
        A("v_lshlrev_b32 %s, 16, %s" % (v(f[2 * i]), v(X[i])))
        A("v_and_b32 %s, 0xffff0000, %s" % (v(f[2 * i + 1]), v(X[i])))
    A("v_readfirstlane_b32 s%d, %s" % (sT2, v(f[0])))
    nop(2)
    for i in range(8):
        A("v_subrev_f32 %s, s%d, %s" % (v(d[i]), sT2, v(f[i])))
    A("v_add_f32 %s, %s, %s" % (v(vT0), v(d[0]), v(d[1])))
    A("v_mul_f32 %s, %s, %s" % (v(vT1), v(d[0]), v(d[0])))
    A("v_add_f32 %s, %s, %s" % (v(vT2), v(d[2]), v(d[3])))
    A("v_mul_f32 %s, %s, %s" % (v(vT3), v(d[1]), v(d[1])))
    for i in (2, 4, 6):
        A("v_fmac_f32 %s, %s, %s" % (v(vT1), v(d[i]), v(d[i])))
        A("v_fmac_f32 %s, %s, %s" % (v(vT3), v(d[i + 1]), v(d[i + 1])))
    A("v_add_f32 %s, %s, %s" % (v(vT0), v(vT0), v(d[4])))
    A("v_add_f32 %s, %s, %s" % (v(vT2), v(vT2), v(d[5])))
    A("v_add_f32 %s, %s, %s" % (v(vT0), v(vT0), v(d[6])))
    A("v_add_f32 %s, %s, %s" % (v(vT2), v(vT2), v(d[7])))
    A("v_add_f32 %s, %s, %s" % (v(vT1), v(vT1), v(vT3)))
    A("v_add_f32 %s, %s, %s" % (v(vT0), v(vT0), v(vT2)))
    dpp_reduce([vT1, vT0], ["quad_perm:[1,0,3,2]", "quad_perm:[2,3,0,1]", "row_half_mirror", "row_mirror"], "add")
    xrow([vT1, vT0], [vT3, vT2], "add")
    A("v_mul_f32 %s, s%d, %s" % (v(vT0), sINV512, v(vT0)))
    A("v_mul_f32 %s, s%d, %s" % (v(vT1), sINV512, v(vT1)))
    A("v_fma_f32 %s, -%s, %s, %s" % (v(vT1), v(vT0), v(vT0), v(vT1)))
    A("v_add_f32 %s, s%d, %s" % (v(vT0), sT2, v(vT0)))
    A("v_max_f32 %s, 0, %s" % (v(vT1), v(vT1)))
    A("v_cvt_pk_bf16_f32 %s, %s, %s" % (v(vT2), v(vT0), v(vT1)))
    A("v_lshlrev_b32 %s, 16, %s" % (v(vT0), v(vT2)))
    A("v_and_b32 %s, 0xffff0000, %s" % (v(vT1), v(vT2)))
    A("v_add_f32 %s, s%d, %s" % (v(vT1), sEPS, v(vT1)))
    for i in range(4):
        A("v_sub_f32 %s, %s, %s" % (v(f[i]), v(f[i]), v(vT0)))
    A("v_cvt_pk_bf16_f32 %s, %s, %s" % (v(vT1), v(vT1), v(vT1)))
    for i in range(4, 8):
        A("v_sub_f32 %s, %s, %s" % (v(f[i]), v(f[i]), v(vT0)))
    A("v_and_b32 %s, 0xffff0000, %s" % (v(vT1), v(vT1)))
    A("v_sqrt_f32 %s, %s" % (v(vT1), v(vT1)))
    for i in range(4):
        A("v_cvt_pk_bf16_f32 %s, %s, %s" % (v(d[i]), v(f[2 * i]), v(f[2 * i + 1])))
    A("v_cvt_pk_bf16_f32 %s, %s, %s" % (v(vT1), v(vT1), v(vT1)))
    A("v_and_b32 %s, 0xffff0000, %s" % (v(vT1), v(vT1)))
    A("v_rcp_f32 %s, %s" % (v(vT1), v(vT1)))
    for i in range(4):
        A("v_lshlrev_b32 %s, 16, %s" % (v(f[2 * i]), v(d[i])))
        A("v_and_b32 %s, 0xffff0000, %s" % (v(f[2 * i + 1]), v(d[i])))
    for i in range(8):
        A("v_mul_f32 %s, %s, %s" % (v(f[i]), v(f[i]), v(vT1)))
    for i in range(4):
        A("v_cvt_pk_bf16_f32 %s, %s, %s" % (v(d[4 + i]), v(f[2 * i]), v(f[2 * i + 1])))
    A("ds_write_b128 %s, %s offset:%d" % (v(vXNW), vr(d[4], 4), ldsoff))

def prefetch_WQ():
    for c in range(16):
        off = L_WQ + c * 1024
        A("ds_read_b64_tr_b16 %s, %s offset:%d" % (vr(vB + 4 * c, 2), v(vTRA), off))
        A("ds_read_b64_tr_b16 %s, %s offset:%d" % (vr(vB + 4 * c + 2, 2), v(vTRA), off + 128))

def prefetch_W1():
    for c in range(8):
        off = L_W1 + c * 512
        A("ds_read_b64_tr_b16 %s, %s offset:%d" % (vr(vB + 4 * c, 2), v(vTR1), off))
        A("ds_read_b64_tr_b16 %s, %s offset:%d" % (vr(vB + 4 * c + 2, 2), v(vTR1), off + 64))

def gemv(acc, nch):
    n0 = min(nch, 8)
    for c in range(n0):
        A("ds_read_b128 %s, %s offset:%d" % (vr(vA + 4 * c, 4), v(vXNR), c * 64))
    for c in range(nch):
        issued = n0 + min(c, nch - n0)
        A("s_waitcnt lgkmcnt(%d)" % (issued - c - 1))
        A("v_mfma_f32_16x16x32_bf16 %s, %s, %s, %s" % (vr(acc, 4), vr(vA + 4 * (c % 8), 4), vr(vB + 4 * c, 4), "0" if c == 0 else vr(acc, 4)))
        if c + 8 < nch:
            A("ds_read_b128 %s, %s offset:%d" % (vr(vA + 4 * c, 4), v(vXNR), (c + 8) * 64))
    nop(8); nop(2)

def first_begin():
    l = A.new("Lnf")
    A("s_cmp_lg_u32 s%d, 0" % sL)
    A("s_cbranch_scc1 %s" % l)
    return l
def notfirst_begin():
    l = A.new("Lnn")
    A("s_cmp_eq_u32 s%d, 0" % sL)
    A("s_cbranch_scc1 %s" % l)
    return l

def poll_AG(idx, X):
    if idx:
        A("v_add_u32 %s, 0x%x, %s" % (v(vT0), idx * 0x4000, v(vAGLD)))
    a = vT0 if idx else vAGLD
    poll([(X, a, 0), (X + 4, a, 16)])
    return [X, X + 1, X + 4, X + 5]

def reduce_hops(idx, mlp):
    T = vS0
    A.c("---- RS consumer %d" % idx)
    A("v_add_u32 %s, 0x%x, %s" % (v(vT0), RS_OFF + idx * 0x100000, v(vPLD)))
    set_tags(T)
    poll([(vA + 4 * i, vT0, 1024 * i) for i in range(4)])
    stamp("rs_got%d" % idx)
    for d in range(2):
        A("v_add_f32 %s, %s, %s" % (v(T + d), v(vA + d), v(vA + 4 + d)))
        A("v_add_f32 %s, %s, %s" % (v(T + 4 + d), v(vA + 8 + d), v(vA + 12 + d)))
    for d in range(2):
        A("v_add_f32 %s, %s, %s" % (v(T + d), v(T + d), v(T + 4 + d)))
    dpp_reduce([T, T + 1], ["row_ror:8"], "add")
    xrow([T, T + 1], [T + 4, T + 5], "add")
    if idx:
        A("v_add_u32 %s, 0x%x, %s" % (v(vT0), idx * 0x8000, v(vXST)))
    A("s_mov_b64 exec, 0xff")
    publish(T, vT0 if idx else vXST, fast=False)
    A("s_mov_b64 exec, -1")
    A.c("---- X consumer %d" % idx)
    if idx:
        A("v_add_u32 %s, 0x%x, %s" % (v(vT0), idx * 0x8000, v(vXLD)))
    poll([(vA, vT0 if idx else vXLD, 0)])
    stamp("x_got%d" % idx)
    dpp_reduce([vA, vA + 1], ["row_ror:8"], "add")
    xrow([vA, vA + 1], [T + 4, T + 5], "add")
    A("v_cvt_pk_bf16_f32 %s, %s, %s" % (v(vT1), v(vA), v(vA + 1)))
    A("v_lshlrev_b32 %s, 16, %s" % (v(vA), v(vT1)))
    A("v_and_b32 %s, 0xffff0000, %s" % (v(vA + 1), v(vT1)))
    if mlp:
        A("v_add_f32 %s, %s, %s" % (v(vA), v(vA), v(vB20)))
        A("v_add_f32 %s, %s, %s" % (v(vA + 1), v(vA + 1), v(vB21)))
        A("v_cvt_pk_bf16_f32 %s, %s, %s" % (v(vT1), v(vA), v(vA + 1)))
        A("v_lshlrev_b32 %s, 16, %s" % (v(vA), v(vT1)))
        A("v_and_b32 %s, 0xffff0000, %s" % (v(vA + 1), v(vT1)))
    A("v_add_f32 %s, %s, %s" % (v(vA), v(vA), v(vXR0)))
    A("v_add_f32 %s, %s, %s" % (v(vA + 1), v(vA + 1), v(vXR1)))
    A("v_cvt_pk_bf16_f32 %s, %s, %s" % (v(T), v(vA), v(vA + 1)))
    A("v_lshlrev_b32 %s, 16, %s" % (v(vXR0), v(T)))
    A("v_and_b32 %s, 0xffff0000, %s" % (v(vXR1), v(T)))
    if mlp:
        A("s_cmp_eq_u32 s%d, 1" % sL)
        A("s_cbranch_scc1 L_final")
    A("v_mov_b32_dpp %s, %s quad_perm:[1,1,3,3]%s" % (v(T + 1), v(T), DPPM))
    if idx:
        A("v_add_u32 %s, 0x%x, %s" % (v(vT0), idx * 0x4000, v(vAGST)))
    A("s_mov_b64 exec, 0x55")
    publish(T, vT0 if idx else vAGST)
    A("s_mov_b64 exec, -1")

def tags_setup():
    A("s_add_u32 s%d, s%d, 0x%x" % (sF, sWS, F_OFF))
    A("s_addc_u32 s%d, s%d, 0" % (sF + 1, sWS + 1))
    A("s_mov_b32 s%d, 0" % sMODE)
    A("s_mov_b32 s%d, 0" % sL)
    A("s_getreg_b32 s%d, hwreg(HW_REG_XCC_ID)" % sXCC)
    A("s_and_b32 s%d, s%d, 7" % (sXCC, sXCC))
    A("s_waitcnt lgkmcnt(0)")
    A("s_xor_b32 s%d, s%d, 0x9e3779b9" % (sTA, sE))
    A("s_mul_i32 s%d, s%d, 0x85ebca6b" % (sTB, sE))
    A("s_add_u32 s%d, s%d, 0xc2b2ae35" % (sTB, sTB))
    A("s_xor_b32 s%d, s%d, s%d" % (sTBX, sTB, sXCC))

def next_layer():
    A("s_add_u32 s%d, s%d, 0x%x" % (sF, sF, LAYER_STRIDE))
    A("s_addc_u32 s%d, s%d, 0" % (sF + 1, sF + 1))
    A("s_add_u32 s%d, s%d, 1" % (sL, sL))

def build():
    A("s_cmp_ge_u32 s2, 256")
    A("s_cbranch_scc1 L_end")
    A("s_load_dwordx16 s[16:31], s[0:1], 0")
    A("s_load_dwordx8 s[32:39], s[0:1], 64")
    A("s_load_dwordx2 s[40:41], s[0:1], 96")
    A("s_and_b32 s%d, s2, 7" % sG)
    A("s_lshr_b32 s%d, s2, 3" % sS)
    A("v_and_b32 %s, 63, v0" % v(vLANE))
    A("v_lshrrev_b32 %s, 6, v0" % v(vT0))
    nop(1)
    A("v_readfirstlane_b32 s%d, %s" % (sW, v(vT0)))
    for (r, val) in [(sLOG2E, f2u(1.4426950408889634)), (sSCALE, f2u(0.08838834764831845)), (sINV512, f2u(1.0 / 512)),
                     (sPLO, 0x05040100), (sPHI, 0x07060302),
                     (sC1, f2u(-2 * 0.7978845608028654 * 1.4426950408889634)),
                     (sC2, f2u(-2 * 0.7978845608028654 * 0.044715 * 1.4426950408889634)), (sEPS, f2u(1e-5))]:
        A("s_mov_b32 s%d, 0x%08x" % (r, val))
    A("v_and_b32 %s, 15, %s" % (v(vT1), v(vLANE)))
    A("v_lshrrev_b32 %s, 4, %s" % (v(vT2), v(vLANE)))
    A("s_cmp_eq_u32 s%d, 4" % sW)
    A("s_cbranch_scc1 L_comm")

    A.c("=========== compute waves prologue")
    A("s_lshl_b32 s%d, s%d, 24" % (sT0, sG))
    A("s_lshl_b32 s%d, s%d, 15" % (sT1, sS))
    A("s_add_u32 s%d, s%d, s%d" % (sT0, sT0, sT1))
    A("s_lshl_b32 s%d, s%d, 13" % (sT1, sW))
    A("s_add_u32 s%d, s%d, s%d" % (sT0, sT0, sT1))
    A("s_add_u32 s%d, s%d, %d" % (sT0, sT0, 61440 * 256))
    A("v_lshlrev_b32 %s, 8, %s" % (v(vT3), v(vT1)))
    A("v_lshl_add_u32 %s, %s, 4, %s" % (v(vT3), v(vT2), v(vT3)))
    A("v_add_u32 %s, 0x1000, %s" % (v(vT4), v(vT3)))
    A("s_waitcnt lgkmcnt(0)")
    stamp("start", loop=False)
    A("s_load_dword s%d, %s, 0" % (sE, sr(sWS)))
    A("s_add_u32 s%d, s%d, s%d" % (sKB, sK, sT0))
    A("s_addc_u32 s%d, s%d, 0" % (sKB + 1, sK + 1))
    A("s_add_u32 s%d, s%d, s%d" % (sVB, sV, sT0))
    A("s_addc_u32 s%d, s%d, 0" % (sVB + 1, sV + 1))
    for T in range(2):
        for c in range(4):
            A("global_load_dwordx4 %s, %s, %s offset:%d%s" % (vr(vK + (T * 4 + c) * 4, 4), v(vT3 if T == 0 else vT4), sr(sKB), c * 64, NT))
    A("v_lshlrev_b32 %s, 10, %s" % (v(vT3), v(vT2)))
    A("v_lshl_add_u32 %s, %s, 4, %s" % (v(vT3), v(vT1), v(vT3)))
    A("v_add_u32 %s, 0x1000, %s" % (v(vT4), v(vT3)))
    VRAW = vWO
    for j in range(8):
        A("global_load_dwordx4 %s, %s, %s offset:%d%s" % (vr(VRAW + 4 * j, 4), v(vT3 if j < 4 else vT4), sr(sVB), (j % 4) * 256, NT))
    A("v_and_b32 %s, 3, %s" % (v(vT3), v(vT1)))
    A("v_lshlrev_b32 %s, 8, %s" % (v(vQRD), v(vT3)))
    A("v_lshl_add_u32 %s, %s, 4, %s" % (v(vQRD), v(vT2), v(vQRD)))
    A("v_add_u32 %s, %d, %s" % (v(vQRD), L_Q, v(vQRD)))
    A("v_lshrrev_b32 %s, 2, %s" % (v(vT3), v(vT1)))
    A("v_lshl_add_u32 %s, %s, 3, %s" % (v(vT3), v(vT2), v(vT3)))
    A("v_lshlrev_b32 %s, 4, %s" % (v(vTR1), v(vT3)))
    A("v_and_b32 %s, 1, %s" % (v(vT4), v(vT1)))
    A("v_lshl_add_u32 %s, %s, 3, %s" % (v(vTR1), v(vT4), v(vTR1)))
    A("v_and_b32 %s, 2, %s" % (v(vT4), v(vT1)))
    A("v_lshl_add_u32 %s, %s, 11, %s" % (v(vTR1), v(vT4), v(vTR1)))
    A("v_and_b32 %s, 1, %s" % (v(vT4), v(vT1)))
    A("v_lshlrev_b32 %s, 4, %s" % (v(vXNR), v(vT2)))
    A("v_lshl_add_u32 %s, %s, 9, %s" % (v(vXNR), v(vT4), v(vXNR)))
    A("v_add_u32 %s, %d, %s" % (v(vXNR), L_XN + 1024, v(vXNR)))
    A("v_lshrrev_b32 %s, 3, v0" % v(vT3))
    A("s_lshl_b32 s%d, s%d, 5" % (sT1, sG))
    A("v_add_u32 %s, s%d, %s" % (v(vT3), sT1, v(vT3)))
    A("v_lshlrev_b32 %s, 5, %s" % (v(vT3), v(vT3)))
    A("v_add_u32 %s, s%d, %s" % (v(vT3), sS, v(vT3)))
    A("v_lshlrev_b32 %s, 7, %s" % (v(vT3), v(vT3)))
    A("v_and_b32 %s, 7, v0" % v(vT4))
    A("v_lshl_add_u32 %s, %s, 4, %s" % (v(vPOST), v(vT4), v(vT3)))
    A("s_lshl_b32 s%d, s%d, 2" % (sT0, sG))
    A("s_add_u32 s%d, s%d, s%d" % (sT0, sT0, sW))
    A("s_lshl_b32 s%d, s%d, 5" % (sT0, sT0))
    A("s_add_u32 s%d, s%d, s%d" % (sT0, sT0, sS))
    A("s_lshl_b32 s%d, s%d, 4" % (sT0, sT0))
    A("s_add_u32 s%d, s%d, 0x%x" % (sT0, sT0, ML_OFF))
    A("v_mov_b32 %s, s%d" % (v(vMLST), sT0))
    A("s_mul_i32 s%d, s%d, %d" % (sT1, sW, AT_STRIDE))
    A("s_add_u32 s%d, s%d, %d" % (sT1, sT1, L_AT))
    A("v_lshlrev_b32 %s, 9, %s" % (v(vATW), v(vT1)))
    A("v_lshl_add_u32 %s, %s, 4, %s" % (v(vATW), v(vT2), v(vATW)))
    A("v_add_u32 %s, s%d, %s" % (v(vATW), sT1, v(vATW)))
    A("s_lshl_b32 s%d, s%d, 9" % (sT1, sW))
    A("s_add_u32 s%d, s%d, %d" % (sT1, sT1, L_AT))
    A("v_lshlrev_b32 %s, 3, %s" % (v(vATR), v(vLANE)))
    A("v_add_u32 %s, s%d, %s" % (v(vATR), sT1, v(vATR)))
    A("s_mov_b32 s%d, 0x000f000f" % sM)
    A("s_mov_b32 s%d, 0x000f000f" % (sM + 1))
    tags_setup()
    A("s_waitcnt vmcnt(0)")
    stamp("kv_landed", loop=False)
    for i in range(8):
        q = i // 2
        sel = sPLO if i % 2 == 0 else sPHI
        for p in range(4):
            A("v_perm_b32 %s, %s, %s, s%d" % (v(vVT + 4 * i + p), v(VRAW + 4 * (2 * p + 1) + q), v(VRAW + 4 * (2 * p) + q), sel))
    A("s_lshl_b32 s%d, s%d, 2" % (sT0, sG))
    A("s_lshr_b32 s%d, s%d, 3" % (sT1, sS))
    A("s_add_u32 s%d, s%d, s%d" % (sT0, sT0, sT1))
    A("s_lshl_b32 s%d, s%d, 7" % (sT0, sT0))
    A("s_and_b32 s%d, s%d, 7" % (sT1, sS))
    A("s_add_u32 s%d, s%d, s%d" % (sT0, sT0, sT1))
    A("s_lshl_b32 s%d, s%d, 10" % (sT0, sT0))
    A("v_lshlrev_b32 %s, 2, v0" % v(vT0))
    A("v_add_u32 %s, s%d, %s" % (v(vT0), sT0, v(vT0)))
    for k in range(16):
        if k:
            A("v_add_u32 %s, 0x2000, %s" % (v(vT0), v(vT0)))
        A("global_load_dword %s, %s, %s%s" % (v(vWO + 16 + k), v(vT0), sr(sWO), NT))

    A.lab("L_cloop")
    A.c("================= attention")
    A("s_barrier")
    Q = vB
    for c in range(4):
        A("ds_read_b128 %s, %s offset:%d" % (vr(Q + 4 * c, 4), v(vQRD), c * 64))
    lf = first_begin()
    A("v_mov_b32 %s, %d" % (v(vT4), L_MODE))
    A("ds_read_b32 %s, %s" % (v(vT3), v(vT4)))
    A("s_waitcnt lgkmcnt(0)")
    A("v_readfirstlane_b32 s%d, %s" % (sMODE, v(vT3)))
    A.lab(lf)
    stamp("b1")
    S = vS0
    for c in range(4):
        A("s_waitcnt lgkmcnt(%d)" % (3 - c))
        for T in range(2):
            A("v_mfma_f32_16x16x32_bf16 %s, %s, %s, %s" % (vr(S + 4 * T, 4), vr(vK + (T * 4 + c) * 4, 4), vr(Q + 4 * c, 4), "0" if c == 0 else vr(S + 4 * T, 4)))
    nop(8); nop(2)
    P = vS0 + 8
    for rnd in range(2):
        for i in range(4):
            A("v_cvt_pk_bf16_f32 %s, %s, %s" % (v(P + i), v(S + 2 * i), v(S + 2 * i + 1)))
        for i in range(4):
            A("v_lshlrev_b32 %s, 16, %s" % (v(S + 2 * i), v(P + i)))
            A("v_and_b32 %s, 0xffff0000, %s" % (v(S + 2 * i + 1), v(P + i)))
        if rnd == 0:
            for i in range(8):
                A("v_mul_f32 %s, s%d, %s" % (v(S + i), sSCALE, v(S + i)))
    A("v_max3_f32 %s, %s, %s, %s" % (v(vT0), v(S), v(S + 1), v(S + 2)))
    A("v_max3_f32 %s, %s, %s, %s" % (v(vT1), v(S + 3), v(S + 4), v(S + 5)))
    A("v_max3_f32 %s, %s, %s, %s" % (v(vT0), v(S + 6), v(S + 7), v(vT0)))
    A("v_max_f32 %s, %s, %s" % (v(vT0), v(vT0), v(vT1)))
    xrow([vT0], [vT1], "max")
    A("v_mul_f32 %s, s%d, %s" % (v(vT2), sLOG2E, v(vT0)))
    for i in range(8):
        A("v_fma_f32 %s, %s, s%d, -%s" % (v(S + i), v(S + i), sLOG2E, v(vT2)))
    for i in range(8):
        A("v_exp_f32 %s, %s" % (v(S + i), v(S + i)))
    nop(1)
    for i in range(4):
        A("v_cvt_pk_bf16_f32 %s, %s, %s" % (v(P + i), v(S + 2 * i), v(S + 2 * i + 1)))
    A("v_add_f32 %s, %s, %s" % (v(vT1), v(S), v(S + 1)))
    A("v_add_f32 %s, %s, %s" % (v(vT2), v(S + 2), v(S + 3)))
    D = vA
    for i in range(8):
        A("v_mfma_f32_16x16x32_bf16 %s, %s, %s, 0" % (vr(D + 4 * i, 4), vr(vVT + 4 * i, 4), vr(P, 4)))
        if i == 0:
            A("v_add_f32 %s, %s, %s" % (v(vT3), v(S + 4), v(S + 5)))
            A("v_add_f32 %s, %s, %s" % (v(vT4), v(S + 6), v(S + 7)))
        if i == 1:
            A("v_add_f32 %s, %s, %s" % (v(vT1), v(vT1), v(vT2)))
            A("v_add_f32 %s, %s, %s" % (v(vT3), v(vT3), v(vT4)))
        if i == 2:
            A("v_add_f32 %s, %s, %s" % (v(vT1), v(vT1), v(vT3)))
        if i == 3:
            xrow([vT1], [vT2], "add")
    A("s_mul_i32 s%d, s%d, %d" % (sT1, sW, AT_STRIDE))
    A("s_add_u32 s%d, s%d, %d" % (sT1, sT1, L_AT + 2048))
    A("v_lshlrev_b32 %s, 3, %s" % (v(vT2), v(vLANE)))
    A("v_add_u32 %s, s%d, %s" % (v(vT2), sT1, v(vT2)))
    A("s_mov_b64 exec, 0xf")
    A("ds_write_b64 %s, %s" % (v(vT2), vr(vT0, 2)))
    A("s_mov_b64 exec, %s" % sr(sM))
    for i in range(8):
        if i == 6: nop(4)
        A("ds_write_b128 %s, %s offset:%d" % (v(vATW), vr(D + 4 * i, 4), i * 64))
    A("s_mov_b64 exec, -1")
    A("s_lshl_b32 s%d, s%d, 3" % (sT1, sW))
    A("s_add_u32 s%d, s%d, %d" % (sT1, sT1, L_AT + 2048))
    A("v_mov_b32 %s, s%d" % (v(vT2), sT1))
    G = vS0
    set_tags(G)
    set_tags(G + 4)
    A("v_add_u32 %s, 0x%x, %s" % (v(vT0), PO_OFF, v(vPOST)))
    A("s_waitcnt lgkmcnt(0)")
    A("s_barrier")
    R = vA
    for w in range(4):
        A("ds_read_b64 %s, %s offset:%d" % (vr(R + 8 + 2 * w, 2), v(vT2), w * AT_STRIDE))
    for w in range(4):
        A("ds_read_b64 %s, %s offset:%d" % (vr(R + 2 * w, 2), v(vATR), w * AT_STRIDE))
    A("s_waitcnt lgkmcnt(4)")
    A("v_max_f32 %s, %s, %s" % (v(G + 4), v(R + 8), v(R + 10)))
    A("v_max3_f32 %s, %s, %s, %s" % (v(G + 4), v(R + 12), v(R + 14), v(G + 4)))
    for w in range(4):
        A("v_sub_f32 %s, %s, %s" % (v(R + 8 + 2 * w), v(R + 8 + 2 * w), v(G + 4)))
    for w in range(4):
        A("v_mul_f32 %s, s%d, %s" % (v(R + 8 + 2 * w), sLOG2E, v(R + 8 + 2 * w)))
    for w in range(4):
        A("v_exp_f32 %s, %s" % (v(R + 8 + 2 * w), v(R + 8 + 2 * w)))
    A("s_waitcnt lgkmcnt(0)")
    A("v_mul_f32 %s, %s, %s" % (v(G), v(R + 8), v(R)))
    A("v_mul_f32 %s, %s, %s" % (v(G + 1), v(R + 8), v(R + 1)))
    A("v_mul_f32 %s, %s, %s" % (v(G + 5), v(R + 8), v(R + 9)))
    for w in range(1, 4):
        A("v_fmac_f32 %s, %s, %s" % (v(G), v(R + 8 + 2 * w), v(R + 2 * w)))
        A("v_fmac_f32 %s, %s, %s" % (v(G + 1), v(R + 8 + 2 * w), v(R + 2 * w + 1)))
        A("v_fmac_f32 %s, %s, %s" % (v(G + 5), v(R + 8 + 2 * w), v(R + 9 + 2 * w)))
    publish(G, vT0)
    A("s_mov_b64 exec, 1")
    publish(G + 4, vMLST)
    A("s_mov_b64 exec, -1")
    stamp("p_pub")
    W1RAW = vB + 32
    lf = first_begin()
    A.c("unpack wo (wait), issue w1/w2/b1 loads")
    A("s_waitcnt vmcnt(2)")
    for k in range(16):
        A("v_lshlrev_b32 %s, 16, %s" % (v(vWO + k), v(vWO + 16 + k)))
        A("v_and_b32 %s, 0xffff0000, %s" % (v(vWO + 16 + k), v(vWO + 16 + k)))
    A("s_min_u32 s%d, s%d, 27" % (sT0, sS))
    A("s_mul_i32 s%d, s%d, 28" % (sT1, sG))
    A("s_add_u32 s%d, s%d, s%d" % (sT0, sT0, sT1))
    A("s_lshl_b32 s%d, s%d, 4" % (sT1, sT0))
    A("v_mul_u32_u24 %s, 0xe00, v0" % v(vT3))
    A("v_add_u32 %s, s%d, %s" % (v(vT3), sT1, v(vT3)))
    A("global_load_dwordx4 %s, %s, %s%s" % (vr(W1RAW, 4), v(vT3), sr(sW1), NT))
    A("v_add_u32 %s, 0x%x, %s" % (v(vT3), 256 * 3584, v(vT3)))
    A("global_load_dwordx4 %s, %s, %s%s" % (vr(W1RAW + 4, 4), v(vT3), sr(sW1), NT))
    A("v_and_b32 %s, 7, %s" % (v(vT3), v(vLANE)))
    A("v_lshlrev_b32 %s, 1, %s" % (v(vT3), v(vT3)))
    A("v_add_u32 %s, s%d, %s" % (v(vT3), sT1, v(vT3)))
    A("global_load_ushort %s, %s, %s" % (v(vB1), v(vT3), sr(sB1)))
    A("s_lshl_b32 s%d, s%d, 13" % (sT1, sT0))
    A("v_lshlrev_b32 %s, 2, v0" % v(vT3))
    A("v_add_u32 %s, s%d, %s" % (v(vT3), sT1, v(vT3)))
    A("v_add_u32 %s, 0x1000, %s" % (v(vT4), v(vT3)))
    for k in range(8):
        A("global_load_dword %s, %s, %s offset:%d%s" % (v(vW2 + 8 + k), v(vT3 if k < 4 else vT4), sr(sW2), (k % 4) * 1024, NT))
    A.lab(lf)

    A.c("================= o-proj")
    G = vS0 + 8
    T = vS0
    set_tags(G)
    A("v_mov_b32 %s, %d" % (v(vT1), L_O))
    A("v_add_u32 %s, 0x%x, %s" % (v(vT0), RS_OFF, v(vPOST)))
    A("s_barrier")
    O = vA
    for i in range(4):
        A("ds_read_b128 %s, %s offset:%d" % (vr(O + 4 * i, 4), v(vT1), 16 * i))
    stamp("b3")
    for i in range(4):
        A("s_waitcnt lgkmcnt(%d)" % (3 - i))
        for kk in range(4):
            k = 4 * i + kk
            a0, a1 = (G, G + 1) if k % 2 == 0 else (T + 4, T + 5)
            ins = "v_mul_f32" if k < 2 else "v_fmac_f32"
            A("%s %s, %s, %s" % (ins, v(a0), v(O + k), v(vWO + k)))
            A("%s %s, %s, %s" % (ins, v(a1), v(O + k), v(vWO + 16 + k)))
    A("v_add_f32 %s, %s, %s" % (v(G), v(G), v(T + 4)))
    A("v_add_f32 %s, %s, %s" % (v(G + 1), v(G + 1), v(T + 5)))
    publish(G, vT0)
    stamp("rs_pub0")

    A.c("================= MLP")
    lf = first_begin()
    A("s_waitcnt vmcnt(0)")
    A("v_lshlrev_b32 %s, 4, v0" % v(vT0))
    A("ds_write_b128 %s, %s offset:%d" % (v(vT0), vr(W1RAW, 4), L_W1))
    A("ds_write_b128 %s, %s offset:%d" % (v(vT0), vr(W1RAW + 4, 4), L_W1 + 4096))
    for k in range(8):
        A("v_lshlrev_b32 %s, 16, %s" % (v(vW2 + k), v(vW2 + 8 + k)))
        A("v_and_b32 %s, 0xffff0000, %s" % (v(vW2 + 8 + k), v(vW2 + 8 + k)))
    A("v_lshlrev_b32 %s, 16, %s" % (v(vB1), v(vB1)))
    A("s_waitcnt lgkmcnt(0)")
    A.lab(lf)
    ln = notfirst_begin()
    prefetch_W1()
    A.lab(ln)
    A("v_add_u32 %s, 0x%x, %s" % (v(vT0), RS_OFF + 0x100000, v(vPOST)))
    A("s_barrier")
    lf = first_begin()
    prefetch_W1()
    A.lab(lf)
    stamp("b4")
    gemv(vS0, 8)
    T = vS0
    A("v_add_f32_dpp %s, %s, %s row_ror:8%s" % (v(T), v(T + 1), v(T), DPPM))
    G = vS0 + 8
    set_tags(G)
    A("v_cvt_pk_bf16_f32 %s, %s, %s" % (v(T), v(T), v(T)))
    A("v_and_b32 %s, 0xffff0000, %s" % (v(T), v(T)))
    A("v_add_f32 %s, %s, %s" % (v(T), v(T), v(vB1)))
    A("v_cvt_pk_bf16_f32 %s, %s, %s" % (v(T), v(T), v(T)))
    A("v_and_b32 %s, 0xffff0000, %s" % (v(T), v(T)))
    A("v_mul_f32 %s, %s, %s" % (v(T + 1), v(T), v(T)))
    A("v_mov_b32 %s, s%d" % (v(T + 2), sC1))
    A("v_fmac_f32 %s, s%d, %s" % (v(T + 2), sC2, v(T + 1)))
    A("v_mul_f32 %s, %s, %s" % (v(T + 2), v(T + 2), v(T)))
    A("v_exp_f32 %s, %s" % (v(T + 2), v(T + 2)))
    nop(1)
    A("v_add_f32 %s, 1.0, %s" % (v(T + 2), v(T + 2)))
    A("v_rcp_f32 %s, %s" % (v(T + 2), v(T + 2)))
    nop(1)
    A("v_mul_f32 %s, %s, %s" % (v(T), v(T), v(T + 2)))
    A("v_cvt_pk_bf16_f32 %s, %s, %s" % (v(T), v(T), v(T)))
    A("v_and_b32 %s, 0xffff0000, %s" % (v(T), v(T)))
    A("s_cmp_lt_u32 s%d, 28" % sS)
    A("s_cbranch_scc1 L_hok")
    A("v_mov_b32 %s, 0" % v(T))
    A.lab("L_hok")
    nop(1)
    for k in range(8):
        A("v_readlane_b32 s%d, %s, %d" % (sO + k, v(T), k))
    A("v_mul_f32 %s, s%d, %s" % (v(G), sO, v(vW2)))
    A("v_mul_f32 %s, s%d, %s" % (v(G + 1), sO, v(vW2 + 8)))
    A("v_mul_f32 %s, s%d, %s" % (v(T + 4), sO + 1, v(vW2 + 1)))
    A("v_mul_f32 %s, s%d, %s" % (v(T + 5), sO + 1, v(vW2 + 9)))
    for k in range(2, 8, 2):
        A("v_fmac_f32 %s, s%d, %s" % (v(G), sO + k, v(vW2 + k)))
        A("v_fmac_f32 %s, s%d, %s" % (v(G + 1), sO + k, v(vW2 + 8 + k)))
        A("v_fmac_f32 %s, s%d, %s" % (v(T + 4), sO + k + 1, v(vW2 + k + 1)))
        A("v_fmac_f32 %s, s%d, %s" % (v(T + 5), sO + k + 1, v(vW2 + 9 + k)))
    A("v_add_f32 %s, %s, %s" % (v(G), v(G), v(T + 4)))
    A("v_add_f32 %s, %s, %s" % (v(G + 1), v(G + 1), v(T + 5)))
    publish(G, vT0)
    stamp("rs_pub1")
    next_layer()
    A("s_cmp_lt_u32 s%d, 2" % sL)
    A("s_cbranch_scc1 L_cloop")
    dump_stamps()
    A("s_endpgm")

    A.lab("L_comm")
    A("s_setprio 3")
    A("v_lshrrev_b32 %s, 2, %s" % (v(vT3), v(vT1)))
    A("v_lshl_add_u32 %s, %s, 3, %s" % (v(vT3), v(vT2), v(vT3)))
    A("v_and_b32 %s, 3, %s" % (v(vT4), v(vT1)))
    A("v_lshlrev_b32 %s, 5, %s" % (v(vTRA), v(vT3)))
    A("v_lshl_add_u32 %s, %s, 3, %s" % (v(vTRA), v(vT4), v(vTRA)))
    A("v_lshlrev_b32 %s, 4, %s" % (v(vXNR), v(vT2)))
    A("v_add_u32 %s, %d, %s" % (v(vXNR), L_XN, v(vXNR)))
    A("v_lshrrev_b32 %s, 1, %s" % (v(vT3), v(vLANE)))
    A("v_lshlrev_b32 %s, 13, %s" % (v(vT3), v(vT3)))
    A("v_and_b32 %s, 1, %s" % (v(vT4), v(vLANE)))
    A("v_lshl_add_u32 %s, %s, 4, %s" % (v(vT3), v(vT4), v(vT3)))
    A("s_lshl_b32 s%d, s%d, 10" % (sT0, sG))
    A("s_lshl_b32 s%d, s%d, 5" % (sT1, sS))
    A("s_add_u32 s%d, s%d, s%d" % (sT0, sT0, sT1))
    A("v_add_u32 %s, s%d, %s" % (v(vT3), sT0, v(vT3)))
    A("v_lshlrev_b32 %s, 4, %s" % (v(vXNW), v(vLANE)))
    A("v_and_b32 %s, 7, %s" % (v(vT4), v(vLANE)))
    A("v_lshlrev_b32 %s, 2, %s" % (v(vT4), v(vT4)))
    A("v_add_u32 %s, s%d, %s" % (v(vT4), sT1, v(vT4)))
    A("s_waitcnt lgkmcnt(0)")
    stamp("start", loop=False)
    A("s_load_dword s%d, %s, 0" % (sE, sr(sWS)))
    A("global_load_dwordx4 %s, %s, %s" % (vr(vX, 4), v(vXNW), sr(sX)))
    for i in range(16):
        if i:
            A("v_add_u32 %s, 0x40000, %s" % (v(vT3), v(vT3)))
        A("global_load_dwordx4 %s, %s, %s%s" % (vr(vK + 4 * i, 4), v(vT3), sr(sWQ), NT))
    A("global_load_dword %s, %s, %s" % (v(vXR1), v(vT4), sr(sX)))
    A("global_load_dword %s, %s, %s" % (v(vB21), v(vT4), sr(sB2)))
    A("s_lshl_b32 s%d, s%d, 11" % (sT0, sG))
    A("v_lshlrev_b32 %s, 5, %s" % (v(vQLD), v(vLANE)))
    A("v_add_u32 %s, s%d, %s" % (v(vQLD), sT0, v(vQLD)))
    A("v_add_u32 %s, 0x%x, %s" % (v(vAGLD), AG_OFF, v(vQLD)))
    A("s_lshl_b32 s%d, s%d, 6" % (sT1, sS))
    A("s_add_u32 s%d, s%d, s%d" % (sT0, sT0, sT1))
    A("v_and_b32 %s, 12, %s" % (v(vQST), v(vLANE)))
    A("v_lshlrev_b32 %s, 2, %s" % (v(vQST), v(vQST)))
    A("v_add_u32 %s, s%d, %s" % (v(vQST), sT0, v(vQST)))
    A("s_add_u32 s%d, s%d, 0x%x" % (sT0, sT0, AG_OFF))
    A("v_and_b32 %s, 6, %s" % (v(vAGST), v(vLANE)))
    A("v_lshlrev_b32 %s, 3, %s" % (v(vAGST), v(vAGST)))
    A("v_add_u32 %s, s%d, %s" % (v(vAGST), sT0, v(vAGST)))
    A("s_lshl_b32 s%d, s%d, 10" % (sT0, sS))
    A("s_add_u32 s%d, s%d, 0x%x" % (sT0, sT0, XB_OFF))
    A("v_lshlrev_b32 %s, 4, %s" % (v(vXLD), v(vLANE)))
    A("v_add_u32 %s, s%d, %s" % (v(vXLD), sT0, v(vXLD)))
    A("s_lshl_b32 s%d, s%d, 7" % (sT1, sG))
    A("s_add_u32 s%d, s%d, s%d" % (sT0, sT0, sT1))
    A("v_and_b32 %s, 7, %s" % (v(vXST), v(vLANE)))
    A("v_lshlrev_b32 %s, 4, %s" % (v(vXST), v(vXST)))
    A("v_add_u32 %s, s%d, %s" % (v(vXST), sT0, v(vXST)))
    A("s_lshl_b32 s%d, s%d, 5" % (sT1, sG))
    A("s_add_u32 s%d, s%d, s%d" % (sT1, sT1, sS))
    A("s_lshl_b32 s%d, s%d, 12" % (sT1, sT1))
    A("v_lshlrev_b32 %s, 4, %s" % (v(vPLD), v(vLANE)))
    A("v_add_u32 %s, s%d, %s" % (v(vPLD), sT1, v(vPLD)))
    A("s_lshl_b32 s%d, s%d, 2" % (sT1, sG))
    A("s_lshr_b32 s%d, s%d, 3" % (sT2, sS))
    A("s_add_u32 s%d, s%d, s%d" % (sT1, sT1, sT2))
    A("s_lshl_b32 s%d, s%d, 9" % (sT1, sT1))
    A("s_add_u32 s%d, s%d, 0x%x" % (sT1, sT1, ML_OFF))
    A("v_lshrrev_b32 %s, 3, %s" % (v(vT3), v(vLANE)))
    A("v_lshlrev_b32 %s, 4, %s" % (v(vMLLD), v(vT3)))
    A("v_add_u32 %s, s%d, %s" % (v(vMLLD), sT1, v(vMLLD)))
    tags_setup()
    for i in range(16):
        A("s_waitcnt vmcnt(%d)" % (17 - i))
        A("ds_write_b128 %s, %s offset:%d" % (v(vXNW), vr(vK + 4 * i, 4), L_WQ + i * 1024))
    stamp("wq_staged", loop=False)
    prefetch_WQ()
    A("s_waitcnt vmcnt(0)")
    A("v_lshlrev_b32 %s, 16, %s" % (v(vXR0), v(vXR1)))
    A("v_and_b32 %s, 0xffff0000, %s" % (v(vXR1), v(vXR1)))
    A("v_lshlrev_b32 %s, 16, %s" % (v(vB20), v(vB21)))
    A("v_and_b32 %s, 0xffff0000, %s" % (v(vB21), v(vB21)))
    A.lab("L_mloop")
    layernorm([vX, vX + 1, vX + 2, vX + 3], L_XN)
    gemv(vS0, 16)
    T = vS0 + 4
    for e in range(4):
        A("v_mov_b32_dpp %s, %s quad_perm:[%d,%d,%d,%d]%s" % (v(T + 4 + e), v(vS0), e, e, e, e, DPPM))
    A("v_mov_b32 %s, s%d" % (v(T + 2), sTA))
    A("v_mov_b32 %s, s%d" % (v(T + 3), sTBX))
    A("v_cvt_pk_bf16_f32 %s, %s, %s" % (v(T), v(T + 4), v(T + 5)))
    A("v_cvt_pk_bf16_f32 %s, %s, %s" % (v(T + 1), v(T + 6), v(T + 7)))
    A("s_mov_b64 exec, 0x1111")
    publish(T, vQST)
    A("s_mov_b64 exec, -1")
    stamp("q_pub")
    Qg = vA
    poll([(Qg, vQLD, 0), (Qg + 4, vQLD, 16)], xcc=True)
    lf = first_begin()
    A("v_xor_b32 %s, s%d, %s" % (v(vT4), sTBX, v(Qg + 3)))
    A("v_xor_b32 %s, s%d, %s" % (v(vT3), sTBX, v(Qg + 7)))
    A("v_or_b32 %s, %s, %s" % (v(vT4), v(vT4), v(vT3)))
    A("v_cmp_ne_u32 vcc, 0, %s" % v(vT4))
    A("s_cmp_eq_u64 vcc, 0")
    A("s_cselect_b32 s%d, 1, 0" % sMODE)
    A("v_mov_b32 %s, s%d" % (v(vT3), sMODE))
    A("v_mov_b32 %s, %d" % (v(vT4), L_MODE))
    A("ds_write_b32 %s, %s" % (v(vT4), v(vT3)))
    A.lab(lf)
    A("v_mov_b32 %s, %s" % (v(Qg + 2), v(Qg + 4)))
    A("v_mov_b32 %s, %s" % (v(Qg + 3), v(Qg + 5)))
    A("ds_write_b128 %s, %s offset:%d" % (v(vXNW), vr(Qg, 4), L_Q))
    A("v_add_u32 %s, 0x%x, %s" % (v(vT0), PO_OFF, v(vPLD)))
    A("s_waitcnt lgkmcnt(0)")
    A("s_barrier")
    stamp("q_got")
    A("s_barrier")
    O = vB
    ML = O + 16
    poll([(ML + 4 * i, vMLLD, 128 * i) for i in range(4)] + [(O + 4 * i, vT0, 1024 * i) for i in range(4)])
    stamp("p_got")
    A("v_max_f32 %s, %s, %s" % (v(vT0), v(ML), v(ML + 4)))
    A("v_max3_f32 %s, %s, %s, %s" % (v(vT0), v(ML + 8), v(ML + 12), v(vT0)))
    dpp_reduce([vT0], ["row_ror:8"], "max")
    xrow([vT0], [vT1], "max")
    for i in range(4):
        A("v_sub_f32 %s, %s, %s" % (v(ML + 4 * i), v(ML + 4 * i), v(vT0)))
    for i in range(4):
        A("v_mul_f32 %s, s%d, %s" % (v(ML + 4 * i), sLOG2E, v(ML + 4 * i)))
    for i in range(4):
        A("v_exp_f32 %s, %s" % (v(ML + 4 * i), v(ML + 4 * i)))
    T = vS0
    A("v_lshlrev_b32 %s, 3, %s" % (v(vT2), v(vLANE)))
    A("v_mul_f32 %s, %s, %s" % (v(T), v(ML), v(O)))
    A("v_mul_f32 %s, %s, %s" % (v(T + 1), v(ML), v(O + 1)))
    A("v_mul_f32 %s, %s, %s" % (v(T + 2), v(ML), v(ML + 1)))
    for i in range(1, 4):
        A("v_fmac_f32 %s, %s, %s" % (v(T), v(ML + 4 * i), v(O + 4 * i)))
        A("v_fmac_f32 %s, %s, %s" % (v(T + 1), v(ML + 4 * i), v(O + 4 * i + 1)))
        A("v_fmac_f32 %s, %s, %s" % (v(T + 2), v(ML + 4 * i), v(ML + 4 * i + 1)))
    dpp_reduce([T, T + 1, T + 2], ["row_ror:8"], "add")
    xrow([T, T + 1, T + 2], [T + 4, T + 5, T + 6], "add")
    A("v_rcp_f32 %s, %s" % (v(T + 2), v(T + 2)))
    nop(1)
    A("v_mul_f32 %s, %s, %s" % (v(T), v(T), v(T + 2)))
    A("v_mul_f32 %s, %s, %s" % (v(T + 1), v(T + 1), v(T + 2)))
    A("v_cvt_pk_bf16_f32 %s, %s, %s" % (v(T + 2), v(T), v(T + 1)))
    A("v_lshlrev_b32 %s, 16, %s" % (v(T), v(T + 2)))
    A("v_and_b32 %s, 0xffff0000, %s" % (v(T + 1), v(T + 2)))
    A("s_mov_b64 exec, 0xff")
    A("ds_write_b64 %s, %s offset:%d" % (v(vT2), vr(T, 2), L_O))
    A("s_mov_b64 exec, -1")
    A("s_waitcnt lgkmcnt(0)")
    A("s_barrier")
    reduce_hops(0, mlp=False)
    stamp("ag1_pub")
    X = poll_AG(0, vA + 8)
    stamp("ag1_got")
    layernorm(X, L_XN + 1024)
    A("s_waitcnt lgkmcnt(0)")
    A("s_barrier")
    reduce_hops(1, mlp=True)
    prefetch_WQ()
    X = poll_AG(1, vA + 8)
    for i in range(4):
        A("v_mov_b32 %s, %s" % (v(vX + i), v(X[i])))
    stamp("ag2_got")
    next_layer()
    A("s_branch L_mloop")
    A.lab("L_final")
    T = vS0
    stamp("ag2_got")
    l = A.new("Lnoout")
    A("s_cmp_lg_u32 s%d, 0" % sG)
    A("s_cbranch_scc1 %s" % l)
    A("s_lshl_b32 s%d, s%d, 5" % (sT0, sS))
    A("v_lshlrev_b32 %s, 2, %s" % (v(vT0), v(vLANE)))
    A("v_add_u32 %s, s%d, %s" % (v(vT0), sT0, v(vT0)))
    A("s_mov_b64 exec, 0xff")
    A("global_store_dword %s, %s, %s" % (v(vT0), v(T), sr(sOUT)))
    A("s_mov_b64 exec, -1")
    A("s_cmp_lg_u32 s%d, 0" % sS)
    A("s_cbranch_scc1 %s" % l)
    A("s_add_u32 s%d, s%d, 1" % (sT0, sE))
    A("v_mov_b32 %s, s%d" % (v(vT1), sT0))
    A("v_mov_b32 %s, 0" % v(vT0))
    A("s_mov_b64 exec, 1")
    A("global_store_dword %s, %s, %s" % (v(vT0), v(vT1), sr(sWS)))
    A("s_mov_b64 exec, -1")
    A.lab(l)
    dump_stamps()
    A.lab("L_end")
    A("s_endpgm")

build()
out = HEADER
out += "; Override launch geometry by editing the next line (default: block=256,\n"
out += "; @launch grid=(256,1,1) block=(320,1,1) lds=%d\n" % LDS_SIZE
out += '.amdgcn_target "amdgcn-amd-amdhsa--gfx950"\n.text\n.globl %s_kernel\n.p2align 8\n.type %s_kernel,@function\n%s_kernel:\n' % (NAME, NAME, NAME)
out += "\n".join(A.L) + "\n"
out += """.section .rodata,"a"
.p2align 6
.amdhsa_kernel %s_kernel
  .amdhsa_next_free_vgpr %d
  .amdhsa_next_free_sgpr 102
  .amdhsa_accum_offset %d
  .amdhsa_group_segment_fixed_size 0
  .amdhsa_kernarg_size 104
  .amdhsa_user_sgpr_count 2
  .amdhsa_user_sgpr_kernarg_segment_ptr 1
  .amdhsa_system_sgpr_workgroup_id_x 1
.end_amdhsa_kernel
""" % (NAME, NVGPR, NVGPR)
dst = sys.argv[1] if len(sys.argv) > 1 else "cdna_kernels/%s.s" % NAME
open(dst, "w").write(out)
print("wrote", dst, len(A.L), "lines")
if STAMPS:
    names = PRO + ["-"] * (4 - len(PRO))
    for n in LOO: names += [n + "_0", n + "_1"]
    open(dst + ".stamps", "w").write(",".join(names))
```

```python
import sys, struct, os

NAME = "interleave_layers__sliding_block_cached__dense_activation_gelu__decode"
HEADER = open("cdna_kernels/%s.s.ref" % NAME).read().split("; Override launch geometry")[0]
def f2u(x): return struct.unpack("<I", struct.pack("<f", x))[0]

class Asm:
    def __init__(s): s.L = []; s.n = 0
    def __call__(s, t): s.L.append("    " + t)
    def lab(s, l): s.L.append(l + ":")
    def new(s, p="L"): s.n += 1; return "%s_%d" % (p, s.n)
    def c(s, t): s.L.append("    ; " + t)
A = Asm()
def v(i): return "v%d" % i
def vr(i, n): return "v[%d:%d]" % (i, i + n - 1)
def sr(i, n=2): return "s[%d:%d]" % (i, i + n - 1)

NT = os.environ.get("NTPOL", " nt")
STAMPS = int(os.environ.get("STAMPS", "0"))
SEL = os.environ.get("STSEL", "").split(",")
STW = int(os.environ.get("STW", "0"))

sG, sS, sW = 3, 4, 5
sTA, sTB, sE = 6, 7, 8
sT0, sT1, sT2 = 9, 10, 11
sKB, sVB = 12, 14
sX, sK, sV, sWQ, sWO, sW1, sB1 = 16, 18, 20, 22, 24, 28, 30
sW2, sB2, sOUT, sDBG, sWS = 32, 34, 36, 38, 40
sF = 42
sMODE, sXCC, sTBX, sIT = 44, 45, 46, 48
sM = 50
sLOG2E, sSCALE, sINV512, sPLO, sPHI, sC1, sC2, sEPS = 54, 55, 56, 57, 58, 59, 60, 61
sL = 63
sO = 64

F_OFF = 0x100000
QB_OFF = 0x000000
ML_OFF = 0x004000
AG_OFF = 0x008000
XB_OFF = 0x010000
PO_OFF = 0x100000
RS_OFF = 0x200000
LAYER_STRIDE = 0x400000

L_WQ = 0
L_W1 = 16384
L_XN = 24576
L_Q = L_XN + 2048
L_O = L_Q + 1024
L_MODE = L_O + 64
L_AT = L_MODE + 64
AT_STRIDE = 2080
LDS_SIZE = L_AT + 4 * AT_STRIDE

vLANE = 1
vQLD, vPOST, vPLD, vMLLD, vXLD, vAGLD, vTRA = 2, 3, 4, 5, 7, 8, 9
vXR0, vXR1 = 10, 11
vB1, vB20, vB21 = 12, 13, 14
vXNW, vXNR = 15, 16
vATW, vATR = 17, 18
vTR1 = 19
vT0, vT1, vT2, vT3, vT4, vT5 = 20, 21, 22, 23, 24, 25
vQST, vXST, vAGST = 26, 27, 6
vQRD = 2
vMLST = 4
vX = 28
vK = 32
vVT = 64
vWO = 96
vW2 = 128
vB = 144
vA = 208
vS0 = 240
NVGPR = 256
LIMIT = 400000

PRO = []; LOO = []
def stamp(name, loop=True):
    if not STAMPS: return
    if SEL != [""] and name not in SEL and name != "start": return
    A("s_memrealtime s[82:83]")
    A("s_waitcnt lgkmcnt(0)")
    if not loop:
        if name not in PRO: PRO.append(name)
        A("s_mov_b32 s%d, s82" % (84 + PRO.index(name)))
    else:
        if name not in LOO: LOO.append(name)
        i = 4 + 2 * LOO.index(name)
        assert i + 1 < 18
        A("s_cmp_eq_u32 s%d, 0" % sL)
        A("s_cselect_b32 s%d, s82, s%d" % (84 + i, 84 + i))
        A("s_cselect_b32 s%d, s%d, s82" % (84 + i + 1, 84 + i + 1))
def dump_stamps():
    if not STAMPS: return
    l = A.new("Lst")
    A("s_cmp_lg_u32 s%d, %d" % (sW, STW))
    A("s_cbranch_scc1 %s" % l)
    A("s_lshl_b32 s%d, s2, 7" % sT0)
    A("s_add_u32 s%d, s%d, 0x2000000" % (sT0, sT0))
    A("v_mov_b32 %s, s%d" % (v(vT0), sT0))
    A("s_mov_b64 exec, 1")
    for i in range(18):
        A("v_mov_b32 %s, s%d" % (v(vT1), 84 + i))
        A("global_store_dword %s, %s, %s offset:%d" % (v(vT0), v(vT1), sr(sWS), 4 * i))
        A("s_nop 1")
    A("s_mov_b64 exec, -1")
    A.lab(l)

def nop(n): A("s_nop %d" % (n - 1))
DPPM = " row_mask:0xf bank_mask:0xf"

def dpp_reduce(regs, ctls, op):
    ins = "v_add_f32" if op == "add" else "v_max_f32"
    for ctl in ctls:
        nop(2 if len(regs) == 1 else 1)
        for r in regs:
            A("%s_dpp %s, %s, %s %s%s" % (ins, v(r), v(r), v(r), ctl, DPPM))

def xrow(regs, tmps, op):
    ins = "v_add_f32" if op == "add" else "v_max_f32"
    for sw in ["v_permlane16_swap_b32", "v_permlane32_swap_b32"]:
        for r, t in zip(regs, tmps):
            A("v_mov_b32 %s, %s" % (v(t), v(r)))
        nop(2 if len(regs) == 1 else 1)
        for r, t in zip(regs, tmps):
            A("%s %s, %s" % (sw, v(r), v(t)))
        nop(2 if len(regs) == 1 else 1)
        for r, t in zip(regs, tmps):
            A("%s %s, %s, %s" % (ins, v(r), v(r), v(t)))

def poll(loads, xcc=False):
    acc = vT5
    lp = A.new("Lpoll")
    A("s_mov_b32 s%d, 0" % sIT)
    A.lab(lp)
    for (d, a, off) in loads:
        A("global_load_dwordx4 %s, %s, %s offset:%d sc1" % (vr(d, 4), v(a), sr(sF), off))
    A("s_add_u32 s%d, s%d, 1" % (sIT, sIT))
    A("s_cmp_gt_u32 s%d, %d" % (sIT, LIMIT))
    A("s_cbranch_scc1 L_end")
    n = len(loads)
    for i, (d, a, off) in enumerate(loads):
        A("s_waitcnt vmcnt(%d)" % (n - 1 - i))
        A("v_xor_b32 %s, s%d, %s" % (v(vT3), sTA, v(d + 2)))
        A("v_xor_b32 %s, s%d, %s" % (v(vT4), sTB, v(d + 3)))
        if xcc:
            A("v_lshrrev_b32 %s, 3, %s" % (v(vT4), v(vT4)))
        if i == 0:
            A("v_or_b32 %s, %s, %s" % (v(acc), v(vT3), v(vT4)))
        else:
            A("v_or3_b32 %s, %s, %s, %s" % (v(acc), v(vT3), v(vT4), v(acc)))
    A("v_cmp_ne_u32 vcc, 0, %s" % v(acc))
    A("s_cbranch_vccnz %s" % lp)

def publish(dreg, areg, off=0, fast=True):
    o = " offset:%d" % off if off else ""
    if fast:
        l1 = A.new("Lpf"); l2 = A.new("Lpe")
        A("s_cmp_eq_u32 s%d, 1" % sMODE)
        A("s_cbranch_scc1 %s" % l1)
        A("global_store_dwordx4 %s, %s, %s%s sc1" % (v(areg), vr(dreg, 4), sr(sF), o))
        A("s_branch %s" % l2)
        A.lab(l1)
        A("global_store_dwordx4 %s, %s, %s%s" % (v(areg), vr(dreg, 4), sr(sF), o))
        A.lab(l2)
    else:
        A("global_store_dwordx4 %s, %s, %s%s sc1" % (v(areg), vr(dreg, 4), sr(sF), o))

def set_tags(d):
    A("v_mov_b32 %s, s%d" % (v(d + 2), sTA))
    A("v_mov_b32 %s, s%d" % (v(d + 3), sTB))

def layernorm(X, ldsoff):
    f = [vS0 + i for i in range(8)]
    d = [vS0 + 8 + i for i in range(8)]
    for i in range(4):
        A("v_lshlrev_b32 %s, 16, %s" % (v(f[2 * i]), v(X[i])))
        A("v_and_b32 %s, 0xffff0000, %s" % (v(f[2 * i + 1]), v(X[i])))
    A("v_readfirstlane_b32 s%d, %s" % (sT2, v(f[0])))
    nop(2)
    for i in range(8):
        A("v_subrev_f32 %s, s%d, %s" % (v(d[i]), sT2, v(f[i])))
    A("v_add_f32 %s, %s, %s" % (v(vT0), v(d[0]), v(d[1])))
    A("v_mul_f32 %s, %s, %s" % (v(vT1), v(d[0]), v(d[0])))
    A("v_add_f32 %s, %s, %s" % (v(vT2), v(d[2]), v(d[3])))
    A("v_mul_f32 %s, %s, %s" % (v(vT3), v(d[1]), v(d[1])))
    for i in (2, 4, 6):
        A("v_fmac_f32 %s, %s, %s" % (v(vT1), v(d[i]), v(d[i])))
        A("v_fmac_f32 %s, %s, %s" % (v(vT3), v(d[i + 1]), v(d[i + 1])))
    A("v_add_f32 %s, %s, %s" % (v(vT0), v(vT0), v(d[4])))
    A("v_add_f32 %s, %s, %s" % (v(vT2), v(vT2), v(d[5])))
    A("v_add_f32 %s, %s, %s" % (v(vT0), v(vT0), v(d[6])))
    A("v_add_f32 %s, %s, %s" % (v(vT2), v(vT2), v(d[7])))
    A("v_add_f32 %s, %s, %s" % (v(vT1), v(vT1), v(vT3)))
    A("v_add_f32 %s, %s, %s" % (v(vT0), v(vT0), v(vT2)))
    dpp_reduce([vT1, vT0], ["quad_perm:[1,0,3,2]", "quad_perm:[2,3,0,1]", "row_half_mirror", "row_mirror"], "add")
    xrow([vT1, vT0], [vT3, vT2], "add")
    A("v_mul_f32 %s, s%d, %s" % (v(vT0), sINV512, v(vT0)))
    A("v_mul_f32 %s, s%d, %s" % (v(vT1), sINV512, v(vT1)))
    A("v_fma_f32 %s, -%s, %s, %s" % (v(vT1), v(vT0), v(vT0), v(vT1)))
    A("v_add_f32 %s, s%d, %s" % (v(vT0), sT2, v(vT0)))
    A("v_max_f32 %s, 0, %s" % (v(vT1), v(vT1)))
    A("v_cvt_pk_bf16_f32 %s, %s, %s" % (v(vT2), v(vT0), v(vT1)))
    A("v_lshlrev_b32 %s, 16, %s" % (v(vT0), v(vT2)))
    A("v_and_b32 %s, 0xffff0000, %s" % (v(vT1), v(vT2)))
    A("v_add_f32 %s, s%d, %s" % (v(vT1), sEPS, v(vT1)))
    for i in range(4):
        A("v_sub_f32 %s, %s, %s" % (v(f[i]), v(f[i]), v(vT0)))
    A("v_cvt_pk_bf16_f32 %s, %s, %s" % (v(vT1), v(vT1), v(vT1)))
    for i in range(4, 8):
        A("v_sub_f32 %s, %s, %s" % (v(f[i]), v(f[i]), v(vT0)))
    A("v_and_b32 %s, 0xffff0000, %s" % (v(vT1), v(vT1)))
    A("v_sqrt_f32 %s, %s" % (v(vT1), v(vT1)))
    for i in range(4):
        A("v_cvt_pk_bf16_f32 %s, %s, %s" % (v(d[i]), v(f[2 * i]), v(f[2 * i + 1])))
    A("v_cvt_pk_bf16_f32 %s, %s, %s" % (v(vT1), v(vT1), v(vT1)))
    A("v_and_b32 %s, 0xffff0000, %s" % (v(vT1), v(vT1)))
    A("v_rcp_f32 %s, %s" % (v(vT1), v(vT1)))
    for i in range(4):
        A("v_lshlrev_b32 %s, 16, %s" % (v(f[2 * i]), v(d[i])))
        A("v_and_b32 %s, 0xffff0000, %s" % (v(f[2 * i + 1]), v(d[i])))
    for i in range(8):
        A("v_mul_f32 %s, %s, %s" % (v(f[i]), v(f[i]), v(vT1)))
    for i in range(4):
        A("v_cvt_pk_bf16_f32 %s, %s, %s" % (v(d[4 + i]), v(f[2 * i]), v(f[2 * i + 1])))
    A("ds_write_b128 %s, %s offset:%d" % (v(vXNW), vr(d[4], 4), ldsoff))

def prefetch_WQ():
    for c in range(16):
        off = L_WQ + c * 1024
        A("ds_read_b64_tr_b16 %s, %s offset:%d" % (vr(vB + 4 * c, 2), v(vTRA), off))
        A("ds_read_b64_tr_b16 %s, %s offset:%d" % (vr(vB + 4 * c + 2, 2), v(vTRA), off + 128))

def prefetch_W1():
    for c in range(8):
        off = L_W1 + c * 512
        A("ds_read_b64_tr_b16 %s, %s offset:%d" % (vr(vB + 4 * c, 2), v(vTR1), off))
        A("ds_read_b64_tr_b16 %s, %s offset:%d" % (vr(vB + 4 * c + 2, 2), v(vTR1), off + 64))

def gemv(acc, nch):
    n0 = min(nch, 8)
    for c in range(n0):
        A("ds_read_b128 %s, %s offset:%d" % (vr(vA + 4 * c, 4), v(vXNR), c * 64))
    for c in range(nch):
        issued = n0 + min(c, nch - n0)
        A("s_waitcnt lgkmcnt(%d)" % (issued - c - 1))
        A("v_mfma_f32_16x16x32_bf16 %s, %s, %s, %s" % (vr(acc, 4), vr(vA + 4 * (c % 8), 4), vr(vB + 4 * c, 4), "0" if c == 0 else vr(acc, 4)))
        if c + 8 < nch:
            A("ds_read_b128 %s, %s offset:%d" % (vr(vA + 4 * c, 4), v(vXNR), (c + 8) * 64))
    nop(8); nop(2)

def first_begin():
    l = A.new("Lnf")
    A("s_cmp_lg_u32 s%d, 0" % sL)
    A("s_cbranch_scc1 %s" % l)
    return l
def notfirst_begin():
    l = A.new("Lnn")
    A("s_cmp_eq_u32 s%d, 0" % sL)
    A("s_cbranch_scc1 %s" % l)
    return l

def poll_AG(idx, X):
    if idx:
        A("v_add_u32 %s, 0x%x, %s" % (v(vT0), idx * 0x4000, v(vAGLD)))
    a = vT0 if idx else vAGLD
    poll([(X, a, 0), (X + 4, a, 16)])
    return [X, X + 1, X + 4, X + 5]

def reduce_hops(idx, mlp):
    T = vS0
    A.c("---- RS consumer %d" % idx)
    A("v_add_u32 %s, 0x%x, %s" % (v(vT0), RS_OFF + idx * 0x100000, v(vPLD)))
    set_tags(T)
    poll([(vA + 4 * i, vT0, 1024 * i) for i in range(4)])
    stamp("rs_got%d" % idx)
    for d in range(2):
        A("v_add_f32 %s, %s, %s" % (v(T + d), v(vA + d), v(vA + 4 + d)))
        A("v_add_f32 %s, %s, %s" % (v(T + 4 + d), v(vA + 8 + d), v(vA + 12 + d)))
    for d in range(2):
        A("v_add_f32 %s, %s, %s" % (v(T + d), v(T + d), v(T + 4 + d)))
    dpp_reduce([T, T + 1], ["row_ror:8"], "add")
    xrow([T, T + 1], [T + 4, T + 5], "add")
    if idx:
        A("v_add_u32 %s, 0x%x, %s" % (v(vT0), idx * 0x8000, v(vXST)))
    A("s_mov_b64 exec, 0xff")
    publish(T, vT0 if idx else vXST, fast=False)
    A("s_mov_b64 exec, -1")
    A.c("---- X consumer %d" % idx)
    if idx:
        A("v_add_u32 %s, 0x%x, %s" % (v(vT0), idx * 0x8000, v(vXLD)))
    poll([(vA, vT0 if idx else vXLD, 0)])
    stamp("x_got%d" % idx)
    dpp_reduce([vA, vA + 1], ["row_ror:8"], "add")
    xrow([vA, vA + 1], [T + 4, T + 5], "add")
    A("v_cvt_pk_bf16_f32 %s, %s, %s" % (v(vT1), v(vA), v(vA + 1)))
    A("v_lshlrev_b32 %s, 16, %s" % (v(vA), v(vT1)))
    A("v_and_b32 %s, 0xffff0000, %s" % (v(vA + 1), v(vT1)))
    if mlp:
        A("v_add_f32 %s, %s, %s" % (v(vA), v(vA), v(vB20)))
        A("v_add_f32 %s, %s, %s" % (v(vA + 1), v(vA + 1), v(vB21)))
        A("v_cvt_pk_bf16_f32 %s, %s, %s" % (v(vT1), v(vA), v(vA + 1)))
        A("v_lshlrev_b32 %s, 16, %s" % (v(vA), v(vT1)))
        A("v_and_b32 %s, 0xffff0000, %s" % (v(vA + 1), v(vT1)))
    A("v_add_f32 %s, %s, %s" % (v(vA), v(vA), v(vXR0)))
    A("v_add_f32 %s, %s, %s" % (v(vA + 1), v(vA + 1), v(vXR1)))
    A("v_cvt_pk_bf16_f32 %s, %s, %s" % (v(T), v(vA), v(vA + 1)))
    A("v_lshlrev_b32 %s, 16, %s" % (v(vXR0), v(T)))
    A("v_and_b32 %s, 0xffff0000, %s" % (v(vXR1), v(T)))
    if mlp:
        A("s_cmp_eq_u32 s%d, 1" % sL)
        A("s_cbranch_scc1 L_final")
    A("v_mov_b32_dpp %s, %s quad_perm:[1,1,3,3]%s" % (v(T + 1), v(T), DPPM))
    if idx:
        A("v_add_u32 %s, 0x%x, %s" % (v(vT0), idx * 0x4000, v(vAGST)))
    A("s_mov_b64 exec, 0x55")
    publish(T, vT0 if idx else vAGST)
    A("s_mov_b64 exec, -1")

def tags_setup():
    A("s_add_u32 s%d, s%d, 0x%x" % (sF, sWS, F_OFF))
    A("s_addc_u32 s%d, s%d, 0" % (sF + 1, sWS + 1))
    A("s_mov_b32 s%d, 0" % sMODE)
    A("s_mov_b32 s%d, 0" % sL)
    A("s_getreg_b32 s%d, hwreg(HW_REG_XCC_ID)" % sXCC)
    A("s_and_b32 s%d, s%d, 7" % (sXCC, sXCC))
    A("s_waitcnt lgkmcnt(0)")
    A("s_xor_b32 s%d, s%d, 0x9e3779b9" % (sTA, sE))
    A("s_mul_i32 s%d, s%d, 0x85ebca6b" % (sTB, sE))
    A("s_add_u32 s%d, s%d, 0xc2b2ae35" % (sTB, sTB))
    A("s_xor_b32 s%d, s%d, s%d" % (sTBX, sTB, sXCC))

def next_layer():
    A("s_add_u32 s%d, s%d, 0x%x" % (sF, sF, LAYER_STRIDE))
    A("s_addc_u32 s%d, s%d, 0" % (sF + 1, sF + 1))
    A("s_add_u32 s%d, s%d, 1" % (sL, sL))

def build():
    A("s_cmp_ge_u32 s2, 256")
    A("s_cbranch_scc1 L_end")
    A("s_load_dwordx16 s[16:31], s[0:1], 0")
    A("s_load_dwordx8 s[32:39], s[0:1], 64")
    A("s_load_dwordx2 s[40:41], s[0:1], 96")
    A("s_and_b32 s%d, s2, 7" % sG)
    A("s_lshr_b32 s%d, s2, 3" % sS)
    A("v_and_b32 %s, 63, v0" % v(vLANE))
    A("v_lshrrev_b32 %s, 6, v0" % v(vT0))
    nop(1)
    A("v_readfirstlane_b32 s%d, %s" % (sW, v(vT0)))
    for (r, val) in [(sLOG2E, f2u(1.4426950408889634)), (sSCALE, f2u(0.08838834764831845)), (sINV512, f2u(1.0 / 512)),
                     (sPLO, 0x05040100), (sPHI, 0x07060302),
                     (sC1, f2u(-2 * 0.7978845608028654 * 1.4426950408889634)),
                     (sC2, f2u(-2 * 0.7978845608028654 * 0.044715 * 1.4426950408889634)), (sEPS, f2u(1e-5))]:
        A("s_mov_b32 s%d, 0x%08x" % (r, val))
    A("v_and_b32 %s, 15, %s" % (v(vT1), v(vLANE)))
    A("v_lshrrev_b32 %s, 4, %s" % (v(vT2), v(vLANE)))
    A("s_cmp_eq_u32 s%d, 4" % sW)
    A("s_cbranch_scc1 L_comm")

    A.c("=========== compute waves prologue")
    A("s_lshl_b32 s%d, s%d, 24" % (sT0, sG))
    A("s_lshl_b32 s%d, s%d, 15" % (sT1, sS))
    A("s_add_u32 s%d, s%d, s%d" % (sT0, sT0, sT1))
    A("s_lshl_b32 s%d, s%d, 13" % (sT1, sW))
    A("s_add_u32 s%d, s%d, s%d" % (sT0, sT0, sT1))
    A("s_add_u32 s%d, s%d, %d" % (sT0, sT0, 61440 * 256))
    A("v_lshlrev_b32 %s, 8, %s" % (v(vT3), v(vT1)))
    A("v_lshl_add_u32 %s, %s, 4, %s" % (v(vT3), v(vT2), v(vT3)))
    A("v_add_u32 %s, 0x1000, %s" % (v(vT4), v(vT3)))
    A("s_waitcnt lgkmcnt(0)")
    stamp("start", loop=False)
    A("s_load_dword s%d, %s, 0" % (sE, sr(sWS)))
    A("s_add_u32 s%d, s%d, s%d" % (sKB, sK, sT0))
    A("s_addc_u32 s%d, s%d, 0" % (sKB + 1, sK + 1))
    A("s_add_u32 s%d, s%d, s%d" % (sVB, sV, sT0))
    A("s_addc_u32 s%d, s%d, 0" % (sVB + 1, sV + 1))
    for T in range(2):
        for c in range(4):
            A("global_load_dwordx4 %s, %s, %s offset:%d%s" % (vr(vK + (T * 4 + c) * 4, 4), v(vT3 if T == 0 else vT4), sr(sKB), c * 64, NT))
    A("v_lshlrev_b32 %s, 10, %s" % (v(vT3), v(vT2)))
    A("v_lshl_add_u32 %s, %s, 4, %s" % (v(vT3), v(vT1), v(vT3)))
    A("v_add_u32 %s, 0x1000, %s" % (v(vT4), v(vT3)))
    VRAW = vWO
    for j in range(8):
        A("global_load_dwordx4 %s, %s, %s offset:%d%s" % (vr(VRAW + 4 * j, 4), v(vT3 if j < 4 else vT4), sr(sVB), (j % 4) * 256, NT))
    A("v_and_b32 %s, 3, %s" % (v(vT3), v(vT1)))
    A("v_lshlrev_b32 %s, 8, %s" % (v(vQRD), v(vT3)))
    A("v_lshl_add_u32 %s, %s, 4, %s" % (v(vQRD), v(vT2), v(vQRD)))
    A("v_add_u32 %s, %d, %s" % (v(vQRD), L_Q, v(vQRD)))
    A("v_lshrrev_b32 %s, 2, %s" % (v(vT3), v(vT1)))
    A("v_lshl_add_u32 %s, %s, 3, %s" % (v(vT3), v(vT2), v(vT3)))
    A("v_lshlrev_b32 %s, 4, %s" % (v(vTR1), v(vT3)))
    A("v_and_b32 %s, 1, %s" % (v(vT4), v(vT1)))
    A("v_lshl_add_u32 %s, %s, 3, %s" % (v(vTR1), v(vT4), v(vTR1)))
    A("v_and_b32 %s, 2, %s" % (v(vT4), v(vT1)))
    A("v_lshl_add_u32 %s, %s, 11, %s" % (v(vTR1), v(vT4), v(vTR1)))
    A("v_and_b32 %s, 1, %s" % (v(vT4), v(vT1)))
    A("v_lshlrev_b32 %s, 4, %s" % (v(vXNR), v(vT2)))
    A("v_lshl_add_u32 %s, %s, 9, %s" % (v(vXNR), v(vT4), v(vXNR)))
    A("v_add_u32 %s, %d, %s" % (v(vXNR), L_XN + 1024, v(vXNR)))
    A("v_lshrrev_b32 %s, 3, v0" % v(vT3))
    A("s_lshl_b32 s%d, s%d, 5" % (sT1, sG))
    A("v_add_u32 %s, s%d, %s" % (v(vT3), sT1, v(vT3)))
    A("v_lshlrev_b32 %s, 5, %s" % (v(vT3), v(vT3)))
    A("v_add_u32 %s, s%d, %s" % (v(vT3), sS, v(vT3)))
    A("v_lshlrev_b32 %s, 7, %s" % (v(vT3), v(vT3)))
    A("v_and_b32 %s, 7, v0" % v(vT4))
    A("v_lshl_add_u32 %s, %s, 4, %s" % (v(vPOST), v(vT4), v(vT3)))
    A("s_lshl_b32 s%d, s%d, 2" % (sT0, sG))
    A("s_add_u32 s%d, s%d, s%d" % (sT0, sT0, sW))
    A("s_lshl_b32 s%d, s%d, 5" % (sT0, sT0))
    A("s_add_u32 s%d, s%d, s%d" % (sT0, sT0, sS))
    A("s_lshl_b32 s%d, s%d, 4" % (sT0, sT0))
    A("s_add_u32 s%d, s%d, 0x%x" % (sT0, sT0, ML_OFF))
    A("v_mov_b32 %s, s%d" % (v(vMLST), sT0))
    A("s_mul_i32 s%d, s%d, %d" % (sT1, sW, AT_STRIDE))
    A("s_add_u32 s%d, s%d, %d" % (sT1, sT1, L_AT))
    A("v_lshlrev_b32 %s, 9, %s" % (v(vATW), v(vT1)))
    A("v_lshl_add_u32 %s, %s, 4, %s" % (v(vATW), v(vT2), v(vATW)))
    A("v_add_u32 %s, s%d, %s" % (v(vATW), sT1, v(vATW)))
    A("s_lshl_b32 s%d, s%d, 9" % (sT1, sW))
    A("s_add_u32 s%d, s%d, %d" % (sT1, sT1, L_AT))
    A("v_lshlrev_b32 %s, 3, %s" % (v(vATR), v(vLANE)))
    A("v_add_u32 %s, s%d, %s" % (v(vATR), sT1, v(vATR)))
    A("s_mov_b32 s%d, 0x000f000f" % sM)
    A("s_mov_b32 s%d, 0x000f000f" % (sM + 1))
    tags_setup()
    A("s_waitcnt vmcnt(0)")
    stamp("kv_landed", loop=False)
    for i in range(8):
        q = i // 2
        sel = sPLO if i % 2 == 0 else sPHI
        for p in range(4):
            A("v_perm_b32 %s, %s, %s, s%d" % (v(vVT + 4 * i + p), v(VRAW + 4 * (2 * p + 1) + q), v(VRAW + 4 * (2 * p) + q), sel))
    A("s_lshl_b32 s%d, s%d, 2" % (sT0, sG))
    A("s_lshr_b32 s%d, s%d, 3" % (sT1, sS))
    A("s_add_u32 s%d, s%d, s%d" % (sT0, sT0, sT1))
    A("s_lshl_b32 s%d, s%d, 7" % (sT0, sT0))
    A("s_and_b32 s%d, s%d, 7" % (sT1, sS))
    A("s_add_u32 s%d, s%d, s%d" % (sT0, sT0, sT1))
    A("s_lshl_b32 s%d, s%d, 10" % (sT0, sT0))
    A("v_lshlrev_b32 %s, 2, v0" % v(vT0))
    A("v_add_u32 %s, s%d, %s" % (v(vT0), sT0, v(vT0)))
    for k in range(16):
        if k:
            A("v_add_u32 %s, 0x2000, %s" % (v(vT0), v(vT0)))
        A("global_load_dword %s, %s, %s%s" % (v(vWO + 16 + k), v(vT0), sr(sWO), NT))

    A.lab("L_cloop")
    A.c("================= attention")
    A("s_barrier")
    Q = vB
    for c in range(4):
        A("ds_read_b128 %s, %s offset:%d" % (vr(Q + 4 * c, 4), v(vQRD), c * 64))
    lf = first_begin()
    A("v_mov_b32 %s, %d" % (v(vT4), L_MODE))
    A("ds_read_b32 %s, %s" % (v(vT3), v(vT4)))
    A("s_waitcnt lgkmcnt(0)")
    A("v_readfirstlane_b32 s%d, %s" % (sMODE, v(vT3)))
    A.lab(lf)
    stamp("b1")
    S = vS0
    for c in range(4):
        A("s_waitcnt lgkmcnt(%d)" % (3 - c))
        for T in range(2):
            A("v_mfma_f32_16x16x32_bf16 %s, %s, %s, %s" % (vr(S + 4 * T, 4), vr(vK + (T * 4 + c) * 4, 4), vr(Q + 4 * c, 4), "0" if c == 0 else vr(S + 4 * T, 4)))
    nop(8); nop(2)
    P = vS0 + 8
    for rnd in range(2):
        for i in range(4):
            A("v_cvt_pk_bf16_f32 %s, %s, %s" % (v(P + i), v(S + 2 * i), v(S + 2 * i + 1)))
        for i in range(4):
            A("v_lshlrev_b32 %s, 16, %s" % (v(S + 2 * i), v(P + i)))
            A("v_and_b32 %s, 0xffff0000, %s" % (v(S + 2 * i + 1), v(P + i)))
        if rnd == 0:
            for i in range(8):
                A("v_mul_f32 %s, s%d, %s" % (v(S + i), sSCALE, v(S + i)))
    A("v_max3_f32 %s, %s, %s, %s" % (v(vT0), v(S), v(S + 1), v(S + 2)))
    A("v_max3_f32 %s, %s, %s, %s" % (v(vT1), v(S + 3), v(S + 4), v(S + 5)))
    A("v_max3_f32 %s, %s, %s, %s" % (v(vT0), v(S + 6), v(S + 7), v(vT0)))
    A("v_max_f32 %s, %s, %s" % (v(vT0), v(vT0), v(vT1)))
    xrow([vT0], [vT1], "max")
    A("v_mul_f32 %s, s%d, %s" % (v(vT2), sLOG2E, v(vT0)))
    for i in range(8):
        A("v_fma_f32 %s, %s, s%d, -%s" % (v(S + i), v(S + i), sLOG2E, v(vT2)))
    for i in range(8):
        A("v_exp_f32 %s, %s" % (v(S + i), v(S + i)))
    nop(1)
    for i in range(4):
        A("v_cvt_pk_bf16_f32 %s, %s, %s" % (v(P + i), v(S + 2 * i), v(S + 2 * i + 1)))
    A("v_add_f32 %s, %s, %s" % (v(vT1), v(S), v(S + 1)))
    A("v_add_f32 %s, %s, %s" % (v(vT2), v(S + 2), v(S + 3)))
    D = vA
    for i in range(8):
        A("v_mfma_f32_16x16x32_bf16 %s, %s, %s, 0" % (vr(D + 4 * i, 4), vr(vVT + 4 * i, 4), vr(P, 4)))
        if i == 0:
            A("v_add_f32 %s, %s, %s" % (v(vT3), v(S + 4), v(S + 5)))
            A("v_add_f32 %s, %s, %s" % (v(vT4), v(S + 6), v(S + 7)))
        if i == 1:
            A("v_add_f32 %s, %s, %s" % (v(vT1), v(vT1), v(vT2)))
            A("v_add_f32 %s, %s, %s" % (v(vT3), v(vT3), v(vT4)))
        if i == 2:
            A("v_add_f32 %s, %s, %s" % (v(vT1), v(vT1), v(vT3)))
        if i == 3:
            xrow([vT1], [vT2], "add")
    A("s_mul_i32 s%d, s%d, %d" % (sT1, sW, AT_STRIDE))
    A("s_add_u32 s%d, s%d, %d" % (sT1, sT1, L_AT + 2048))
    A("v_lshlrev_b32 %s, 3, %s" % (v(vT2), v(vLANE)))
    A("v_add_u32 %s, s%d, %s" % (v(vT2), sT1, v(vT2)))
    A("s_mov_b64 exec, 0xf")
    A("ds_write_b64 %s, %s" % (v(vT2), vr(vT0, 2)))
    A("s_mov_b64 exec, %s" % sr(sM))
    for i in range(8):
        if i == 6: nop(4)
        A("ds_write_b128 %s, %s offset:%d" % (v(vATW), vr(D + 4 * i, 4), i * 64))
    A("s_mov_b64 exec, -1")
    A("s_lshl_b32 s%d, s%d, 3" % (sT1, sW))
    A("s_add_u32 s%d, s%d, %d" % (sT1, sT1, L_AT + 2048))
    A("v_mov_b32 %s, s%d" % (v(vT2), sT1))
    G = vS0
    set_tags(G)
    set_tags(G + 4)
    A("v_add_u32 %s, 0x%x, %s" % (v(vT0), PO_OFF, v(vPOST)))
    A("s_waitcnt lgkmcnt(0)")
    A("s_barrier")
    R = vA
    for w in range(4):
        A("ds_read_b64 %s, %s offset:%d" % (vr(R + 8 + 2 * w, 2), v(vT2), w * AT_STRIDE))
    for w in range(4):
        A("ds_read_b64 %s, %s offset:%d" % (vr(R + 2 * w, 2), v(vATR), w * AT_STRIDE))
    A("s_waitcnt lgkmcnt(4)")
    A("v_max_f32 %s, %s, %s" % (v(G + 4), v(R + 8), v(R + 10)))
    A("v_max3_f32 %s, %s, %s, %s" % (v(G + 4), v(R + 12), v(R + 14), v(G + 4)))
    for w in range(4):
        A("v_sub_f32 %s, %s, %s" % (v(R + 8 + 2 * w), v(R + 8 + 2 * w), v(G + 4)))
    for w in range(4):
        A("v_mul_f32 %s, s%d, %s" % (v(R + 8 + 2 * w), sLOG2E, v(R + 8 + 2 * w)))
    for w in range(4):
        A("v_exp_f32 %s, %s" % (v(R + 8 + 2 * w), v(R + 8 + 2 * w)))
    A("s_waitcnt lgkmcnt(0)")
    A("v_mul_f32 %s, %s, %s" % (v(G), v(R + 8), v(R)))
    A("v_mul_f32 %s, %s, %s" % (v(G + 1), v(R + 8), v(R + 1)))
    A("v_mul_f32 %s, %s, %s" % (v(G + 5), v(R + 8), v(R + 9)))
    for w in range(1, 4):
        A("v_fmac_f32 %s, %s, %s" % (v(G), v(R + 8 + 2 * w), v(R + 2 * w)))
        A("v_fmac_f32 %s, %s, %s" % (v(G + 1), v(R + 8 + 2 * w), v(R + 2 * w + 1)))
        A("v_fmac_f32 %s, %s, %s" % (v(G + 5), v(R + 8 + 2 * w), v(R + 9 + 2 * w)))
    publish(G, vT0)
    A("s_mov_b64 exec, 1")
    publish(G + 4, vMLST)
    A("s_mov_b64 exec, -1")
    stamp("p_pub")
    W1RAW = vB + 32
    lf = first_begin()
    A.c("unpack wo (wait), issue w1/w2/b1 loads")
    A("s_waitcnt vmcnt(2)")
    for k in range(16):
        A("v_lshlrev_b32 %s, 16, %s" % (v(vWO + k), v(vWO + 16 + k)))
        A("v_and_b32 %s, 0xffff0000, %s" % (v(vWO + 16 + k), v(vWO + 16 + k)))
    A("s_min_u32 s%d, s%d, 27" % (sT0, sS))
    A("s_mul_i32 s%d, s%d, 28" % (sT1, sG))
    A("s_add_u32 s%d, s%d, s%d" % (sT0, sT0, sT1))
    A("s_lshl_b32 s%d, s%d, 4" % (sT1, sT0))
    A("v_mul_u32_u24 %s, 0xe00, v0" % v(vT3))
    A("v_add_u32 %s, s%d, %s" % (v(vT3), sT1, v(vT3)))
    A("global_load_dwordx4 %s, %s, %s%s" % (vr(W1RAW, 4), v(vT3), sr(sW1), NT))
    A("v_add_u32 %s, 0x%x, %s" % (v(vT3), 256 * 3584, v(vT3)))
    A("global_load_dwordx4 %s, %s, %s%s" % (vr(W1RAW + 4, 4), v(vT3), sr(sW1), NT))
    A("v_and_b32 %s, 7, %s" % (v(vT3), v(vLANE)))
    A("v_lshlrev_b32 %s, 1, %s" % (v(vT3), v(vT3)))
    A("v_add_u32 %s, s%d, %s" % (v(vT3), sT1, v(vT3)))
    A("global_load_ushort %s, %s, %s" % (v(vB1), v(vT3), sr(sB1)))
    A("s_lshl_b32 s%d, s%d, 13" % (sT1, sT0))
    A("v_lshlrev_b32 %s, 2, v0" % v(vT3))
    A("v_add_u32 %s, s%d, %s" % (v(vT3), sT1, v(vT3)))
    A("v_add_u32 %s, 0x1000, %s" % (v(vT4), v(vT3)))
    for k in range(8):
        A("global_load_dword %s, %s, %s offset:%d%s" % (v(vW2 + 8 + k), v(vT3 if k < 4 else vT4), sr(sW2), (k % 4) * 1024, NT))
    A.lab(lf)

    A.c("================= o-proj")
    G = vS0 + 8
    T = vS0
    set_tags(G)
    A("v_mov_b32 %s, %d" % (v(vT1), L_O))
    A("v_add_u32 %s, 0x%x, %s" % (v(vT0), RS_OFF, v(vPOST)))
    A("s_barrier")
    O = vA
    for i in range(4):
        A("ds_read_b128 %s, %s offset:%d" % (vr(O + 4 * i, 4), v(vT1), 16 * i))
    stamp("b3")
    for i in range(4):
        A("s_waitcnt lgkmcnt(%d)" % (3 - i))
        for kk in range(4):
            k = 4 * i + kk
            a0, a1 = (G, G + 1) if k % 2 == 0 else (T + 4, T + 5)
            ins = "v_mul_f32" if k < 2 else "v_fmac_f32"
            A("%s %s, %s, %s" % (ins, v(a0), v(O + k), v(vWO + k)))
            A("%s %s, %s, %s" % (ins, v(a1), v(O + k), v(vWO + 16 + k)))
    A("v_add_f32 %s, %s, %s" % (v(G), v(G), v(T + 4)))
    A("v_add_f32 %s, %s, %s" % (v(G + 1), v(G + 1), v(T + 5)))
    publish(G, vT0)
    stamp("rs_pub0")

    A.c("================= MLP")
    lf = first_begin()
    A("s_waitcnt vmcnt(0)")
    A("v_lshlrev_b32 %s, 4, v0" % v(vT0))
    A("ds_write_b128 %s, %s offset:%d" % (v(vT0), vr(W1RAW, 4), L_W1))
    A("ds_write_b128 %s, %s offset:%d" % (v(vT0), vr(W1RAW + 4, 4), L_W1 + 4096))
    for k in range(8):
        A("v_lshlrev_b32 %s, 16, %s" % (v(vW2 + k), v(vW2 + 8 + k)))
        A("v_and_b32 %s, 0xffff0000, %s" % (v(vW2 + 8 + k), v(vW2 + 8 + k)))
    A("v_lshlrev_b32 %s, 16, %s" % (v(vB1), v(vB1)))
    A("s_waitcnt lgkmcnt(0)")
    A.lab(lf)
    ln = notfirst_begin()
    prefetch_W1()
    A.lab(ln)
    A("v_add_u32 %s, 0x%x, %s" % (v(vT0), RS_OFF + 0x100000, v(vPOST)))
    A("s_barrier")
    lf = first_begin()
    prefetch_W1()
    A.lab(lf)
    stamp("b4")
    gemv(vS0, 8)
    T = vS0
    A("v_add_f32_dpp %s, %s, %s row_ror:8%s" % (v(T), v(T + 1), v(T), DPPM))
    G = vS0 + 8
    set_tags(G)
    A("v_cvt_pk_bf16_f32 %s, %s, %s" % (v(T), v(T), v(T)))
    A("v_and_b32 %s, 0xffff0000, %s" % (v(T), v(T)))
    A("v_add_f32 %s, %s, %s" % (v(T), v(T), v(vB1)))
    A("v_cvt_pk_bf16_f32 %s, %s, %s" % (v(T), v(T), v(T)))
    A("v_and_b32 %s, 0xffff0000, %s" % (v(T), v(T)))
    A("v_mul_f32 %s, %s, %s" % (v(T + 1), v(T), v(T)))
    A("v_mov_b32 %s, s%d" % (v(T + 2), sC1))
    A("v_fmac_f32 %s, s%d, %s" % (v(T + 2), sC2, v(T + 1)))
    A("v_mul_f32 %s, %s, %s" % (v(T + 2), v(T + 2), v(T)))
    A("v_exp_f32 %s, %s" % (v(T + 2), v(T + 2)))
    nop(1)
    A("v_add_f32 %s, 1.0, %s" % (v(T + 2), v(T + 2)))
    A("v_rcp_f32 %s, %s" % (v(T + 2), v(T + 2)))
    nop(1)
    A("v_mul_f32 %s, %s, %s" % (v(T), v(T), v(T + 2)))
    A("v_cvt_pk_bf16_f32 %s, %s, %s" % (v(T), v(T), v(T)))
    A("v_and_b32 %s, 0xffff0000, %s" % (v(T), v(T)))
    A("s_cmp_lt_u32 s%d, 28" % sS)
    A("s_cbranch_scc1 L_hok")
    A("v_mov_b32 %s, 0" % v(T))
    A.lab("L_hok")
    nop(1)
    for k in range(8):
        A("v_readlane_b32 s%d, %s, %d" % (sO + k, v(T), k))
    A("v_mul_f32 %s, s%d, %s" % (v(G), sO, v(vW2)))
    A("v_mul_f32 %s, s%d, %s" % (v(G + 1), sO, v(vW2 + 8)))
    A("v_mul_f32 %s, s%d, %s" % (v(T + 4), sO + 1, v(vW2 + 1)))
    A("v_mul_f32 %s, s%d, %s" % (v(T + 5), sO + 1, v(vW2 + 9)))
    for k in range(2, 8, 2):
        A("v_fmac_f32 %s, s%d, %s" % (v(G), sO + k, v(vW2 + k)))
        A("v_fmac_f32 %s, s%d, %s" % (v(G + 1), sO + k, v(vW2 + 8 + k)))
        A("v_fmac_f32 %s, s%d, %s" % (v(T + 4), sO + k + 1, v(vW2 + k + 1)))
        A("v_fmac_f32 %s, s%d, %s" % (v(T + 5), sO + k + 1, v(vW2 + 9 + k)))
    A("v_add_f32 %s, %s, %s" % (v(G), v(G), v(T + 4)))
    A("v_add_f32 %s, %s, %s" % (v(G + 1), v(G + 1), v(T + 5)))
    publish(G, vT0)
    stamp("rs_pub1")
    next_layer()
    A("s_cmp_lt_u32 s%d, 2" % sL)
    A("s_cbranch_scc1 L_cloop")
    dump_stamps()
    A("s_endpgm")

    A.lab("L_comm")
    A("s_setprio 3")
    A("v_lshrrev_b32 %s, 2, %s" % (v(vT3), v(vT1)))
    A("v_lshl_add_u32 %s, %s, 3, %s" % (v(vT3), v(vT2), v(vT3)))
    A("v_and_b32 %s, 3, %s" % (v(vT4), v(vT1)))
    A("v_lshlrev_b32 %s, 5, %s" % (v(vTRA), v(vT3)))
    A("v_lshl_add_u32 %s, %s, 3, %s" % (v(vTRA), v(vT4), v(vTRA)))
    A("v_lshlrev_b32 %s, 4, %s" % (v(vXNR), v(vT2)))
    A("v_add_u32 %s, %d, %s" % (v(vXNR), L_XN, v(vXNR)))
    A("v_lshrrev_b32 %s, 1, %s" % (v(vT3), v(vLANE)))
    A("v_lshlrev_b32 %s, 13, %s" % (v(vT3), v(vT3)))
    A("v_and_b32 %s, 1, %s" % (v(vT4), v(vLANE)))
    A("v_lshl_add_u32 %s, %s, 4, %s" % (v(vT3), v(vT4), v(vT3)))
    A("s_lshl_b32 s%d, s%d, 10" % (sT0, sG))
    A("s_lshl_b32 s%d, s%d, 5" % (sT1, sS))
    A("s_add_u32 s%d, s%d, s%d" % (sT0, sT0, sT1))
    A("v_add_u32 %s, s%d, %s" % (v(vT3), sT0, v(vT3)))
    A("v_lshlrev_b32 %s, 4, %s" % (v(vXNW), v(vLANE)))
    A("v_and_b32 %s, 7, %s" % (v(vT4), v(vLANE)))
    A("v_lshlrev_b32 %s, 2, %s" % (v(vT4), v(vT4)))
    A("v_add_u32 %s, s%d, %s" % (v(vT4), sT1, v(vT4)))
    A("s_waitcnt lgkmcnt(0)")
    stamp("start", loop=False)
    A("s_load_dword s%d, %s, 0" % (sE, sr(sWS)))
    A("global_load_dwordx4 %s, %s, %s" % (vr(vX, 4), v(vXNW), sr(sX)))
    for i in range(16):
        if i:
            A("v_add_u32 %s, 0x40000, %s" % (v(vT3), v(vT3)))
        A("global_load_dwordx4 %s, %s, %s%s" % (vr(vK + 4 * i, 4), v(vT3), sr(sWQ), NT))
    A("global_load_dword %s, %s, %s" % (v(vXR1), v(vT4), sr(sX)))
    A("global_load_dword %s, %s, %s" % (v(vB21), v(vT4), sr(sB2)))
    A("s_lshl_b32 s%d, s%d, 11" % (sT0, sG))
    A("v_lshlrev_b32 %s, 5, %s" % (v(vQLD), v(vLANE)))
    A("v_add_u32 %s, s%d, %s" % (v(vQLD), sT0, v(vQLD)))
    A("v_add_u32 %s, 0x%x, %s" % (v(vAGLD), AG_OFF, v(vQLD)))
    A("s_lshl_b32 s%d, s%d, 6" % (sT1, sS))
    A("s_add_u32 s%d, s%d, s%d" % (sT0, sT0, sT1))
    A("v_and_b32 %s, 12, %s" % (v(vQST), v(vLANE)))
    A("v_lshlrev_b32 %s, 2, %s" % (v(vQST), v(vQST)))
    A("v_add_u32 %s, s%d, %s" % (v(vQST), sT0, v(vQST)))
    A("s_add_u32 s%d, s%d, 0x%x" % (sT0, sT0, AG_OFF))
    A("v_and_b32 %s, 6, %s" % (v(vAGST), v(vLANE)))
    A("v_lshlrev_b32 %s, 3, %s" % (v(vAGST), v(vAGST)))
    A("v_add_u32 %s, s%d, %s" % (v(vAGST), sT0, v(vAGST)))
    A("s_lshl_b32 s%d, s%d, 10" % (sT0, sS))
    A("s_add_u32 s%d, s%d, 0x%x" % (sT0, sT0, XB_OFF))
    A("v_lshlrev_b32 %s, 4, %s" % (v(vXLD), v(vLANE)))
    A("v_add_u32 %s, s%d, %s" % (v(vXLD), sT0, v(vXLD)))
    A("s_lshl_b32 s%d, s%d, 7" % (sT1, sG))
    A("s_add_u32 s%d, s%d, s%d" % (sT0, sT0, sT1))
    A("v_and_b32 %s, 7, %s" % (v(vXST), v(vLANE)))
    A("v_lshlrev_b32 %s, 4, %s" % (v(vXST), v(vXST)))
    A("v_add_u32 %s, s%d, %s" % (v(vXST), sT0, v(vXST)))
    A("s_lshl_b32 s%d, s%d, 5" % (sT1, sG))
    A("s_add_u32 s%d, s%d, s%d" % (sT1, sT1, sS))
    A("s_lshl_b32 s%d, s%d, 12" % (sT1, sT1))
    A("v_lshlrev_b32 %s, 4, %s" % (v(vPLD), v(vLANE)))
    A("v_add_u32 %s, s%d, %s" % (v(vPLD), sT1, v(vPLD)))
    A("s_lshl_b32 s%d, s%d, 2" % (sT1, sG))
    A("s_lshr_b32 s%d, s%d, 3" % (sT2, sS))
    A("s_add_u32 s%d, s%d, s%d" % (sT1, sT1, sT2))
    A("s_lshl_b32 s%d, s%d, 9" % (sT1, sT1))
    A("s_add_u32 s%d, s%d, 0x%x" % (sT1, sT1, ML_OFF))
    A("v_lshrrev_b32 %s, 3, %s" % (v(vT3), v(vLANE)))
    A("v_lshlrev_b32 %s, 4, %s" % (v(vMLLD), v(vT3)))
    A("v_add_u32 %s, s%d, %s" % (v(vMLLD), sT1, v(vMLLD)))
    tags_setup()
    for i in range(16):
        A("s_waitcnt vmcnt(%d)" % (17 - i))
        A("ds_write_b128 %s, %s offset:%d" % (v(vXNW), vr(vK + 4 * i, 4), L_WQ + i * 1024))
    stamp("wq_staged", loop=False)
    prefetch_WQ()
    A("s_waitcnt vmcnt(0)")
    A("v_lshlrev_b32 %s, 16, %s" % (v(vXR0), v(vXR1)))
    A("v_and_b32 %s, 0xffff0000, %s" % (v(vXR1), v(vXR1)))
    A("v_lshlrev_b32 %s, 16, %s" % (v(vB20), v(vB21)))
    A("v_and_b32 %s, 0xffff0000, %s" % (v(vB21), v(vB21)))
    A.lab("L_mloop")
    layernorm([vX, vX + 1, vX + 2, vX + 3], L_XN)
    gemv(vS0, 16)
    T = vS0 + 4
    for e in range(4):
        A("v_mov_b32_dpp %s, %s quad_perm:[%d,%d,%d,%d]%s" % (v(T + 4 + e), v(vS0), e, e, e, e, DPPM))
    A("v_mov_b32 %s, s%d" % (v(T + 2), sTA))
    A("v_mov_b32 %s, s%d" % (v(T + 3), sTBX))
    A("v_cvt_pk_bf16_f32 %s, %s, %s" % (v(T), v(T + 4), v(T + 5)))
    A("v_cvt_pk_bf16_f32 %s, %s, %s" % (v(T + 1), v(T + 6), v(T + 7)))
    A("s_mov_b64 exec, 0x1111")
    publish(T, vQST)
    A("s_mov_b64 exec, -1")
    stamp("q_pub")
    Qg = vA
    poll([(Qg, vQLD, 0), (Qg + 4, vQLD, 16)], xcc=True)
    lf = first_begin()
    A("v_xor_b32 %s, s%d, %s" % (v(vT4), sTBX, v(Qg + 3)))
    A("v_xor_b32 %s, s%d, %s" % (v(vT3), sTBX, v(Qg + 7)))
    A("v_or_b32 %s, %s, %s" % (v(vT4), v(vT4), v(vT3)))
    A("v_cmp_ne_u32 vcc, 0, %s" % v(vT4))
    A("s_cmp_eq_u64 vcc, 0")
    A("s_cselect_b32 s%d, 1, 0" % sMODE)
    A("v_mov_b32 %s, s%d" % (v(vT3), sMODE))
    A("v_mov_b32 %s, %d" % (v(vT4), L_MODE))
    A("ds_write_b32 %s, %s" % (v(vT4), v(vT3)))
    A.lab(lf)
    A("v_mov_b32 %s, %s" % (v(Qg + 2), v(Qg + 4)))
    A("v_mov_b32 %s, %s" % (v(Qg + 3), v(Qg + 5)))
    A("ds_write_b128 %s, %s offset:%d" % (v(vXNW), vr(Qg, 4), L_Q))
    A("v_add_u32 %s, 0x%x, %s" % (v(vT0), PO_OFF, v(vPLD)))
    A("s_waitcnt lgkmcnt(0)")
    A("s_barrier")
    stamp("q_got")
    A("s_barrier")
    O = vB
    ML = O + 16
    poll([(ML + 4 * i, vMLLD, 128 * i) for i in range(4)] + [(O + 4 * i, vT0, 1024 * i) for i in range(4)])
    stamp("p_got")
    A("v_max_f32 %s, %s, %s" % (v(vT0), v(ML), v(ML + 4)))
    A("v_max3_f32 %s, %s, %s, %s" % (v(vT0), v(ML + 8), v(ML + 12), v(vT0)))
    dpp_reduce([vT0], ["row_ror:8"], "max")
    xrow([vT0], [vT1], "max")
    for i in range(4):
        A("v_sub_f32 %s, %s, %s" % (v(ML + 4 * i), v(ML + 4 * i), v(vT0)))
    for i in range(4):
        A("v_mul_f32 %s, s%d, %s" % (v(ML + 4 * i), sLOG2E, v(ML + 4 * i)))
    for i in range(4):
        A("v_exp_f32 %s, %s" % (v(ML + 4 * i), v(ML + 4 * i)))
    T = vS0
    A("v_lshlrev_b32 %s, 3, %s" % (v(vT2), v(vLANE)))
    A("v_mul_f32 %s, %s, %s" % (v(T), v(ML), v(O)))
    A("v_mul_f32 %s, %s, %s" % (v(T + 1), v(ML), v(O + 1)))
    A("v_mul_f32 %s, %s, %s" % (v(T + 2), v(ML), v(ML + 1)))
    for i in range(1, 4):
        A("v_fmac_f32 %s, %s, %s" % (v(T), v(ML + 4 * i), v(O + 4 * i)))
        A("v_fmac_f32 %s, %s, %s" % (v(T + 1), v(ML + 4 * i), v(O + 4 * i + 1)))
        A("v_fmac_f32 %s, %s, %s" % (v(T + 2), v(ML + 4 * i), v(ML + 4 * i + 1)))
    dpp_reduce([T, T + 1, T + 2], ["row_ror:8"], "add")
    xrow([T, T + 1, T + 2], [T + 4, T + 5, T + 6], "add")
    A("v_rcp_f32 %s, %s" % (v(T + 2), v(T + 2)))
    nop(1)
    A("v_mul_f32 %s, %s, %s" % (v(T), v(T), v(T + 2)))
    A("v_mul_f32 %s, %s, %s" % (v(T + 1), v(T + 1), v(T + 2)))
    A("v_cvt_pk_bf16_f32 %s, %s, %s" % (v(T + 2), v(T), v(T + 1)))
    A("v_lshlrev_b32 %s, 16, %s" % (v(T), v(T + 2)))
    A("v_and_b32 %s, 0xffff0000, %s" % (v(T + 1), v(T + 2)))
    A("s_mov_b64 exec, 0xff")
    A("ds_write_b64 %s, %s offset:%d" % (v(vT2), vr(T, 2), L_O))
    A("s_mov_b64 exec, -1")
    A("s_waitcnt lgkmcnt(0)")
    A("s_barrier")
    reduce_hops(0, mlp=False)
    stamp("ag1_pub")
    X = poll_AG(0, vA + 8)
    stamp("ag1_got")
    layernorm(X, L_XN + 1024)
    A("s_waitcnt lgkmcnt(0)")
    A("s_barrier")
    reduce_hops(1, mlp=True)
    prefetch_WQ()
    X = poll_AG(1, vA + 8)
    for i in range(4):
        A("v_mov_b32 %s, %s" % (v(vX + i), v(X[i])))
    stamp("ag2_got")
    next_layer()
    A("s_branch L_mloop")
    A.lab("L_final")
    T = vS0
    stamp("ag2_got")
    l = A.new("Lnoout")
    A("s_cmp_lg_u32 s%d, 0" % sG)
    A("s_cbranch_scc1 %s" % l)
    A("s_lshl_b32 s%d, s%d, 5" % (sT0, sS))
    A("v_lshlrev_b32 %s, 2, %s" % (v(vT0), v(vLANE)))
    A("v_add_u32 %s, s%d, %s" % (v(vT0), sT0, v(vT0)))
    A("s_mov_b64 exec, 0xff")
    A("global_store_dword %s, %s, %s" % (v(vT0), v(T), sr(sOUT)))
    A("s_mov_b64 exec, -1")
    A("s_cmp_lg_u32 s%d, 0" % sS)
    A("s_cbranch_scc1 %s" % l)
    A("s_add_u32 s%d, s%d, 1" % (sT0, sE))
    A("v_mov_b32 %s, s%d" % (v(vT1), sT0))
    A("v_mov_b32 %s, 0" % v(vT0))
    A("s_mov_b64 exec, 1")
    A("global_store_dword %s, %s, %s" % (v(vT0), v(vT1), sr(sWS)))
    A("s_mov_b64 exec, -1")
    A.lab(l)
    dump_stamps()
    A.lab("L_end")
    A("s_endpgm")

build()
out = HEADER
out += "; Override launch geometry by editing the next line (default: block=256,\n"
out += "; @launch grid=(256,1,1) block=(320,1,1) lds=%d\n" % LDS_SIZE
out += '.amdgcn_target "amdgcn-amd-amdhsa--gfx950"\n.text\n.globl %s_kernel\n.p2align 8\n.type %s_kernel,@function\n%s_kernel:\n' % (NAME, NAME, NAME)
out += "\n".join(A.L) + "\n"
out += """.section .rodata,"a"
.p2align 6
.amdhsa_kernel %s_kernel
  .amdhsa_next_free_vgpr %d
  .amdhsa_next_free_sgpr 102
  .amdhsa_accum_offset %d
  .amdhsa_group_segment_fixed_size 0
  .amdhsa_kernarg_size 104
  .amdhsa_user_sgpr_count 2
  .amdhsa_user_sgpr_kernarg_segment_ptr 1
  .amdhsa_system_sgpr_workgroup_id_x 1
.end_amdhsa_kernel
""" % (NAME, NVGPR, NVGPR)
dst = sys.argv[1] if len(sys.argv) > 1 else "cdna_kernels/%s.s" % NAME
open(dst, "w").write(out)
print("wrote", dst, len(A.L), "lines")
if STAMPS:
    names = PRO + ["-"] * (4 - len(PRO))
    for n in LOO: names += [n + "_0", n + "_1"]
    open(dst + ".stamps", "w").write(",".join(names))
```

```python
import sys, struct, os

NAME = "interleave_layers__sliding_block_cached__dense_activation_gelu__decode"
HEADER = open("cdna_kernels/%s.s.ref" % NAME).read().split("; Override launch geometry")[0]
def f2u(x): return struct.unpack("<I", struct.pack("<f", x))[0]

class Asm:
    def __init__(s): s.L = []; s.n = 0
    def __call__(s, t): s.L.append("    " + t)
    def lab(s, l): s.L.append(l + ":")
    def new(s, p="L"): s.n += 1; return "%s_%d" % (p, s.n)
    def c(s, t): s.L.append("    ; " + t)
A = Asm()
def v(i): return "v%d" % i
def vr(i, n): return "v[%d:%d]" % (i, i + n - 1)
def sr(i, n=2): return "s[%d:%d]" % (i, i + n - 1)

NT = os.environ.get("NTPOL", " nt")
STAMPS = int(os.environ.get("STAMPS", "0"))
SEL = os.environ.get("STSEL", "").split(",")
STW = int(os.environ.get("STW", "0"))

sG, sS, sW = 3, 4, 5
sTA, sTB, sE = 6, 7, 8
sT0, sT1, sT2 = 9, 10, 11
sKB, sVB = 12, 14
sX, sK, sV, sWQ, sWO, sW1, sB1 = 16, 18, 20, 22, 24, 28, 30
sW2, sB2, sOUT, sDBG, sWS = 32, 34, 36, 38, 40
sF = 42
sMODE, sXCC, sTBX, sIT = 44, 45, 46, 48
sM = 50
sLOG2E, sSCALE, sINV512, sPLO, sPHI, sC1, sC2, sEPS = 54, 55, 56, 57, 58, 59, 60, 61
sL = 63
sO = 64

F_OFF = 0x100000
QB_OFF = 0x000000
ML_OFF = 0x004000
AG_OFF = 0x008000
XB_OFF = 0x010000
PO_OFF = 0x100000
RS_OFF = 0x200000
LAYER_STRIDE = 0x400000

L_WQ = 0
L_W1 = 16384
L_XN = 24576
L_Q = L_XN + 2048
L_O = L_Q + 1024
L_MODE = L_O + 64
L_AT = L_MODE + 64
AT_STRIDE = 2080
LDS_SIZE = L_AT + 4 * AT_STRIDE

vLANE = 1
vQLD, vPOST, vPLD, vMLLD, vXLD, vAGLD, vTRA = 2, 3, 4, 5, 7, 8, 9
vXR0, vXR1 = 10, 11
vB1, vB20, vB21 = 12, 13, 14
vXNW, vXNR = 15, 16
vATW, vATR = 17, 18
vTR1 = 19
vT0, vT1, vT2, vT3, vT4, vT5 = 20, 21, 22, 23, 24, 25
vQST, vXST, vAGST = 26, 27, 6
vQRD = 2
vMLST = 4
vX = 28
vK = 32
vVT = 64
vWO = 96
vW2 = 128
vB = 144
vA = 208
vS0 = 240
NVGPR = 256
LIMIT = 400000

PRO = []; LOO = []
def stamp(name, loop=True):
    if not STAMPS: return
    if SEL != [""] and name not in SEL and name != "start": return
    A("s_memrealtime s[82:83]")
    A("s_waitcnt lgkmcnt(0)")
    if not loop:
        if name not in PRO: PRO.append(name)
        A("s_mov_b32 s%d, s82" % (84 + PRO.index(name)))
    else:
        if name not in LOO: LOO.append(name)
        i = 4 + 2 * LOO.index(name)
        assert i + 1 < 18
        A("s_cmp_eq_u32 s%d, 0" % sL)
        A("s_cselect_b32 s%d, s82, s%d" % (84 + i, 84 + i))
        A("s_cselect_b32 s%d, s%d, s82" % (84 + i + 1, 84 + i + 1))
def dump_stamps():
    if not STAMPS: return
    l = A.new("Lst")
    A("s_cmp_lg_u32 s%d, %d" % (sW, STW))
    A("s_cbranch_scc1 %s" % l)
    A("s_lshl_b32 s%d, s2, 7" % sT0)
    A("s_add_u32 s%d, s%d, 0x2000000" % (sT0, sT0))
    A("v_mov_b32 %s, s%d" % (v(vT0), sT0))
    A("s_mov_b64 exec, 1")
    for i in range(18):
        A("v_mov_b32 %s, s%d" % (v(vT1), 84 + i))
        A("global_store_dword %s, %s, %s offset:%d" % (v(vT0), v(vT1), sr(sWS), 4 * i))
        A("s_nop 1")
    A("s_mov_b64 exec, -1")
    A.lab(l)

def nop(n): A("s_nop %d" % (n - 1))
DPPM = " row_mask:0xf bank_mask:0xf"

def dpp_reduce(regs, ctls, op):
    ins = "v_add_f32" if op == "add" else "v_max_f32"
    for ctl in ctls:
        nop(2 if len(regs) == 1 else 1)
        for r in regs:
            A("%s_dpp %s, %s, %s %s%s" % (ins, v(r), v(r), v(r), ctl, DPPM))

def xrow(regs, tmps, op):
    ins = "v_add_f32" if op == "add" else "v_max_f32"
    for sw in ["v_permlane16_swap_b32", "v_permlane32_swap_b32"]:
        for r, t in zip(regs, tmps):
            A("v_mov_b32 %s, %s" % (v(t), v(r)))
        nop(2 if len(regs) == 1 else 1)
        for r, t in zip(regs, tmps):
            A("%s %s, %s" % (sw, v(r), v(t)))
        nop(2 if len(regs) == 1 else 1)
        for r, t in zip(regs, tmps):
            A("%s %s, %s, %s" % (ins, v(r), v(r), v(t)))

def poll(loads, xcc=False):
    acc = vT5
    lp = A.new("Lpoll")
    A("s_mov_b32 s%d, 0" % sIT)
    A.lab(lp)
    for (d, a, off) in loads:
        A("global_load_dwordx4 %s, %s, %s offset:%d sc1" % (vr(d, 4), v(a), sr(sF), off))
    A("s_add_u32 s%d, s%d, 1" % (sIT, sIT))
    A("s_cmp_gt_u32 s%d, %d" % (sIT, LIMIT))
    A("s_cbranch_scc1 L_end")
    n = len(loads)
    for i, (d, a, off) in enumerate(loads):
        A("s_waitcnt vmcnt(%d)" % (n - 1 - i))
        A("v_xor_b32 %s, s%d, %s" % (v(vT3), sTA, v(d + 2)))
        A("v_xor_b32 %s, s%d, %s" % (v(vT4), sTB, v(d + 3)))
        if xcc:
            A("v_lshrrev_b32 %s, 3, %s" % (v(vT4), v(vT4)))
        if i == 0:
            A("v_or_b32 %s, %s, %s" % (v(acc), v(vT3), v(vT4)))
        else:
            A("v_or3_b32 %s, %s, %s, %s" % (v(acc), v(vT3), v(vT4), v(acc)))
    A("v_cmp_ne_u32 vcc, 0, %s" % v(acc))
    A("s_cbranch_vccnz %s" % lp)

def publish(dreg, areg, off=0, fast=True):
    o = " offset:%d" % off if off else ""
    if fast:
        l1 = A.new("Lpf"); l2 = A.new("Lpe")
        A("s_cmp_eq_u32 s%d, 1" % sMODE)
        A("s_cbranch_scc1 %s" % l1)
        A("global_store_dwordx4 %s, %s, %s%s sc1" % (v(areg), vr(dreg, 4), sr(sF), o))
        A("s_branch %s" % l2)
        A.lab(l1)
        A("global_store_dwordx4 %s, %s, %s%s" % (v(areg), vr(dreg, 4), sr(sF), o))
        A.lab(l2)
    else:
        A("global_store_dwordx4 %s, %s, %s%s sc1" % (v(areg), vr(dreg, 4), sr(sF), o))

def set_tags(d):
    A("v_mov_b32 %s, s%d" % (v(d + 2), sTA))
    A("v_mov_b32 %s, s%d" % (v(d + 3), sTB))

def layernorm(X, ldsoff):
    f = [vS0 + i for i in range(8)]
    d = [vS0 + 8 + i for i in range(8)]
    for i in range(4):
        A("v_lshlrev_b32 %s, 16, %s" % (v(f[2 * i]), v(X[i])))
        A("v_and_b32 %s, 0xffff0000, %s" % (v(f[2 * i + 1]), v(X[i])))
    A("v_readfirstlane_b32 s%d, %s" % (sT2, v(f[0])))
    nop(2)
    for i in range(8):
        A("v_subrev_f32 %s, s%d, %s" % (v(d[i]), sT2, v(f[i])))
    A("v_add_f32 %s, %s, %s" % (v(vT0), v(d[0]), v(d[1])))
    A("v_mul_f32 %s, %s, %s" % (v(vT1), v(d[0]), v(d[0])))
    A("v_add_f32 %s, %s, %s" % (v(vT2), v(d[2]), v(d[3])))
    A("v_mul_f32 %s, %s, %s" % (v(vT3), v(d[1]), v(d[1])))
    for i in (2, 4, 6):
        A("v_fmac_f32 %s, %s, %s" % (v(vT1), v(d[i]), v(d[i])))
        A("v_fmac_f32 %s, %s, %s" % (v(vT3), v(d[i + 1]), v(d[i + 1])))
    A("v_add_f32 %s, %s, %s" % (v(vT0), v(vT0), v(d[4])))
    A("v_add_f32 %s, %s, %s" % (v(vT2), v(vT2), v(d[5])))
    A("v_add_f32 %s, %s, %s" % (v(vT0), v(vT0), v(d[6])))
    A("v_add_f32 %s, %s, %s" % (v(vT2), v(vT2), v(d[7])))
    A("v_add_f32 %s, %s, %s" % (v(vT1), v(vT1), v(vT3)))
    A("v_add_f32 %s, %s, %s" % (v(vT0), v(vT0), v(vT2)))
    dpp_reduce([vT1, vT0], ["quad_perm:[1,0,3,2]", "quad_perm:[2,3,0,1]", "row_half_mirror", "row_mirror"], "add")
    xrow([vT1, vT0], [vT3, vT2], "add")
    A("v_mul_f32 %s, s%d, %s" % (v(vT0), sINV512, v(vT0)))
    A("v_mul_f32 %s, s%d, %s" % (v(vT1), sINV512, v(vT1)))
    A("v_fma_f32 %s, -%s, %s, %s" % (v(vT1), v(vT0), v(vT0), v(vT1)))
    A("v_add_f32 %s, s%d, %s" % (v(vT0), sT2, v(vT0)))
    A("v_max_f32 %s, 0, %s" % (v(vT1), v(vT1)))
    A("v_cvt_pk_bf16_f32 %s, %s, %s" % (v(vT2), v(vT0), v(vT1)))
    A("v_lshlrev_b32 %s, 16, %s" % (v(vT0), v(vT2)))
    A("v_and_b32 %s, 0xffff0000, %s" % (v(vT1), v(vT2)))
    A("v_add_f32 %s, s%d, %s" % (v(vT1), sEPS, v(vT1)))
    for i in range(4):
        A("v_sub_f32 %s, %s, %s" % (v(f[i]), v(f[i]), v(vT0)))
    A("v_cvt_pk_bf16_f32 %s, %s, %s" % (v(vT1), v(vT1), v(vT1)))
    for i in range(4, 8):
        A("v_sub_f32 %s, %s, %s" % (v(f[i]), v(f[i]), v(vT0)))
    A("v_and_b32 %s, 0xffff0000, %s" % (v(vT1), v(vT1)))
    A("v_sqrt_f32 %s, %s" % (v(vT1), v(vT1)))
    for i in range(4):
        A("v_cvt_pk_bf16_f32 %s, %s, %s" % (v(d[i]), v(f[2 * i]), v(f[2 * i + 1])))
    A("v_cvt_pk_bf16_f32 %s, %s, %s" % (v(vT1), v(vT1), v(vT1)))
    A("v_and_b32 %s, 0xffff0000, %s" % (v(vT1), v(vT1)))
    A("v_rcp_f32 %s, %s" % (v(vT1), v(vT1)))
    for i in range(4):
        A("v_lshlrev_b32 %s, 16, %s" % (v(f[2 * i]), v(d[i])))
        A("v_and_b32 %s, 0xffff0000, %s" % (v(f[2 * i + 1]), v(d[i])))
    for i in range(8):
        A("v_mul_f32 %s, %s, %s" % (v(f[i]), v(f[i]), v(vT1)))
    for i in range(4):
        A("v_cvt_pk_bf16_f32 %s, %s, %s" % (v(d[4 + i]), v(f[2 * i]), v(f[2 * i + 1])))
    A("ds_write_b128 %s, %s offset:%d" % (v(vXNW), vr(d[4], 4), ldsoff))

def prefetch_WQ():
    for c in range(16):
        off = L_WQ + c * 1024
        A("ds_read_b64_tr_b16 %s, %s offset:%d" % (vr(vB + 4 * c, 2), v(vTRA), off))
        A("ds_read_b64_tr_b16 %s, %s offset:%d" % (vr(vB + 4 * c + 2, 2), v(vTRA), off + 128))

def prefetch_W1():
    for c in range(8):
        off = L_W1 + c * 512
        A("ds_read_b64_tr_b16 %s, %s offset:%d" % (vr(vB + 4 * c, 2), v(vTR1), off))
        A("ds_read_b64_tr_b16 %s, %s offset:%d" % (vr(vB + 4 * c + 2, 2), v(vTR1), off + 64))

def gemv(acc, nch):
    n0 = min(nch, 8)
    for c in range(n0):
        A("ds_read_b128 %s, %s offset:%d" % (vr(vA + 4 * c, 4), v(vXNR), c * 64))
    for c in range(nch):
        issued = n0 + min(c, nch - n0)
        A("s_waitcnt lgkmcnt(%d)" % (issued - c - 1))
        A("v_mfma_f32_16x16x32_bf16 %s, %s, %s, %s" % (vr(acc, 4), vr(vA + 4 * (c % 8), 4), vr(vB + 4 * c, 4), "0" if c == 0 else vr(acc, 4)))
        if c + 8 < nch:
            A("ds_read_b128 %s, %s offset:%d" % (vr(vA + 4 * c, 4), v(vXNR), (c + 8) * 64))
    nop(8); nop(2)

def first_begin():
    l = A.new("Lnf")
    A("s_cmp_lg_u32 s%d, 0" % sL)
    A("s_cbranch_scc1 %s" % l)
    return l
def notfirst_begin():
    l = A.new("Lnn")
    A("s_cmp_eq_u32 s%d, 0" % sL)
    A("s_cbranch_scc1 %s" % l)
    return l

def poll_AG(idx, X):
    if idx:
        A("v_add_u32 %s, 0x%x, %s" % (v(vT0), idx * 0x4000, v(vAGLD)))
    a = vT0 if idx else vAGLD
    poll([(X, a, 0), (X + 4, a, 16)])
    return [X, X + 1, X + 4, X + 5]

def reduce_hops(idx, mlp):
    T = vS0
    A.c("---- RS consumer %d" % idx)
    A("v_add_u32 %s, 0x%x, %s" % (v(vT0), RS_OFF + idx * 0x100000, v(vPLD)))
    set_tags(T)
    poll([(vA + 4 * i, vT0, 1024 * i) for i in range(4)])
    stamp("rs_got%d" % idx)
    for d in range(2):
        A("v_add_f32 %s, %s, %s" % (v(T + d), v(vA + d), v(vA + 4 + d)))
        A("v_add_f32 %s, %s, %s" % (v(T + 4 + d), v(vA + 8 + d), v(vA + 12 + d)))
    for d in range(2):
        A("v_add_f32 %s, %s, %s" % (v(T + d), v(T + d), v(T + 4 + d)))
    dpp_reduce([T, T + 1], ["row_ror:8"], "add")
    xrow([T, T + 1], [T + 4, T + 5], "add")
    if idx:
        A("v_add_u32 %s, 0x%x, %s" % (v(vT0), idx * 0x8000, v(vXST)))
    A("s_mov_b64 exec, 0xff")
    publish(T, vT0 if idx else vXST, fast=False)
    A("s_mov_b64 exec, -1")
    A.c("---- X consumer %d" % idx)
    if idx:
        A("v_add_u32 %s, 0x%x, %s" % (v(vT0), idx * 0x8000, v(vXLD)))
    poll([(vA, vT0 if idx else vXLD, 0)])
    stamp("x_got%d" % idx)
    dpp_reduce([vA, vA + 1], ["row_ror:8"], "add")
    xrow([vA, vA + 1], [T + 4, T + 5], "add")
    A("v_cvt_pk_bf16_f32 %s, %s, %s" % (v(vT1), v(vA), v(vA + 1)))
    A("v_lshlrev_b32 %s, 16, %s" % (v(vA), v(vT1)))
    A("v_and_b32 %s, 0xffff0000, %s" % (v(vA + 1), v(vT1)))
    if mlp:
        A("v_add_f32 %s, %s, %s" % (v(vA), v(vA), v(vB20)))
        A("v_add_f32 %s, %s, %s" % (v(vA + 1), v(vA + 1), v(vB21)))
        A("v_cvt_pk_bf16_f32 %s, %s, %s" % (v(vT1), v(vA), v(vA + 1)))
        A("v_lshlrev_b32 %s, 16, %s" % (v(vA), v(vT1)))
        A("v_and_b32 %s, 0xffff0000, %s" % (v(vA + 1), v(vT1)))
    A("v_add_f32 %s, %s, %s" % (v(vA), v(vA), v(vXR0)))
    A("v_add_f32 %s, %s, %s" % (v(vA + 1), v(vA + 1), v(vXR1)))
    A("v_cvt_pk_bf16_f32 %s, %s, %s" % (v(T), v(vA), v(vA + 1)))
    A("v_lshlrev_b32 %s, 16, %s" % (v(vXR0), v(T)))
    A("v_and_b32 %s, 0xffff0000, %s" % (v(vXR1), v(T)))
    if mlp:
        A("s_cmp_eq_u32 s%d, 1" % sL)
        A("s_cbranch_scc1 L_final")
    A("v_mov_b32_dpp %s, %s quad_perm:[1,1,3,3]%s" % (v(T + 1), v(T), DPPM))
    if idx:
        A("v_add_u32 %s, 0x%x, %s" % (v(vT0), idx * 0x4000, v(vAGST)))
    A("s_mov_b64 exec, 0x55")
    publish(T, vT0 if idx else vAGST)
    A("s_mov_b64 exec, -1")

def tags_setup():
    A("s_add_u32 s%d, s%d, 0x%x" % (sF, sWS, F_OFF))
    A("s_addc_u32 s%d, s%d, 0" % (sF + 1, sWS + 1))
    A("s_mov_b32 s%d, 0" % sMODE)
    A("s_mov_b32 s%d, 0" % sL)
    A("s_getreg_b32 s%d, hwreg(HW_REG_XCC_ID)" % sXCC)
    A("s_and_b32 s%d, s%d, 7" % (sXCC, sXCC))
    A("s_waitcnt lgkmcnt(0)")
    A("s_xor_b32 s%d, s%d, 0x9e3779b9" % (sTA, sE))
    A("s_mul_i32 s%d, s%d, 0x85ebca6b" % (sTB, sE))
    A("s_add_u32 s%d, s%d, 0xc2b2ae35" % (sTB, sTB))
    A("s_xor_b32 s%d, s%d, s%d" % (sTBX, sTB, sXCC))

def next_layer():
    A("s_add_u32 s%d, s%d, 0x%x" % (sF, sF, LAYER_STRIDE))
    A("s_addc_u32 s%d, s%d, 0" % (sF + 1, sF + 1))
    A("s_add_u32 s%d, s%d, 1" % (sL, sL))

def build():
    A("s_cmp_ge_u32 s2, 256")
    A("s_cbranch_scc1 L_end")
    A("s_load_dwordx16 s[16:31], s[0:1], 0")
    A("s_load_dwordx8 s[32:39], s[0:1], 64")
    A("s_load_dwordx2 s[40:41], s[0:1], 96")
    A("s_and_b32 s%d, s2, 7" % sG)
    A("s_lshr_b32 s%d, s2, 3" % sS)
    A("v_and_b32 %s, 63, v0" % v(vLANE))
    A("v_lshrrev_b32 %s, 6, v0" % v(vT0))
    nop(1)
    A("v_readfirstlane_b32 s%d, %s" % (sW, v(vT0)))
    for (r, val) in [(sLOG2E, f2u(1.4426950408889634)), (sSCALE, f2u(0.08838834764831845)), (sINV512, f2u(1.0 / 512)),
                     (sPLO, 0x05040100), (sPHI, 0x07060302),
                     (sC1, f2u(-2 * 0.7978845608028654 * 1.4426950408889634)),
                     (sC2, f2u(-2 * 0.7978845608028654 * 0.044715 * 1.4426950408889634)), (sEPS, f2u(1e-5))]:
        A("s_mov_b32 s%d, 0x%08x" % (r, val))
    A("v_and_b32 %s, 15, %s" % (v(vT1), v(vLANE)))
    A("v_lshrrev_b32 %s, 4, %s" % (v(vT2), v(vLANE)))
    A("s_cmp_eq_u32 s%d, 4" % sW)
    A("s_cbranch_scc1 L_comm")

    A.c("=========== compute waves prologue")
    A("s_lshl_b32 s%d, s%d, 24" % (sT0, sG))
    A("s_lshl_b32 s%d, s%d, 15" % (sT1, sS))
    A("s_add_u32 s%d, s%d, s%d" % (sT0, sT0, sT1))
    A("s_lshl_b32 s%d, s%d, 13" % (sT1, sW))
    A("s_add_u32 s%d, s%d, s%d" % (sT0, sT0, sT1))
    A("s_add_u32 s%d, s%d, %d" % (sT0, sT0, 61440 * 256))
    A("v_lshlrev_b32 %s, 8, %s" % (v(vT3), v(vT1)))
    A("v_lshl_add_u32 %s, %s, 4, %s" % (v(vT3), v(vT2), v(vT3)))
    A("v_add_u32 %s, 0x1000, %s" % (v(vT4), v(vT3)))
    A("s_waitcnt lgkmcnt(0)")
    stamp("start", loop=False)
    A("s_load_dword s%d, %s, 0" % (sE, sr(sWS)))
    A("s_add_u32 s%d, s%d, s%d" % (sKB, sK, sT0))
    A("s_addc_u32 s%d, s%d, 0" % (sKB + 1, sK + 1))
    A("s_add_u32 s%d, s%d, s%d" % (sVB, sV, sT0))
    A("s_addc_u32 s%d, s%d, 0" % (sVB + 1, sV + 1))
    for T in range(2):
        for c in range(4):
            A("global_load_dwordx4 %s, %s, %s offset:%d%s" % (vr(vK + (T * 4 + c) * 4, 4), v(vT3 if T == 0 else vT4), sr(sKB), c * 64, NT))
    A("v_lshlrev_b32 %s, 10, %s" % (v(vT3), v(vT2)))
    A("v_lshl_add_u32 %s, %s, 4, %s" % (v(vT3), v(vT1), v(vT3)))
    A("v_add_u32 %s, 0x1000, %s" % (v(vT4), v(vT3)))
    VRAW = vWO
    for j in range(8):
        A("global_load_dwordx4 %s, %s, %s offset:%d%s" % (vr(VRAW + 4 * j, 4), v(vT3 if j < 4 else vT4), sr(sVB), (j % 4) * 256, NT))
    A("v_and_b32 %s, 3, %s" % (v(vT3), v(vT1)))
    A("v_lshlrev_b32 %s, 8, %s" % (v(vQRD), v(vT3)))
    A("v_lshl_add_u32 %s, %s, 4, %s" % (v(vQRD), v(vT2), v(vQRD)))
    A("v_add_u32 %s, %d, %s" % (v(vQRD), L_Q, v(vQRD)))
    A("v_lshrrev_b32 %s, 2, %s" % (v(vT3), v(vT1)))
    A("v_lshl_add_u32 %s, %s, 3, %s" % (v(vT3), v(vT2), v(vT3)))
    A("v_lshlrev_b32 %s, 4, %s" % (v(vTR1), v(vT3)))
    A("v_and_b32 %s, 1, %s" % (v(vT4), v(vT1)))
    A("v_lshl_add_u32 %s, %s, 3, %s" % (v(vTR1), v(vT4), v(vTR1)))
    A("v_and_b32 %s, 2, %s" % (v(vT4), v(vT1)))
    A("v_lshl_add_u32 %s, %s, 11, %s" % (v(vTR1), v(vT4), v(vTR1)))
    A("v_and_b32 %s, 1, %s" % (v(vT4), v(vT1)))
    A("v_lshlrev_b32 %s, 4, %s" % (v(vXNR), v(vT2)))
    A("v_lshl_add_u32 %s, %s, 9, %s" % (v(vXNR), v(vT4), v(vXNR)))
    A("v_add_u32 %s, %d, %s" % (v(vXNR), L_XN + 1024, v(vXNR)))
    A("v_lshrrev_b32 %s, 3, v0" % v(vT3))
    A("s_lshl_b32 s%d, s%d, 5" % (sT1, sG))
    A("v_add_u32 %s, s%d, %s" % (v(vT3), sT1, v(vT3)))
    A("v_lshlrev_b32 %s, 5, %s" % (v(vT3), v(vT3)))
    A("v_add_u32 %s, s%d, %s" % (v(vT3), sS, v(vT3)))
    A("v_lshlrev_b32 %s, 7, %s" % (v(vT3), v(vT3)))
    A("v_and_b32 %s, 7, v0" % v(vT4))
    A("v_lshl_add_u32 %s, %s, 4, %s" % (v(vPOST), v(vT4), v(vT3)))
    A("s_lshl_b32 s%d, s%d, 2" % (sT0, sG))
    A("s_add_u32 s%d, s%d, s%d" % (sT0, sT0, sW))
    A("s_lshl_b32 s%d, s%d, 5" % (sT0, sT0))
    A("s_add_u32 s%d, s%d, s%d" % (sT0, sT0, sS))
    A("s_lshl_b32 s%d, s%d, 4" % (sT0, sT0))
    A("s_add_u32 s%d, s%d, 0x%x" % (sT0, sT0, ML_OFF))
    A("v_mov_b32 %s, s%d" % (v(vMLST), sT0))
    A("s_mul_i32 s%d, s%d, %d" % (sT1, sW, AT_STRIDE))
    A("s_add_u32 s%d, s%d, %d" % (sT1, sT1, L_AT))
    A("v_lshlrev_b32 %s, 9, %s" % (v(vATW), v(vT1)))
    A("v_lshl_add_u32 %s, %s, 4, %s" % (v(vATW), v(vT2), v(vATW)))
    A("v_add_u32 %s, s%d, %s" % (v(vATW), sT1, v(vATW)))
    A("s_lshl_b32 s%d, s%d, 9" % (sT1, sW))
    A("s_add_u32 s%d, s%d, %d" % (sT1, sT1, L_AT))
    A("v_lshlrev_b32 %s, 3, %s" % (v(vATR), v(vLANE)))
    A("v_add_u32 %s, s%d, %s" % (v(vATR), sT1, v(vATR)))
    A("s_mov_b32 s%d, 0x000f000f" % sM)
    A("s_mov_b32 s%d, 0x000f000f" % (sM + 1))
    tags_setup()
    A("s_waitcnt vmcnt(0)")
    stamp("kv_landed", loop=False)
    for i in range(8):
        q = i // 2
        sel = sPLO if i % 2 == 0 else sPHI
        for p in range(4):
            A("v_perm_b32 %s, %s, %s, s%d" % (v(vVT + 4 * i + p), v(VRAW + 4 * (2 * p + 1) + q), v(VRAW + 4 * (2 * p) + q), sel))
    A("s_lshl_b32 s%d, s%d, 2" % (sT0, sG))
    A("s_lshr_b32 s%d, s%d, 3" % (sT1, sS))
    A("s_add_u32 s%d, s%d, s%d" % (sT0, sT0, sT1))
    A("s_lshl_b32 s%d, s%d, 7" % (sT0, sT0))
    A("s_and_b32 s%d, s%d, 7" % (sT1, sS))
    A("s_add_u32 s%d, s%d, s%d" % (sT0, sT0, sT1))
    A("s_lshl_b32 s%d, s%d, 10" % (sT0, sT0))
    A("v_lshlrev_b32 %s, 2, v0" % v(vT0))
    A("v_add_u32 %s, s%d, %s" % (v(vT0), sT0, v(vT0)))
    for k in range(16):
        if k:
            A("v_add_u32 %s, 0x2000, %s" % (v(vT0), v(vT0)))
        A("global_load_dword %s, %s, %s%s" % (v(vWO + 16 + k), v(vT0), sr(sWO), NT))

    A.lab("L_cloop")
    A.c("================= attention")
    A("s_barrier")
    Q = vB
    for c in range(4):
        A("ds_read_b128 %s, %s offset:%d" % (vr(Q + 4 * c, 4), v(vQRD), c * 64))
    lf = first_begin()
    A("v_mov_b32 %s, %d" % (v(vT4), L_MODE))
    A("ds_read_b32 %s, %s" % (v(vT3), v(vT4)))
    A("s_waitcnt lgkmcnt(0)")
    A("v_readfirstlane_b32 s%d, %s" % (sMODE, v(vT3)))
    A.lab(lf)
    stamp("b1")
    S = vS0
    for c in range(4):
        A("s_waitcnt lgkmcnt(%d)" % (3 - c))
        for T in range(2):
            A("v_mfma_f32_16x16x32_bf16 %s, %s, %s, %s" % (vr(S + 4 * T, 4), vr(vK + (T * 4 + c) * 4, 4), vr(Q + 4 * c, 4), "0" if c == 0 else vr(S + 4 * T, 4)))
    nop(8); nop(2)
    P = vS0 + 8
    for rnd in range(2):
        for i in range(4):
            A("v_cvt_pk_bf16_f32 %s, %s, %s" % (v(P + i), v(S + 2 * i), v(S + 2 * i + 1)))
        for i in range(4):
            A("v_lshlrev_b32 %s, 16, %s" % (v(S + 2 * i), v(P + i)))
            A("v_and_b32 %s, 0xffff0000, %s" % (v(S + 2 * i + 1), v(P + i)))
        if rnd == 0:
            for i in range(8):
                A("v_mul_f32 %s, s%d, %s" % (v(S + i), sSCALE, v(S + i)))
    A("v_max3_f32 %s, %s, %s, %s" % (v(vT0), v(S), v(S + 1), v(S + 2)))
    A("v_max3_f32 %s, %s, %s, %s" % (v(vT1), v(S + 3), v(S + 4), v(S + 5)))
    A("v_max3_f32 %s, %s, %s, %s" % (v(vT0), v(S + 6), v(S + 7), v(vT0)))
    A("v_max_f32 %s, %s, %s" % (v(vT0), v(vT0), v(vT1)))
    xrow([vT0], [vT1], "max")
    A("v_mul_f32 %s, s%d, %s" % (v(vT2), sLOG2E, v(vT0)))
    for i in range(8):
        A("v_fma_f32 %s, %s, s%d, -%s" % (v(S + i), v(S + i), sLOG2E, v(vT2)))
    for i in range(8):
        A("v_exp_f32 %s, %s" % (v(S + i), v(S + i)))
    nop(1)
    for i in range(4):
        A("v_cvt_pk_bf16_f32 %s, %s, %s" % (v(P + i), v(S + 2 * i), v(S + 2 * i + 1)))
    A("v_add_f32 %s, %s, %s" % (v(vT1), v(S), v(S + 1)))
    A("v_add_f32 %s, %s, %s" % (v(vT2), v(S + 2), v(S + 3)))
    D = vA
    for i in range(8):
        A("v_mfma_f32_16x16x32_bf16 %s, %s, %s, 0" % (vr(D + 4 * i, 4), vr(vVT + 4 * i, 4), vr(P, 4)))
        if i == 0:
            A("v_add_f32 %s, %s, %s" % (v(vT3), v(S + 4), v(S + 5)))
            A("v_add_f32 %s, %s, %s" % (v(vT4), v(S + 6), v(S + 7)))
        if i == 1:
            A("v_add_f32 %s, %s, %s" % (v(vT1), v(vT1), v(vT2)))
            A("v_add_f32 %s, %s, %s" % (v(vT3), v(vT3), v(vT4)))
        if i == 2:
            A("v_add_f32 %s, %s, %s" % (v(vT1), v(vT1), v(vT3)))
        if i == 3:
            xrow([vT1], [vT2], "add")
    A("s_mul_i32 s%d, s%d, %d" % (sT1, sW, AT_STRIDE))
    A("s_add_u32 s%d, s%d, %d" % (sT1, sT1, L_AT + 2048))
    A("v_lshlrev_b32 %s, 3, %s" % (v(vT2), v(vLANE)))
    A("v_add_u32 %s, s%d, %s" % (v(vT2), sT1, v(vT2)))
    A("s_mov_b64 exec, 0xf")
    A("ds_write_b64 %s, %s" % (v(vT2), vr(vT0, 2)))
    A("s_mov_b64 exec, %s" % sr(sM))
    for i in range(8):
        if i == 6: nop(4)
        A("ds_write_b128 %s, %s offset:%d" % (v(vATW), vr(D + 4 * i, 4), i * 64))
    A("s_mov_b64 exec, -1")
    A("s_lshl_b32 s%d, s%d, 3" % (sT1, sW))
    A("s_add_u32 s%d, s%d, %d" % (sT1, sT1, L_AT + 2048))
    A("v_mov_b32 %s, s%d" % (v(vT2), sT1))
    G = vS0
    set_tags(G)
    set_tags(G + 4)
    A("v_add_u32 %s, 0x%x, %s" % (v(vT0), PO_OFF, v(vPOST)))
    A("s_waitcnt lgkmcnt(0)")
    A("s_barrier")
    R = vA
    for w in range(4):
        A("ds_read_b64 %s, %s offset:%d" % (vr(R + 8 + 2 * w, 2), v(vT2), w * AT_STRIDE))
    for w in range(4):
        A("ds_read_b64 %s, %s offset:%d" % (vr(R + 2 * w, 2), v(vATR), w * AT_STRIDE))
    A("s_waitcnt lgkmcnt(4)")
    A("v_max_f32 %s, %s, %s" % (v(G + 4), v(R + 8), v(R + 10)))
    A("v_max3_f32 %s, %s, %s, %s" % (v(G + 4), v(R + 12), v(R + 14), v(G + 4)))
    for w in range(4):
        A("v_sub_f32 %s, %s, %s" % (v(R + 8 + 2 * w), v(R + 8 + 2 * w), v(G + 4)))
    for w in range(4):
        A("v_mul_f32 %s, s%d, %s" % (v(R + 8 + 2 * w), sLOG2E, v(R + 8 + 2 * w)))
    for w in range(4):
        A("v_exp_f32 %s, %s" % (v(R + 8 + 2 * w), v(R + 8 + 2 * w)))
    A("s_waitcnt lgkmcnt(0)")
    A("v_mul_f32 %s, %s, %s" % (v(G), v(R + 8), v(R)))
    A("v_mul_f32 %s, %s, %s" % (v(G + 1), v(R + 8), v(R + 1)))
    A("v_mul_f32 %s, %s, %s" % (v(G + 5), v(R + 8), v(R + 9)))
    for w in range(1, 4):
        A("v_fmac_f32 %s, %s, %s" % (v(G), v(R + 8 + 2 * w), v(R + 2 * w)))
        A("v_fmac_f32 %s, %s, %s" % (v(G + 1), v(R + 8 + 2 * w), v(R + 2 * w + 1)))
        A("v_fmac_f32 %s, %s, %s" % (v(G + 5), v(R + 8 + 2 * w), v(R + 9 + 2 * w)))
    publish(G, vT0)
    A("s_mov_b64 exec, 1")
    publish(G + 4, vMLST)
    A("s_mov_b64 exec, -1")
    stamp("p_pub")
    W1RAW = vB + 32
    lf = first_begin()
    A.c("unpack wo (wait), issue w1/w2/b1 loads")
    A("s_waitcnt vmcnt(2)")
    for k in range(16):
        A("v_lshlrev_b32 %s, 16, %s" % (v(vWO + k), v(vWO + 16 + k)))
        A("v_and_b32 %s, 0xffff0000, %s" % (v(vWO + 16 + k), v(vWO + 16 + k)))
    A("s_min_u32 s%d, s%d, 27" % (sT0, sS))
    A("s_mul_i32 s%d, s%d, 28" % (sT1, sG))
    A("s_add_u32 s%d, s%d, s%d" % (sT0, sT0, sT1))
    A("s_lshl_b32 s%d, s%d, 4" % (sT1, sT0))
    A("v_mul_u32_u24 %s, 0xe00, v0" % v(vT3))
    A("v_add_u32 %s, s%d, %s" % (v(vT3), sT1, v(vT3)))
    A("global_load_dwordx4 %s, %s, %s%s" % (vr(W1RAW, 4), v(vT3), sr(sW1), NT))
    A("v_add_u32 %s, 0x%x, %s" % (v(vT3), 256 * 3584, v(vT3)))
    A("global_load_dwordx4 %s, %s, %s%s" % (vr(W1RAW + 4, 4), v(vT3), sr(sW1), NT))
    A("v_and_b32 %s, 7, %s" % (v(vT3), v(vLANE)))
    A("v_lshlrev_b32 %s, 1, %s" % (v(vT3), v(vT3)))
    A("v_add_u32 %s, s%d, %s" % (v(vT3), sT1, v(vT3)))
    A("global_load_ushort %s, %s, %s" % (v(vB1), v(vT3), sr(sB1)))
    A("s_lshl_b32 s%d, s%d, 13" % (sT1, sT0))
    A("v_lshlrev_b32 %s, 2, v0" % v(vT3))
    A("v_add_u32 %s, s%d, %s" % (v(vT3), sT1, v(vT3)))
    A("v_add_u32 %s, 0x1000, %s" % (v(vT4), v(vT3)))
    for k in range(8):
        A("global_load_dword %s, %s, %s offset:%d%s" % (v(vW2 + 8 + k), v(vT3 if k < 4 else vT4), sr(sW2), (k % 4) * 1024, NT))
    A.lab(lf)

    A.c("================= o-proj")
    G = vS0 + 8
    T = vS0
    set_tags(G)
    A("v_mov_b32 %s, %d" % (v(vT1), L_O))
    A("v_add_u32 %s, 0x%x, %s" % (v(vT0), RS_OFF, v(vPOST)))
    A("s_barrier")
    O = vA
    for i in range(4):
        A("ds_read_b128 %s, %s offset:%d" % (vr(O + 4 * i, 4), v(vT1), 16 * i))
    stamp("b3")
    for i in range(4):
        A("s_waitcnt lgkmcnt(%d)" % (3 - i))
        for kk in range(4):
            k = 4 * i + kk
            a0, a1 = (G, G + 1) if k % 2 == 0 else (T + 4, T + 5)
            ins = "v_mul_f32" if k < 2 else "v_fmac_f32"
            A("%s %s, %s, %s" % (ins, v(a0), v(O + k), v(vWO + k)))
            A("%s %s, %s, %s" % (ins, v(a1), v(O + k), v(vWO + 16 + k)))
    A("v_add_f32 %s, %s, %s" % (v(G), v(G), v(T + 4)))
    A("v_add_f32 %s, %s, %s" % (v(G + 1), v(G + 1), v(T + 5)))
    publish(G, vT0)
    stamp("rs_pub0")

    A.c("================= MLP")
    lf = first_begin()
    A("s_waitcnt vmcnt(0)")
    A("v_lshlrev_b32 %s, 4, v0" % v(vT0))
    A("ds_write_b128 %s, %s offset:%d" % (v(vT0), vr(W1RAW, 4), L_W1))
    A("ds_write_b128 %s, %s offset:%d" % (v(vT0), vr(W1RAW + 4, 4), L_W1 + 4096))
    for k in range(8):
        A("v_lshlrev_b32 %s, 16, %s" % (v(vW2 + k), v(vW2 + 8 + k)))
        A("v_and_b32 %s, 0xffff0000, %s" % (v(vW2 + 8 + k), v(vW2 + 8 + k)))
    A("v_lshlrev_b32 %s, 16, %s" % (v(vB1), v(vB1)))
    A("s_waitcnt lgkmcnt(0)")
    A.lab(lf)
    ln = notfirst_begin()
    prefetch_W1()
    A.lab(ln)
    A("v_add_u32 %s, 0x%x, %s" % (v(vT0), RS_OFF + 0x100000, v(vPOST)))
    A("s_barrier")
    lf = first_begin()
    prefetch_W1()
    A.lab(lf)
    stamp("b4")
    gemv(vS0, 8)
    T = vS0
    A("v_add_f32_dpp %s, %s, %s row_ror:8%s" % (v(T), v(T + 1), v(T), DPPM))
    G = vS0 + 8
    set_tags(G)
    A("v_cvt_pk_bf16_f32 %s, %s, %s" % (v(T), v(T), v(T)))
    A("v_and_b32 %s, 0xffff0000, %s" % (v(T), v(T)))
    A("v_add_f32 %s, %s, %s" % (v(T), v(T), v(vB1)))
    A("v_cvt_pk_bf16_f32 %s, %s, %s" % (v(T), v(T), v(T)))
    A("v_and_b32 %s, 0xffff0000, %s" % (v(T), v(T)))
    A("v_mul_f32 %s, %s, %s" % (v(T + 1), v(T), v(T)))
    A("v_mov_b32 %s, s%d" % (v(T + 2), sC1))
    A("v_fmac_f32 %s, s%d, %s" % (v(T + 2), sC2, v(T + 1)))
    A("v_mul_f32 %s, %s, %s" % (v(T + 2), v(T + 2), v(T)))
    A("v_exp_f32 %s, %s" % (v(T + 2), v(T + 2)))
    nop(1)
    A("v_add_f32 %s, 1.0, %s" % (v(T + 2), v(T + 2)))
    A("v_rcp_f32 %s, %s" % (v(T + 2), v(T + 2)))
    nop(1)
    A("v_mul_f32 %s, %s, %s" % (v(T), v(T), v(T + 2)))
    A("v_cvt_pk_bf16_f32 %s, %s, %s" % (v(T), v(T), v(T)))
    A("v_and_b32 %s, 0xffff0000, %s" % (v(T), v(T)))
    A("s_cmp_lt_u32 s%d, 28" % sS)
    A("s_cbranch_scc1 L_hok")
    A("v_mov_b32 %s, 0" % v(T))
    A.lab("L_hok")
    nop(1)
    for k in range(8):
        A("v_readlane_b32 s%d, %s, %d" % (sO + k, v(T), k))
    A("v_mul_f32 %s, s%d, %s" % (v(G), sO, v(vW2)))
    A("v_mul_f32 %s, s%d, %s" % (v(G + 1), sO, v(vW2 + 8)))
    A("v_mul_f32 %s, s%d, %s" % (v(T + 4), sO + 1, v(vW2 + 1)))
    A("v_mul_f32 %s, s%d, %s" % (v(T + 5), sO + 1, v(vW2 + 9)))
    for k in range(2, 8, 2):
        A("v_fmac_f32 %s, s%d, %s" % (v(G), sO + k, v(vW2 + k)))
        A("v_fmac_f32 %s, s%d, %s" % (v(G + 1), sO + k, v(vW2 + 8 + k)))
        A("v_fmac_f32 %s, s%d, %s" % (v(T + 4), sO + k + 1, v(vW2 + k + 1)))
        A("v_fmac_f32 %s, s%d, %s" % (v(T + 5), sO + k + 1, v(vW2 + 9 + k)))
    A("v_add_f32 %s, %s, %s" % (v(G), v(G), v(T + 4)))
    A("v_add_f32 %s, %s, %s" % (v(G + 1), v(G + 1), v(T + 5)))
    publish(G, vT0)
    stamp("rs_pub1")
    next_layer()
    A("s_cmp_lt_u32 s%d, 2" % sL)
    A("s_cbranch_scc1 L_cloop")
    dump_stamps()
    A("s_endpgm")

    A.lab("L_comm")
    A("s_setprio 3")
    A("v_lshrrev_b32 %s, 2, %s" % (v(vT3), v(vT1)))
    A("v_lshl_add_u32 %s, %s, 3, %s" % (v(vT3), v(vT2), v(vT3)))
    A("v_and_b32 %s, 3, %s" % (v(vT4), v(vT1)))
    A("v_lshlrev_b32 %s, 5, %s" % (v(vTRA), v(vT3)))
    A("v_lshl_add_u32 %s, %s, 3, %s" % (v(vTRA), v(vT4), v(vTRA)))
    A("v_lshlrev_b32 %s, 4, %s" % (v(vXNR), v(vT2)))
    A("v_add_u32 %s, %d, %s" % (v(vXNR), L_XN, v(vXNR)))
    A("v_lshrrev_b32 %s, 1, %s" % (v(vT3), v(vLANE)))
    A("v_lshlrev_b32 %s, 13, %s" % (v(vT3), v(vT3)))
    A("v_and_b32 %s, 1, %s" % (v(vT4), v(vLANE)))
    A("v_lshl_add_u32 %s, %s, 4, %s" % (v(vT3), v(vT4), v(vT3)))
    A("s_lshl_b32 s%d, s%d, 10" % (sT0, sG))
    A("s_lshl_b32 s%d, s%d, 5" % (sT1, sS))
    A("s_add_u32 s%d, s%d, s%d" % (sT0, sT0, sT1))
    A("v_add_u32 %s, s%d, %s" % (v(vT3), sT0, v(vT3)))
    A("v_lshlrev_b32 %s, 4, %s" % (v(vXNW), v(vLANE)))
    A("v_and_b32 %s, 7, %s" % (v(vT4), v(vLANE)))
    A("v_lshlrev_b32 %s, 2, %s" % (v(vT4), v(vT4)))
    A("v_add_u32 %s, s%d, %s" % (v(vT4), sT1, v(vT4)))
    A("s_waitcnt lgkmcnt(0)")
    stamp("start", loop=False)
    A("s_load_dword s%d, %s, 0" % (sE, sr(sWS)))
    A("global_load_dwordx4 %s, %s, %s" % (vr(vX, 4), v(vXNW), sr(sX)))
    for i in range(16):
        if i:
            A("v_add_u32 %s, 0x40000, %s" % (v(vT3), v(vT3)))
        A("global_load_dwordx4 %s, %s, %s%s" % (vr(vK + 4 * i, 4), v(vT3), sr(sWQ), NT))
    A("global_load_dword %s, %s, %s" % (v(vXR1), v(vT4), sr(sX)))
    A("global_load_dword %s, %s, %s" % (v(vB21), v(vT4), sr(sB2)))
    A("s_lshl_b32 s%d, s%d, 11" % (sT0, sG))
    A("v_lshlrev_b32 %s, 5, %s" % (v(vQLD), v(vLANE)))
    A("v_add_u32 %s, s%d, %s" % (v(vQLD), sT0, v(vQLD)))
    A("v_add_u32 %s, 0x%x, %s" % (v(vAGLD), AG_OFF, v(vQLD)))
    A("s_lshl_b32 s%d, s%d, 6" % (sT1, sS))
    A("s_add_u32 s%d, s%d, s%d" % (sT0, sT0, sT1))
    A("v_and_b32 %s, 12, %s" % (v(vQST), v(vLANE)))
    A("v_lshlrev_b32 %s, 2, %s" % (v(vQST), v(vQST)))
    A("v_add_u32 %s, s%d, %s" % (v(vQST), sT0, v(vQST)))
    A("s_add_u32 s%d, s%d, 0x%x" % (sT0, sT0, AG_OFF))
    A("v_and_b32 %s, 6, %s" % (v(vAGST), v(vLANE)))
    A("v_lshlrev_b32 %s, 3, %s" % (v(vAGST), v(vAGST)))
    A("v_add_u32 %s, s%d, %s" % (v(vAGST), sT0, v(vAGST)))
    A("s_lshl_b32 s%d, s%d, 10" % (sT0, sS))
    A("s_add_u32 s%d, s%d, 0x%x" % (sT0, sT0, XB_OFF))
    A("v_lshlrev_b32 %s, 4, %s" % (v(vXLD), v(vLANE)))
    A("v_add_u32 %s, s%d, %s" % (v(vXLD), sT0, v(vXLD)))
    A("s_lshl_b32 s%d, s%d, 7" % (sT1, sG))
    A("s_add_u32 s%d, s%d, s%d" % (sT0, sT0, sT1))
    A("v_and_b32 %s, 7, %s" % (v(vXST), v(vLANE)))
    A("v_lshlrev_b32 %s, 4, %s" % (v(vXST), v(vXST)))
    A("v_add_u32 %s, s%d, %s" % (v(vXST), sT0, v(vXST)))
    A("s_lshl_b32 s%d, s%d, 5" % (sT1, sG))
    A("s_add_u32 s%d, s%d, s%d" % (sT1, sT1, sS))
    A("s_lshl_b32 s%d, s%d, 12" % (sT1, sT1))
    A("v_lshlrev_b32 %s, 4, %s" % (v(vPLD), v(vLANE)))
    A("v_add_u32 %s, s%d, %s" % (v(vPLD), sT1, v(vPLD)))
    A("s_lshl_b32 s%d, s%d, 2" % (sT1, sG))
    A("s_lshr_b32 s%d, s%d, 3" % (sT2, sS))
    A("s_add_u32 s%d, s%d, s%d" % (sT1, sT1, sT2))
    A("s_lshl_b32 s%d, s%d, 9" % (sT1, sT1))
    A("s_add_u32 s%d, s%d, 0x%x" % (sT1, sT1, ML_OFF))
    A("v_lshrrev_b32 %s, 3, %s" % (v(vT3), v(vLANE)))
    A("v_lshlrev_b32 %s, 4, %s" % (v(vMLLD), v(vT3)))
    A("v_add_u32 %s, s%d, %s" % (v(vMLLD), sT1, v(vMLLD)))
    tags_setup()
    for i in range(16):
        A("s_waitcnt vmcnt(%d)" % (17 - i))
        A("ds_write_b128 %s, %s offset:%d" % (v(vXNW), vr(vK + 4 * i, 4), L_WQ + i * 1024))
    stamp("wq_staged", loop=False)
    prefetch_WQ()
    A("s_waitcnt vmcnt(0)")
    A("v_lshlrev_b32 %s, 16, %s" % (v(vXR0), v(vXR1)))
    A("v_and_b32 %s, 0xffff0000, %s" % (v(vXR1), v(vXR1)))
    A("v_lshlrev_b32 %s, 16, %s" % (v(vB20), v(vB21)))
    A("v_and_b32 %s, 0xffff0000, %s" % (v(vB21), v(vB21)))
    A.lab("L_mloop")
    layernorm([vX, vX + 1, vX + 2, vX + 3], L_XN)
    gemv(vS0, 16)
    T = vS0 + 4
    for e in range(4):
        A("v_mov_b32_dpp %s, %s quad_perm:[%d,%d,%d,%d]%s" % (v(T + 4 + e), v(vS0), e, e, e, e, DPPM))
    A("v_mov_b32 %s, s%d" % (v(T + 2), sTA))
    A("v_mov_b32 %s, s%d" % (v(T + 3), sTBX))
    A("v_cvt_pk_bf16_f32 %s, %s, %s" % (v(T), v(T + 4), v(T + 5)))
    A("v_cvt_pk_bf16_f32 %s, %s, %s" % (v(T + 1), v(T + 6), v(T + 7)))
    A("s_mov_b64 exec, 0x1111")
    publish(T, vQST)
    A("s_mov_b64 exec, -1")
    stamp("q_pub")
    Qg = vA
    poll([(Qg, vQLD, 0), (Qg + 4, vQLD, 16)], xcc=True)
    lf = first_begin()
    A("v_xor_b32 %s, s%d, %s" % (v(vT4), sTBX, v(Qg + 3)))
    A("v_xor_b32 %s, s%d, %s" % (v(vT3), sTBX, v(Qg + 7)))
    A("v_or_b32 %s, %s, %s" % (v(vT4), v(vT4), v(vT3)))
    A("v_cmp_ne_u32 vcc, 0, %s" % v(vT4))
    A("s_cmp_eq_u64 vcc, 0")
    A("s_cselect_b32 s%d, 1, 0" % sMODE)
    A("v_mov_b32 %s, s%d" % (v(vT3), sMODE))
    A("v_mov_b32 %s, %d" % (v(vT4), L_MODE))
    A("ds_write_b32 %s, %s" % (v(vT4), v(vT3)))
    A.lab(lf)
    A("v_mov_b32 %s, %s" % (v(Qg + 2), v(Qg + 4)))
    A("v_mov_b32 %s, %s" % (v(Qg + 3), v(Qg + 5)))
    A("ds_write_b128 %s, %s offset:%d" % (v(vXNW), vr(Qg, 4), L_Q))
    A("v_add_u32 %s, 0x%x, %s" % (v(vT0), PO_OFF, v(vPLD)))
    A("s_waitcnt lgkmcnt(0)")
    A("s_barrier")
    stamp("q_got")
    A("s_barrier")
    O = vB
    ML = O + 16
    poll([(ML + 4 * i, vMLLD, 128 * i) for i in range(4)] + [(O + 4 * i, vT0, 1024 * i) for i in range(4)])
    stamp("p_got")
    A("v_max_f32 %s, %s, %s" % (v(vT0), v(ML), v(ML + 4)))
    A("v_max3_f32 %s, %s, %s, %s" % (v(vT0), v(ML + 8), v(ML + 12), v(vT0)))
    dpp_reduce([vT0], ["row_ror:8"], "max")
    xrow([vT0], [vT1], "max")
    for i in range(4):
        A("v_sub_f32 %s, %s, %s" % (v(ML + 4 * i), v(ML + 4 * i), v(vT0)))
    for i in range(4):
        A("v_mul_f32 %s, s%d, %s" % (v(ML + 4 * i), sLOG2E, v(ML + 4 * i)))
    for i in range(4):
        A("v_exp_f32 %s, %s" % (v(ML + 4 * i), v(ML + 4 * i)))
    T = vS0
    A("v_lshlrev_b32 %s, 3, %s" % (v(vT2), v(vLANE)))
    A("v_mul_f32 %s, %s, %s" % (v(T), v(ML), v(O)))
    A("v_mul_f32 %s, %s, %s" % (v(T + 1), v(ML), v(O + 1)))
    A("v_mul_f32 %s, %s, %s" % (v(T + 2), v(ML), v(ML + 1)))
    for i in range(1, 4):
        A("v_fmac_f32 %s, %s, %s" % (v(T), v(ML + 4 * i), v(O + 4 * i)))
        A("v_fmac_f32 %s, %s, %s" % (v(T + 1), v(ML + 4 * i), v(O + 4 * i + 1)))
        A("v_fmac_f32 %s, %s, %s" % (v(T + 2), v(ML + 4 * i), v(ML + 4 * i + 1)))
    dpp_reduce([T, T + 1, T + 2], ["row_ror:8"], "add")
    xrow([T, T + 1, T + 2], [T + 4, T + 5, T + 6], "add")
    A("v_rcp_f32 %s, %s" % (v(T + 2), v(T + 2)))
    nop(1)
    A("v_mul_f32 %s, %s, %s" % (v(T), v(T), v(T + 2)))
    A("v_mul_f32 %s, %s, %s" % (v(T + 1), v(T + 1), v(T + 2)))
    A("v_cvt_pk_bf16_f32 %s, %s, %s" % (v(T + 2), v(T), v(T + 1)))
    A("v_lshlrev_b32 %s, 16, %s" % (v(T), v(T + 2)))
    A("v_and_b32 %s, 0xffff0000, %s" % (v(T + 1), v(T + 2)))
    A("s_mov_b64 exec, 0xff")
    A("ds_write_b64 %s, %s offset:%d" % (v(vT2), vr(T, 2), L_O))
    A("s_mov_b64 exec, -1")
    A("s_waitcnt lgkmcnt(0)")
    A("s_barrier")
    reduce_hops(0, mlp=False)
    stamp("ag1_pub")
    X = poll_AG(0, vA + 8)
    stamp("ag1_got")
    layernorm(X, L_XN + 1024)
    A("s_waitcnt lgkmcnt(0)")
    A("s_barrier")
    reduce_hops(1, mlp=True)
    prefetch_WQ()
    X = poll_AG(1, vA + 8)
    for i in range(4):
        A("v_mov_b32 %s, %s" % (v(vX + i), v(X[i])))
    stamp("ag2_got")
    next_layer()
    A("s_branch L_mloop")
    A.lab("L_final")
    if os.environ.get("DIAG"):
        A("s_cmp_eq_u32 s%d, %s" % (sMODE, os.environ["DIAG"]))
        A("s_cbranch_scc0 L_nodelay")
        for i in range(12):
            A("s_sleep 64")
        A.lab("L_nodelay")
    T = vS0
    stamp("ag2_got")
    l = A.new("Lnoout")
    A("s_cmp_lg_u32 s%d, 0" % sG)
    A("s_cbranch_scc1 %s" % l)
    A("s_lshl_b32 s%d, s%d, 5" % (sT0, sS))
    A("v_lshlrev_b32 %s, 2, %s" % (v(vT0), v(vLANE)))
    A("v_add_u32 %s, s%d, %s" % (v(vT0), sT0, v(vT0)))
    A("s_mov_b64 exec, 0xff")
    A("global_store_dword %s, %s, %s" % (v(vT0), v(T), sr(sOUT)))
    A("s_mov_b64 exec, -1")
    A("s_cmp_lg_u32 s%d, 0" % sS)
    A("s_cbranch_scc1 %s" % l)
    A("s_add_u32 s%d, s%d, 1" % (sT0, sE))
    A("v_mov_b32 %s, s%d" % (v(vT1), sT0))
    A("v_mov_b32 %s, 0" % v(vT0))
    A("s_mov_b64 exec, 1")
    A("global_store_dword %s, %s, %s" % (v(vT0), v(vT1), sr(sWS)))
    A("s_mov_b64 exec, -1")
    A.lab(l)
    dump_stamps()
    A.lab("L_end")
    A("s_endpgm")

build()
out = HEADER
out += "; Override launch geometry by editing the next line (default: block=256,\n"
out += "; @launch grid=(256,1,1) block=(320,1,1) lds=%d\n" % LDS_SIZE
out += '.amdgcn_target "amdgcn-amd-amdhsa--gfx950"\n.text\n.globl %s_kernel\n.p2align 8\n.type %s_kernel,@function\n%s_kernel:\n' % (NAME, NAME, NAME)
out += "\n".join(A.L) + "\n"
out += """.section .rodata,"a"
.p2align 6
.amdhsa_kernel %s_kernel
  .amdhsa_next_free_vgpr %d
  .amdhsa_next_free_sgpr 102
  .amdhsa_accum_offset %d
  .amdhsa_group_segment_fixed_size 0
  .amdhsa_kernarg_size 104
  .amdhsa_user_sgpr_count 2
  .amdhsa_user_sgpr_kernarg_segment_ptr 1
  .amdhsa_system_sgpr_workgroup_id_x 1
.end_amdhsa_kernel
""" % (NAME, NVGPR, NVGPR)
dst = sys.argv[1] if len(sys.argv) > 1 else "cdna_kernels/%s.s" % NAME
open(dst, "w").write(out)
print("wrote", dst, len(A.L), "lines")
if STAMPS:
    names = PRO + ["-"] * (4 - len(PRO))
    for n in LOO: names += [n + "_0", n + "_1"]
    open(dst + ".stamps", "w").write(",".join(names))
```

```python
import sys, struct, os

NAME = "interleave_layers__sliding_block_cached__dense_activation_gelu__decode"
HEADER = open("cdna_kernels/%s.s.ref" % NAME).read().split("; Override launch geometry")[0]
def f2u(x): return struct.unpack("<I", struct.pack("<f", x))[0]

class Asm:
    def __init__(s): s.L = []; s.n = 0
    def __call__(s, t): s.L.append("    " + t)
    def lab(s, l): s.L.append(l + ":")
    def new(s, p="L"): s.n += 1; return "%s_%d" % (p, s.n)
    def c(s, t): s.L.append("    ; " + t)
A = Asm()
def v(i): return "v%d" % i
def vr(i, n): return "v[%d:%d]" % (i, i + n - 1)
def sr(i, n=2): return "s[%d:%d]" % (i, i + n - 1)

NT = os.environ.get("NTPOL", " nt")
STAMPS = int(os.environ.get("STAMPS", "0"))
SEL = os.environ.get("STSEL", "").split(",")
STW = int(os.environ.get("STW", "0"))

sG, sS, sW = 3, 4, 5
sTA, sTB, sE = 6, 7, 8
sT0, sT1, sT2 = 9, 10, 11
sKB, sVB = 12, 14
sX, sK, sV, sWQ, sWO, sW1, sB1 = 16, 18, 20, 22, 24, 28, 30
sW2, sB2, sOUT, sDBG, sWS = 32, 34, 36, 38, 40
sF = 42
sMODE, sXCC, sTBX, sIT = 44, 45, 46, 48
sM = 50
sLOG2E, sSCALE, sINV512, sPLO, sPHI, sC1, sC2, sEPS = 54, 55, 56, 57, 58, 59, 60, 61
sL = 63
sO = 64

F_OFF = 0x100000
QB_OFF = 0x000000
ML_OFF = 0x004000
AG_OFF = 0x008000
XB_OFF = 0x010000
PO_OFF = 0x100000
RS_OFF = 0x200000
LAYER_STRIDE = 0x400000

L_WQ = 0
L_W1 = 16384
L_XN = 24576
L_Q = L_XN + 2048
L_O = L_Q + 1024
L_MODE = L_O + 64
L_AT = L_MODE + 64
AT_STRIDE = 2080
LDS_SIZE = L_AT + 4 * AT_STRIDE

vLANE = 1
vQLD, vPOST, vPLD, vMLLD, vXLD, vAGLD, vTRA = 2, 3, 4, 5, 7, 8, 9
vXR0, vXR1 = 10, 11
vB1, vB20, vB21 = 12, 13, 14
vXNW, vXNR = 15, 16
vATW, vATR = 17, 18
vTR1 = 19
vT0, vT1, vT2, vT3, vT4, vT5 = 20, 21, 22, 23, 24, 25
vQST, vXST, vAGST = 26, 27, 6
vQRD = 2
vMLST = 4
vX = 28
vK = 32
vVT = 64
vWO = 96
vW2 = 128
vB = 144
vA = 208
vS0 = 240
NVGPR = 256
LIMIT = 400000

PRO = []; LOO = []
def stamp(name, loop=True):
    if not STAMPS: return
    if SEL != [""] and name not in SEL and name != "start": return
    A("s_memrealtime s[82:83]")
    A("s_waitcnt lgkmcnt(0)")
    if not loop:
        if name not in PRO: PRO.append(name)
        A("s_mov_b32 s%d, s82" % (84 + PRO.index(name)))
    else:
        if name not in LOO: LOO.append(name)
        i = 4 + 2 * LOO.index(name)
        assert i + 1 < 18
        A("s_cmp_eq_u32 s%d, 0" % sL)
        A("s_cselect_b32 s%d, s82, s%d" % (84 + i, 84 + i))
        A("s_cselect_b32 s%d, s%d, s82" % (84 + i + 1, 84 + i + 1))
def dump_stamps():
    if not STAMPS: return
    l = A.new("Lst")
    A("s_cmp_lg_u32 s%d, %d" % (sW, STW))
    A("s_cbranch_scc1 %s" % l)
    A("s_cmp_lg_u32 s2, %d" % int(os.environ.get("STWG", "0")))
    A("s_cbranch_scc1 %s" % l)
    A("v_mov_b32 %s, 0" % v(vT0))
    A("s_mov_b64 exec, 1")
    for i in range(1, 17):
        A("s_sub_u32 s%d, s%d, s84" % (sT0, 84 + i))
        A("v_mov_b32 %s, s%d" % (v(vT1), sT0))
        A("global_store_dword %s, %s, %s offset:%d" % (v(vT0), v(vT1), sr(sDBG), 4 * (i - 1)))
        A("s_nop 1")
    A("s_mov_b64 exec, -1")
    A.lab(l)

def nop(n): A("s_nop %d" % (n - 1))
DPPM = " row_mask:0xf bank_mask:0xf"

def dpp_reduce(regs, ctls, op):
    ins = "v_add_f32" if op == "add" else "v_max_f32"
    for ctl in ctls:
        nop(2 if len(regs) == 1 else 1)
        for r in regs:
            A("%s_dpp %s, %s, %s %s%s" % (ins, v(r), v(r), v(r), ctl, DPPM))

def xrow(regs, tmps, op):
    ins = "v_add_f32" if op == "add" else "v_max_f32"
    for sw in ["v_permlane16_swap_b32", "v_permlane32_swap_b32"]:
        for r, t in zip(regs, tmps):
            A("v_mov_b32 %s, %s" % (v(t), v(r)))
        nop(2 if len(regs) == 1 else 1)
        for r, t in zip(regs, tmps):
            A("%s %s, %s" % (sw, v(r), v(t)))
        nop(2 if len(regs) == 1 else 1)
        for r, t in zip(regs, tmps):
            A("%s %s, %s, %s" % (ins, v(r), v(r), v(t)))

def poll(loads, xcc=False):
    acc = vT5
    lp = A.new("Lpoll")
    A("s_mov_b32 s%d, 0" % sIT)
    A.lab(lp)
    for (d, a, off) in loads:
        A("global_load_dwordx4 %s, %s, %s offset:%d sc1" % (vr(d, 4), v(a), sr(sF), off))
    A("s_add_u32 s%d, s%d, 1" % (sIT, sIT))
    A("s_cmp_gt_u32 s%d, %d" % (sIT, LIMIT))
    A("s_cbranch_scc1 L_end")
    n = len(loads)
    for i, (d, a, off) in enumerate(loads):
        A("s_waitcnt vmcnt(%d)" % (n - 1 - i))
        A("v_xor_b32 %s, s%d, %s" % (v(vT3), sTA, v(d + 2)))
        A("v_xor_b32 %s, s%d, %s" % (v(vT4), sTB, v(d + 3)))
        if xcc:
            A("v_lshrrev_b32 %s, 3, %s" % (v(vT4), v(vT4)))
        if i == 0:
            A("v_or_b32 %s, %s, %s" % (v(acc), v(vT3), v(vT4)))
        else:
            A("v_or3_b32 %s, %s, %s, %s" % (v(acc), v(vT3), v(vT4), v(acc)))
    A("v_cmp_ne_u32 vcc, 0, %s" % v(acc))
    A("s_cbranch_vccnz %s" % lp)

def publish(dreg, areg, off=0, fast=True):
    o = " offset:%d" % off if off else ""
    if fast:
        l1 = A.new("Lpf"); l2 = A.new("Lpe")
        A("s_cmp_eq_u32 s%d, 1" % sMODE)
        A("s_cbranch_scc1 %s" % l1)
        A("global_store_dwordx4 %s, %s, %s%s sc1" % (v(areg), vr(dreg, 4), sr(sF), o))
        A("s_branch %s" % l2)
        A.lab(l1)
        A("global_store_dwordx4 %s, %s, %s%s" % (v(areg), vr(dreg, 4), sr(sF), o))
        A.lab(l2)
    else:
        A("global_store_dwordx4 %s, %s, %s%s sc1" % (v(areg), vr(dreg, 4), sr(sF), o))

def set_tags(d):
    A("v_mov_b32 %s, s%d" % (v(d + 2), sTA))
    A("v_mov_b32 %s, s%d" % (v(d + 3), sTB))

def layernorm(X, ldsoff):
    f = [vS0 + i for i in range(8)]
    d = [vS0 + 8 + i for i in range(8)]
    for i in range(4):
        A("v_lshlrev_b32 %s, 16, %s" % (v(f[2 * i]), v(X[i])))
        A("v_and_b32 %s, 0xffff0000, %s" % (v(f[2 * i + 1]), v(X[i])))
    A("v_readfirstlane_b32 s%d, %s" % (sT2, v(f[0])))
    nop(2)
    for i in range(8):
        A("v_subrev_f32 %s, s%d, %s" % (v(d[i]), sT2, v(f[i])))
    A("v_add_f32 %s, %s, %s" % (v(vT0), v(d[0]), v(d[1])))
    A("v_mul_f32 %s, %s, %s" % (v(vT1), v(d[0]), v(d[0])))
    A("v_add_f32 %s, %s, %s" % (v(vT2), v(d[2]), v(d[3])))
    A("v_mul_f32 %s, %s, %s" % (v(vT3), v(d[1]), v(d[1])))
    for i in (2, 4, 6):
        A("v_fmac_f32 %s, %s, %s" % (v(vT1), v(d[i]), v(d[i])))
        A("v_fmac_f32 %s, %s, %s" % (v(vT3), v(d[i + 1]), v(d[i + 1])))
    A("v_add_f32 %s, %s, %s" % (v(vT0), v(vT0), v(d[4])))
    A("v_add_f32 %s, %s, %s" % (v(vT2), v(vT2), v(d[5])))
    A("v_add_f32 %s, %s, %s" % (v(vT0), v(vT0), v(d[6])))
    A("v_add_f32 %s, %s, %s" % (v(vT2), v(vT2), v(d[7])))
    A("v_add_f32 %s, %s, %s" % (v(vT1), v(vT1), v(vT3)))
    A("v_add_f32 %s, %s, %s" % (v(vT0), v(vT0), v(vT2)))
    dpp_reduce([vT1, vT0], ["quad_perm:[1,0,3,2]", "quad_perm:[2,3,0,1]", "row_half_mirror", "row_mirror"], "add")
    xrow([vT1, vT0], [vT3, vT2], "add")
    A("v_mul_f32 %s, s%d, %s" % (v(vT0), sINV512, v(vT0)))
    A("v_mul_f32 %s, s%d, %s" % (v(vT1), sINV512, v(vT1)))
    A("v_fma_f32 %s, -%s, %s, %s" % (v(vT1), v(vT0), v(vT0), v(vT1)))
    A("v_add_f32 %s, s%d, %s" % (v(vT0), sT2, v(vT0)))
    A("v_max_f32 %s, 0, %s" % (v(vT1), v(vT1)))
    A("v_cvt_pk_bf16_f32 %s, %s, %s" % (v(vT2), v(vT0), v(vT1)))
    A("v_lshlrev_b32 %s, 16, %s" % (v(vT0), v(vT2)))
    A("v_and_b32 %s, 0xffff0000, %s" % (v(vT1), v(vT2)))
    A("v_add_f32 %s, s%d, %s" % (v(vT1), sEPS, v(vT1)))
    for i in range(4):
        A("v_sub_f32 %s, %s, %s" % (v(f[i]), v(f[i]), v(vT0)))
    A("v_cvt_pk_bf16_f32 %s, %s, %s" % (v(vT1), v(vT1), v(vT1)))
    for i in range(4, 8):
        A("v_sub_f32 %s, %s, %s" % (v(f[i]), v(f[i]), v(vT0)))
    A("v_and_b32 %s, 0xffff0000, %s" % (v(vT1), v(vT1)))
    A("v_sqrt_f32 %s, %s" % (v(vT1), v(vT1)))
    for i in range(4):
        A("v_cvt_pk_bf16_f32 %s, %s, %s" % (v(d[i]), v(f[2 * i]), v(f[2 * i + 1])))
    A("v_cvt_pk_bf16_f32 %s, %s, %s" % (v(vT1), v(vT1), v(vT1)))
    A("v_and_b32 %s, 0xffff0000, %s" % (v(vT1), v(vT1)))
    A("v_rcp_f32 %s, %s" % (v(vT1), v(vT1)))
    for i in range(4):
        A("v_lshlrev_b32 %s, 16, %s" % (v(f[2 * i]), v(d[i])))
        A("v_and_b32 %s, 0xffff0000, %s" % (v(f[2 * i + 1]), v(d[i])))
    for i in range(8):
        A("v_mul_f32 %s, %s, %s" % (v(f[i]), v(f[i]), v(vT1)))
    for i in range(4):
        A("v_cvt_pk_bf16_f32 %s, %s, %s" % (v(d[4 + i]), v(f[2 * i]), v(f[2 * i + 1])))
    A("ds_write_b128 %s, %s offset:%d" % (v(vXNW), vr(d[4], 4), ldsoff))

def prefetch_WQ():
    for c in range(16):
        off = L_WQ + c * 1024
        A("ds_read_b64_tr_b16 %s, %s offset:%d" % (vr(vB + 4 * c, 2), v(vTRA), off))
        A("ds_read_b64_tr_b16 %s, %s offset:%d" % (vr(vB + 4 * c + 2, 2), v(vTRA), off + 128))

def prefetch_W1():
    for c in range(8):
        off = L_W1 + c * 512
        A("ds_read_b64_tr_b16 %s, %s offset:%d" % (vr(vB + 4 * c, 2), v(vTR1), off))
        A("ds_read_b64_tr_b16 %s, %s offset:%d" % (vr(vB + 4 * c + 2, 2), v(vTR1), off + 64))

def gemv(acc, nch):
    n0 = min(nch, 8)
    for c in range(n0):
        A("ds_read_b128 %s, %s offset:%d" % (vr(vA + 4 * c, 4), v(vXNR), c * 64))
    for c in range(nch):
        issued = n0 + min(c, nch - n0)
        A("s_waitcnt lgkmcnt(%d)" % (issued - c - 1))
        A("v_mfma_f32_16x16x32_bf16 %s, %s, %s, %s" % (vr(acc, 4), vr(vA + 4 * (c % 8), 4), vr(vB + 4 * c, 4), "0" if c == 0 else vr(acc, 4)))
        if c + 8 < nch:
            A("ds_read_b128 %s, %s offset:%d" % (vr(vA + 4 * c, 4), v(vXNR), (c + 8) * 64))
    nop(8); nop(2)

def first_begin():
    l = A.new("Lnf")
    A("s_cmp_lg_u32 s%d, 0" % sL)
    A("s_cbranch_scc1 %s" % l)
    return l
def notfirst_begin():
    l = A.new("Lnn")
    A("s_cmp_eq_u32 s%d, 0" % sL)
    A("s_cbranch_scc1 %s" % l)
    return l

def poll_AG(idx, X):
    if idx:
        A("v_add_u32 %s, 0x%x, %s" % (v(vT0), idx * 0x4000, v(vAGLD)))
    a = vT0 if idx else vAGLD
    poll([(X, a, 0), (X + 4, a, 16)])
    return [X, X + 1, X + 4, X + 5]

def reduce_hops(idx, mlp):
    T = vS0
    A.c("---- RS consumer %d" % idx)
    A("v_add_u32 %s, 0x%x, %s" % (v(vT0), RS_OFF + idx * 0x100000, v(vPLD)))
    set_tags(T)
    poll([(vA + 4 * i, vT0, 1024 * i) for i in range(4)])
    stamp("rs_got%d" % idx)
    for d in range(2):
        A("v_add_f32 %s, %s, %s" % (v(T + d), v(vA + d), v(vA + 4 + d)))
        A("v_add_f32 %s, %s, %s" % (v(T + 4 + d), v(vA + 8 + d), v(vA + 12 + d)))
    for d in range(2):
        A("v_add_f32 %s, %s, %s" % (v(T + d), v(T + d), v(T + 4 + d)))
    dpp_reduce([T, T + 1], ["row_ror:8"], "add")
    xrow([T, T + 1], [T + 4, T + 5], "add")
    if idx:
        A("v_add_u32 %s, 0x%x, %s" % (v(vT0), idx * 0x8000, v(vXST)))
    A("s_mov_b64 exec, 0xff")
    publish(T, vT0 if idx else vXST, fast=False)
    A("s_mov_b64 exec, -1")
    A.c("---- X consumer %d" % idx)
    if idx:
        A("v_add_u32 %s, 0x%x, %s" % (v(vT0), idx * 0x8000, v(vXLD)))
    poll([(vA, vT0 if idx else vXLD, 0)])
    stamp("x_got%d" % idx)
    dpp_reduce([vA, vA + 1], ["row_ror:8"], "add")
    xrow([vA, vA + 1], [T + 4, T + 5], "add")
    A("v_cvt_pk_bf16_f32 %s, %s, %s" % (v(vT1), v(vA), v(vA + 1)))
    A("v_lshlrev_b32 %s, 16, %s" % (v(vA), v(vT1)))
    A("v_and_b32 %s, 0xffff0000, %s" % (v(vA + 1), v(vT1)))
    if mlp:
        A("v_add_f32 %s, %s, %s" % (v(vA), v(vA), v(vB20)))
        A("v_add_f32 %s, %s, %s" % (v(vA + 1), v(vA + 1), v(vB21)))
        A("v_cvt_pk_bf16_f32 %s, %s, %s" % (v(vT1), v(vA), v(vA + 1)))
        A("v_lshlrev_b32 %s, 16, %s" % (v(vA), v(vT1)))
        A("v_and_b32 %s, 0xffff0000, %s" % (v(vA + 1), v(vT1)))
    A("v_add_f32 %s, %s, %s" % (v(vA), v(vA), v(vXR0)))
    A("v_add_f32 %s, %s, %s" % (v(vA + 1), v(vA + 1), v(vXR1)))
    A("v_cvt_pk_bf16_f32 %s, %s, %s" % (v(T), v(vA), v(vA + 1)))
    A("v_lshlrev_b32 %s, 16, %s" % (v(vXR0), v(T)))
    A("v_and_b32 %s, 0xffff0000, %s" % (v(vXR1), v(T)))
    if mlp:
        A("s_cmp_eq_u32 s%d, 1" % sL)
        A("s_cbranch_scc1 L_final")
    A("v_mov_b32_dpp %s, %s quad_perm:[1,1,3,3]%s" % (v(T + 1), v(T), DPPM))
    if idx:
        A("v_add_u32 %s, 0x%x, %s" % (v(vT0), idx * 0x4000, v(vAGST)))
    A("s_mov_b64 exec, 0x55")
    publish(T, vT0 if idx else vAGST)
    A("s_mov_b64 exec, -1")

def tags_setup():
    A("s_add_u32 s%d, s%d, 0x%x" % (sF, sWS, F_OFF))
    A("s_addc_u32 s%d, s%d, 0" % (sF + 1, sWS + 1))
    A("s_mov_b32 s%d, 0" % sMODE)
    A("s_mov_b32 s%d, 0" % sL)
    A("s_getreg_b32 s%d, hwreg(HW_REG_XCC_ID)" % sXCC)
    A("s_and_b32 s%d, s%d, 7" % (sXCC, sXCC))
    A("s_waitcnt lgkmcnt(0)")
    A("s_xor_b32 s%d, s%d, 0x9e3779b9" % (sTA, sE))
    A("s_mul_i32 s%d, s%d, 0x85ebca6b" % (sTB, sE))
    A("s_add_u32 s%d, s%d, 0xc2b2ae35" % (sTB, sTB))
    A("s_xor_b32 s%d, s%d, s%d" % (sTBX, sTB, sXCC))

def next_layer():
    A("s_add_u32 s%d, s%d, 0x%x" % (sF, sF, LAYER_STRIDE))
    A("s_addc_u32 s%d, s%d, 0" % (sF + 1, sF + 1))
    A("s_add_u32 s%d, s%d, 1" % (sL, sL))

def build():
    A("s_cmp_ge_u32 s2, 256")
    A("s_cbranch_scc1 L_end")
    A("s_load_dwordx16 s[16:31], s[0:1], 0")
    A("s_load_dwordx8 s[32:39], s[0:1], 64")
    A("s_load_dwordx2 s[40:41], s[0:1], 96")
    A("s_and_b32 s%d, s2, 7" % sG)
    A("s_lshr_b32 s%d, s2, 3" % sS)
    A("v_and_b32 %s, 63, v0" % v(vLANE))
    A("v_lshrrev_b32 %s, 6, v0" % v(vT0))
    nop(1)
    A("v_readfirstlane_b32 s%d, %s" % (sW, v(vT0)))
    for (r, val) in [(sLOG2E, f2u(1.4426950408889634)), (sSCALE, f2u(0.08838834764831845)), (sINV512, f2u(1.0 / 512)),
                     (sPLO, 0x05040100), (sPHI, 0x07060302),
                     (sC1, f2u(-2 * 0.7978845608028654 * 1.4426950408889634)),
                     (sC2, f2u(-2 * 0.7978845608028654 * 0.044715 * 1.4426950408889634)), (sEPS, f2u(1e-5))]:
        A("s_mov_b32 s%d, 0x%08x" % (r, val))
    A("v_and_b32 %s, 15, %s" % (v(vT1), v(vLANE)))
    A("v_lshrrev_b32 %s, 4, %s" % (v(vT2), v(vLANE)))
    A("s_cmp_eq_u32 s%d, 4" % sW)
    A("s_cbranch_scc1 L_comm")

    A.c("=========== compute waves prologue")
    A("s_lshl_b32 s%d, s%d, 24" % (sT0, sG))
    A("s_lshl_b32 s%d, s%d, 15" % (sT1, sS))
    A("s_add_u32 s%d, s%d, s%d" % (sT0, sT0, sT1))
    A("s_lshl_b32 s%d, s%d, 13" % (sT1, sW))
    A("s_add_u32 s%d, s%d, s%d" % (sT0, sT0, sT1))
    A("s_add_u32 s%d, s%d, %d" % (sT0, sT0, 61440 * 256))
    A("v_lshlrev_b32 %s, 8, %s" % (v(vT3), v(vT1)))
    A("v_lshl_add_u32 %s, %s, 4, %s" % (v(vT3), v(vT2), v(vT3)))
    A("v_add_u32 %s, 0x1000, %s" % (v(vT4), v(vT3)))
    A("s_waitcnt lgkmcnt(0)")
    stamp("start", loop=False)
    A("s_load_dword s%d, %s, 0" % (sE, sr(sWS)))
    A("s_add_u32 s%d, s%d, s%d" % (sKB, sK, sT0))
    A("s_addc_u32 s%d, s%d, 0" % (sKB + 1, sK + 1))
    A("s_add_u32 s%d, s%d, s%d" % (sVB, sV, sT0))
    A("s_addc_u32 s%d, s%d, 0" % (sVB + 1, sV + 1))
    for T in range(2):
        for c in range(4):
            A("global_load_dwordx4 %s, %s, %s offset:%d%s" % (vr(vK + (T * 4 + c) * 4, 4), v(vT3 if T == 0 else vT4), sr(sKB), c * 64, NT))
    A("v_lshlrev_b32 %s, 10, %s" % (v(vT3), v(vT2)))
    A("v_lshl_add_u32 %s, %s, 4, %s" % (v(vT3), v(vT1), v(vT3)))
    A("v_add_u32 %s, 0x1000, %s" % (v(vT4), v(vT3)))
    VRAW = vWO
    for j in range(8):
        A("global_load_dwordx4 %s, %s, %s offset:%d%s" % (vr(VRAW + 4 * j, 4), v(vT3 if j < 4 else vT4), sr(sVB), (j % 4) * 256, NT))
    A("v_and_b32 %s, 3, %s" % (v(vT3), v(vT1)))
    A("v_lshlrev_b32 %s, 8, %s" % (v(vQRD), v(vT3)))
    A("v_lshl_add_u32 %s, %s, 4, %s" % (v(vQRD), v(vT2), v(vQRD)))
    A("v_add_u32 %s, %d, %s" % (v(vQRD), L_Q, v(vQRD)))
    A("v_lshrrev_b32 %s, 2, %s" % (v(vT3), v(vT1)))
    A("v_lshl_add_u32 %s, %s, 3, %s" % (v(vT3), v(vT2), v(vT3)))
    A("v_lshlrev_b32 %s, 4, %s" % (v(vTR1), v(vT3)))
    A("v_and_b32 %s, 1, %s" % (v(vT4), v(vT1)))
    A("v_lshl_add_u32 %s, %s, 3, %s" % (v(vTR1), v(vT4), v(vTR1)))
    A("v_and_b32 %s, 2, %s" % (v(vT4), v(vT1)))
    A("v_lshl_add_u32 %s, %s, 11, %s" % (v(vTR1), v(vT4), v(vTR1)))
    A("v_and_b32 %s, 1, %s" % (v(vT4), v(vT1)))
    A("v_lshlrev_b32 %s, 4, %s" % (v(vXNR), v(vT2)))
    A("v_lshl_add_u32 %s, %s, 9, %s" % (v(vXNR), v(vT4), v(vXNR)))
    A("v_add_u32 %s, %d, %s" % (v(vXNR), L_XN + 1024, v(vXNR)))
    A("v_lshrrev_b32 %s, 3, v0" % v(vT3))
    A("s_lshl_b32 s%d, s%d, 5" % (sT1, sG))
    A("v_add_u32 %s, s%d, %s" % (v(vT3), sT1, v(vT3)))
    A("v_lshlrev_b32 %s, 5, %s" % (v(vT3), v(vT3)))
    A("v_add_u32 %s, s%d, %s" % (v(vT3), sS, v(vT3)))
    A("v_lshlrev_b32 %s, 7, %s" % (v(vT3), v(vT3)))
    A("v_and_b32 %s, 7, v0" % v(vT4))
    A("v_lshl_add_u32 %s, %s, 4, %s" % (v(vPOST), v(vT4), v(vT3)))
    A("s_lshl_b32 s%d, s%d, 2" % (sT0, sG))
    A("s_add_u32 s%d, s%d, s%d" % (sT0, sT0, sW))
    A("s_lshl_b32 s%d, s%d, 5" % (sT0, sT0))
    A("s_add_u32 s%d, s%d, s%d" % (sT0, sT0, sS))
    A("s_lshl_b32 s%d, s%d, 4" % (sT0, sT0))
    A("s_add_u32 s%d, s%d, 0x%x" % (sT0, sT0, ML_OFF))
    A("v_mov_b32 %s, s%d" % (v(vMLST), sT0))
    A("s_mul_i32 s%d, s%d, %d" % (sT1, sW, AT_STRIDE))
    A("s_add_u32 s%d, s%d, %d" % (sT1, sT1, L_AT))
    A("v_lshlrev_b32 %s, 9, %s" % (v(vATW), v(vT1)))
    A("v_lshl_add_u32 %s, %s, 4, %s" % (v(vATW), v(vT2), v(vATW)))
    A("v_add_u32 %s, s%d, %s" % (v(vATW), sT1, v(vATW)))
    A("s_lshl_b32 s%d, s%d, 9" % (sT1, sW))
    A("s_add_u32 s%d, s%d, %d" % (sT1, sT1, L_AT))
    A("v_lshlrev_b32 %s, 3, %s" % (v(vATR), v(vLANE)))
    A("v_add_u32 %s, s%d, %s" % (v(vATR), sT1, v(vATR)))
    A("s_mov_b32 s%d, 0x000f000f" % sM)
    A("s_mov_b32 s%d, 0x000f000f" % (sM + 1))
    tags_setup()
    A("s_waitcnt vmcnt(0)")
    stamp("kv_landed", loop=False)
    for i in range(8):
        q = i // 2
        sel = sPLO if i % 2 == 0 else sPHI
        for p in range(4):
            A("v_perm_b32 %s, %s, %s, s%d" % (v(vVT + 4 * i + p), v(VRAW + 4 * (2 * p + 1) + q), v(VRAW + 4 * (2 * p) + q), sel))
    A("s_lshl_b32 s%d, s%d, 2" % (sT0, sG))
    A("s_lshr_b32 s%d, s%d, 3" % (sT1, sS))
    A("s_add_u32 s%d, s%d, s%d" % (sT0, sT0, sT1))
    A("s_lshl_b32 s%d, s%d, 7" % (sT0, sT0))
    A("s_and_b32 s%d, s%d, 7" % (sT1, sS))
    A("s_add_u32 s%d, s%d, s%d" % (sT0, sT0, sT1))
    A("s_lshl_b32 s%d, s%d, 10" % (sT0, sT0))
    A("v_lshlrev_b32 %s, 2, v0" % v(vT0))
    A("v_add_u32 %s, s%d, %s" % (v(vT0), sT0, v(vT0)))
    for k in range(16):
        if k:
            A("v_add_u32 %s, 0x2000, %s" % (v(vT0), v(vT0)))
        A("global_load_dword %s, %s, %s%s" % (v(vWO + 16 + k), v(vT0), sr(sWO), NT))

    A.lab("L_cloop")
    A.c("================= attention")
    A("s_barrier")
    Q = vB
    for c in range(4):
        A("ds_read_b128 %s, %s offset:%d" % (vr(Q + 4 * c, 4), v(vQRD), c * 64))
    lf = first_begin()
    A("v_mov_b32 %s, %d" % (v(vT4), L_MODE))
    A("ds_read_b32 %s, %s" % (v(vT3), v(vT4)))
    A("s_waitcnt lgkmcnt(0)")
    A("v_readfirstlane_b32 s%d, %s" % (sMODE, v(vT3)))
    A.lab(lf)
    stamp("b1")
    S = vS0
    for c in range(4):
        A("s_waitcnt lgkmcnt(%d)" % (3 - c))
        for T in range(2):
            A("v_mfma_f32_16x16x32_bf16 %s, %s, %s, %s" % (vr(S + 4 * T, 4), vr(vK + (T * 4 + c) * 4, 4), vr(Q + 4 * c, 4), "0" if c == 0 else vr(S + 4 * T, 4)))
    nop(8); nop(2)
    P = vS0 + 8
    for rnd in range(2):
        for i in range(4):
            A("v_cvt_pk_bf16_f32 %s, %s, %s" % (v(P + i), v(S + 2 * i), v(S + 2 * i + 1)))
        for i in range(4):
            A("v_lshlrev_b32 %s, 16, %s" % (v(S + 2 * i), v(P + i)))
            A("v_and_b32 %s, 0xffff0000, %s" % (v(S + 2 * i + 1), v(P + i)))
        if rnd == 0:
            for i in range(8):
                A("v_mul_f32 %s, s%d, %s" % (v(S + i), sSCALE, v(S + i)))
    A("v_max3_f32 %s, %s, %s, %s" % (v(vT0), v(S), v(S + 1), v(S + 2)))
    A("v_max3_f32 %s, %s, %s, %s" % (v(vT1), v(S + 3), v(S + 4), v(S + 5)))
    A("v_max3_f32 %s, %s, %s, %s" % (v(vT0), v(S + 6), v(S + 7), v(vT0)))
    A("v_max_f32 %s, %s, %s" % (v(vT0), v(vT0), v(vT1)))
    xrow([vT0], [vT1], "max")
    A("v_mul_f32 %s, s%d, %s" % (v(vT2), sLOG2E, v(vT0)))
    for i in range(8):
        A("v_fma_f32 %s, %s, s%d, -%s" % (v(S + i), v(S + i), sLOG2E, v(vT2)))
    for i in range(8):
        A("v_exp_f32 %s, %s" % (v(S + i), v(S + i)))
    nop(1)
    for i in range(4):
        A("v_cvt_pk_bf16_f32 %s, %s, %s" % (v(P + i), v(S + 2 * i), v(S + 2 * i + 1)))
    A("v_add_f32 %s, %s, %s" % (v(vT1), v(S), v(S + 1)))
    A("v_add_f32 %s, %s, %s" % (v(vT2), v(S + 2), v(S + 3)))
    D = vA
    for i in range(8):
        A("v_mfma_f32_16x16x32_bf16 %s, %s, %s, 0" % (vr(D + 4 * i, 4), vr(vVT + 4 * i, 4), vr(P, 4)))
        if i == 0:
            A("v_add_f32 %s, %s, %s" % (v(vT3), v(S + 4), v(S + 5)))
            A("v_add_f32 %s, %s, %s" % (v(vT4), v(S + 6), v(S + 7)))
        if i == 1:
            A("v_add_f32 %s, %s, %s" % (v(vT1), v(vT1), v(vT2)))
            A("v_add_f32 %s, %s, %s" % (v(vT3), v(vT3), v(vT4)))
        if i == 2:
            A("v_add_f32 %s, %s, %s" % (v(vT1), v(vT1), v(vT3)))
        if i == 3:
            xrow([vT1], [vT2], "add")
    A("s_mul_i32 s%d, s%d, %d" % (sT1, sW, AT_STRIDE))
    A("s_add_u32 s%d, s%d, %d" % (sT1, sT1, L_AT + 2048))
    A("v_lshlrev_b32 %s, 3, %s" % (v(vT2), v(vLANE)))
    A("v_add_u32 %s, s%d, %s" % (v(vT2), sT1, v(vT2)))
    A("s_mov_b64 exec, 0xf")
    A("ds_write_b64 %s, %s" % (v(vT2), vr(vT0, 2)))
    A("s_mov_b64 exec, %s" % sr(sM))
    for i in range(8):
        if i == 6: nop(4)
        A("ds_write_b128 %s, %s offset:%d" % (v(vATW), vr(D + 4 * i, 4), i * 64))
    A("s_mov_b64 exec, -1")
    A("s_lshl_b32 s%d, s%d, 3" % (sT1, sW))
    A("s_add_u32 s%d, s%d, %d" % (sT1, sT1, L_AT + 2048))
    A("v_mov_b32 %s, s%d" % (v(vT2), sT1))
    G = vS0
    set_tags(G)
    set_tags(G + 4)
    A("v_add_u32 %s, 0x%x, %s" % (v(vT0), PO_OFF, v(vPOST)))
    A("s_waitcnt lgkmcnt(0)")
    A("s_barrier")
    R = vA
    for w in range(4):
        A("ds_read_b64 %s, %s offset:%d" % (vr(R + 8 + 2 * w, 2), v(vT2), w * AT_STRIDE))
    for w in range(4):
        A("ds_read_b64 %s, %s offset:%d" % (vr(R + 2 * w, 2), v(vATR), w * AT_STRIDE))
    A("s_waitcnt lgkmcnt(4)")
    A("v_max_f32 %s, %s, %s" % (v(G + 4), v(R + 8), v(R + 10)))
    A("v_max3_f32 %s, %s, %s, %s" % (v(G + 4), v(R + 12), v(R + 14), v(G + 4)))
    for w in range(4):
        A("v_sub_f32 %s, %s, %s" % (v(R + 8 + 2 * w), v(R + 8 + 2 * w), v(G + 4)))
    for w in range(4):
        A("v_mul_f32 %s, s%d, %s" % (v(R + 8 + 2 * w), sLOG2E, v(R + 8 + 2 * w)))
    for w in range(4):
        A("v_exp_f32 %s, %s" % (v(R + 8 + 2 * w), v(R + 8 + 2 * w)))
    A("s_waitcnt lgkmcnt(0)")
    A("v_mul_f32 %s, %s, %s" % (v(G), v(R + 8), v(R)))
    A("v_mul_f32 %s, %s, %s" % (v(G + 1), v(R + 8), v(R + 1)))
    A("v_mul_f32 %s, %s, %s" % (v(G + 5), v(R + 8), v(R + 9)))
    for w in range(1, 4):
        A("v_fmac_f32 %s, %s, %s" % (v(G), v(R + 8 + 2 * w), v(R + 2 * w)))
        A("v_fmac_f32 %s, %s, %s" % (v(G + 1), v(R + 8 + 2 * w), v(R + 2 * w + 1)))
        A("v_fmac_f32 %s, %s, %s" % (v(G + 5), v(R + 8 + 2 * w), v(R + 9 + 2 * w)))
    publish(G, vT0)
    A("s_mov_b64 exec, 1")
    publish(G + 4, vMLST)
    A("s_mov_b64 exec, -1")
    stamp("p_pub")
    W1RAW = vB + 32
    lf = first_begin()
    A.c("unpack wo (wait), issue w1/w2/b1 loads")
    A("s_waitcnt vmcnt(2)")
    for k in range(16):
        A("v_lshlrev_b32 %s, 16, %s" % (v(vWO + k), v(vWO + 16 + k)))
        A("v_and_b32 %s, 0xffff0000, %s" % (v(vWO + 16 + k), v(vWO + 16 + k)))
    A("s_min_u32 s%d, s%d, 27" % (sT0, sS))
    A("s_mul_i32 s%d, s%d, 28" % (sT1, sG))
    A("s_add_u32 s%d, s%d, s%d" % (sT0, sT0, sT1))
    A("s_lshl_b32 s%d, s%d, 4" % (sT1, sT0))
    A("v_mul_u32_u24 %s, 0xe00, v0" % v(vT3))
    A("v_add_u32 %s, s%d, %s" % (v(vT3), sT1, v(vT3)))
    A("global_load_dwordx4 %s, %s, %s%s" % (vr(W1RAW, 4), v(vT3), sr(sW1), NT))
    A("v_add_u32 %s, 0x%x, %s" % (v(vT3), 256 * 3584, v(vT3)))
    A("global_load_dwordx4 %s, %s, %s%s" % (vr(W1RAW + 4, 4), v(vT3), sr(sW1), NT))
    A("v_and_b32 %s, 7, %s" % (v(vT3), v(vLANE)))
    A("v_lshlrev_b32 %s, 1, %s" % (v(vT3), v(vT3)))
    A("v_add_u32 %s, s%d, %s" % (v(vT3), sT1, v(vT3)))
    A("global_load_ushort %s, %s, %s" % (v(vB1), v(vT3), sr(sB1)))
    A("s_lshl_b32 s%d, s%d, 13" % (sT1, sT0))
    A("v_lshlrev_b32 %s, 2, v0" % v(vT3))
    A("v_add_u32 %s, s%d, %s" % (v(vT3), sT1, v(vT3)))
    A("v_add_u32 %s, 0x1000, %s" % (v(vT4), v(vT3)))
    for k in range(8):
        A("global_load_dword %s, %s, %s offset:%d%s" % (v(vW2 + 8 + k), v(vT3 if k < 4 else vT4), sr(sW2), (k % 4) * 1024, NT))
    A.lab(lf)

    A.c("================= o-proj")
    G = vS0 + 8
    T = vS0
    set_tags(G)
    A("v_mov_b32 %s, %d" % (v(vT1), L_O))
    A("v_add_u32 %s, 0x%x, %s" % (v(vT0), RS_OFF, v(vPOST)))
    A("s_barrier")
    O = vA
    for i in range(4):
        A("ds_read_b128 %s, %s offset:%d" % (vr(O + 4 * i, 4), v(vT1), 16 * i))
    stamp("b3")
    for i in range(4):
        A("s_waitcnt lgkmcnt(%d)" % (3 - i))
        for kk in range(4):
            k = 4 * i + kk
            a0, a1 = (G, G + 1) if k % 2 == 0 else (T + 4, T + 5)
            ins = "v_mul_f32" if k < 2 else "v_fmac_f32"
            A("%s %s, %s, %s" % (ins, v(a0), v(O + k), v(vWO + k)))
            A("%s %s, %s, %s" % (ins, v(a1), v(O + k), v(vWO + 16 + k)))
    A("v_add_f32 %s, %s, %s" % (v(G), v(G), v(T + 4)))
    A("v_add_f32 %s, %s, %s" % (v(G + 1), v(G + 1), v(T + 5)))
    publish(G, vT0)
    stamp("rs_pub0")

    A.c("================= MLP")
    lf = first_begin()
    A("s_waitcnt vmcnt(0)")
    A("v_lshlrev_b32 %s, 4, v0" % v(vT0))
    A("ds_write_b128 %s, %s offset:%d" % (v(vT0), vr(W1RAW, 4), L_W1))
    A("ds_write_b128 %s, %s offset:%d" % (v(vT0), vr(W1RAW + 4, 4), L_W1 + 4096))
    for k in range(8):
        A("v_lshlrev_b32 %s, 16, %s" % (v(vW2 + k), v(vW2 + 8 + k)))
        A("v_and_b32 %s, 0xffff0000, %s" % (v(vW2 + 8 + k), v(vW2 + 8 + k)))
    A("v_lshlrev_b32 %s, 16, %s" % (v(vB1), v(vB1)))
    A("s_waitcnt lgkmcnt(0)")
    A.lab(lf)
    ln = notfirst_begin()
    prefetch_W1()
    A.lab(ln)
    A("v_add_u32 %s, 0x%x, %s" % (v(vT0), RS_OFF + 0x100000, v(vPOST)))
    A("s_barrier")
    lf = first_begin()
    prefetch_W1()
    A.lab(lf)
    stamp("b4")
    gemv(vS0, 8)
    T = vS0
    A("v_add_f32_dpp %s, %s, %s row_ror:8%s" % (v(T), v(T + 1), v(T), DPPM))
    G = vS0 + 8
    set_tags(G)
    A("v_cvt_pk_bf16_f32 %s, %s, %s" % (v(T), v(T), v(T)))
    A("v_and_b32 %s, 0xffff0000, %s" % (v(T), v(T)))
    A("v_add_f32 %s, %s, %s" % (v(T), v(T), v(vB1)))
    A("v_cvt_pk_bf16_f32 %s, %s, %s" % (v(T), v(T), v(T)))
    A("v_and_b32 %s, 0xffff0000, %s" % (v(T), v(T)))
    A("v_mul_f32 %s, %s, %s" % (v(T + 1), v(T), v(T)))
    A("v_mov_b32 %s, s%d" % (v(T + 2), sC1))
    A("v_fmac_f32 %s, s%d, %s" % (v(T + 2), sC2, v(T + 1)))
    A("v_mul_f32 %s, %s, %s" % (v(T + 2), v(T + 2), v(T)))
    A("v_exp_f32 %s, %s" % (v(T + 2), v(T + 2)))
    nop(1)
    A("v_add_f32 %s, 1.0, %s" % (v(T + 2), v(T + 2)))
    A("v_rcp_f32 %s, %s" % (v(T + 2), v(T + 2)))
    nop(1)
    A("v_mul_f32 %s, %s, %s" % (v(T), v(T), v(T + 2)))
    A("v_cvt_pk_bf16_f32 %s, %s, %s" % (v(T), v(T), v(T)))
    A("v_and_b32 %s, 0xffff0000, %s" % (v(T), v(T)))
    A("s_cmp_lt_u32 s%d, 28" % sS)
    A("s_cbranch_scc1 L_hok")
    A("v_mov_b32 %s, 0" % v(T))
    A.lab("L_hok")
    nop(1)
    for k in range(8):
        A("v_readlane_b32 s%d, %s, %d" % (sO + k, v(T), k))
    A("v_mul_f32 %s, s%d, %s" % (v(G), sO, v(vW2)))
    A("v_mul_f32 %s, s%d, %s" % (v(G + 1), sO, v(vW2 + 8)))
    A("v_mul_f32 %s, s%d, %s" % (v(T + 4), sO + 1, v(vW2 + 1)))
    A("v_mul_f32 %s, s%d, %s" % (v(T + 5), sO + 1, v(vW2 + 9)))
    for k in range(2, 8, 2):
        A("v_fmac_f32 %s, s%d, %s" % (v(G), sO + k, v(vW2 + k)))
        A("v_fmac_f32 %s, s%d, %s" % (v(G + 1), sO + k, v(vW2 + 8 + k)))
        A("v_fmac_f32 %s, s%d, %s" % (v(T + 4), sO + k + 1, v(vW2 + k + 1)))
        A("v_fmac_f32 %s, s%d, %s" % (v(T + 5), sO + k + 1, v(vW2 + 9 + k)))
    A("v_add_f32 %s, %s, %s" % (v(G), v(G), v(T + 4)))
    A("v_add_f32 %s, %s, %s" % (v(G + 1), v(G + 1), v(T + 5)))
    publish(G, vT0)
    stamp("rs_pub1")
    next_layer()
    A("s_cmp_lt_u32 s%d, 2" % sL)
    A("s_cbranch_scc1 L_cloop")
    dump_stamps()
    A("s_endpgm")

    A.lab("L_comm")
    A("s_setprio 3")
    A("v_lshrrev_b32 %s, 2, %s" % (v(vT3), v(vT1)))
    A("v_lshl_add_u32 %s, %s, 3, %s" % (v(vT3), v(vT2), v(vT3)))
    A("v_and_b32 %s, 3, %s" % (v(vT4), v(vT1)))
    A("v_lshlrev_b32 %s, 5, %s" % (v(vTRA), v(vT3)))
    A("v_lshl_add_u32 %s, %s, 3, %s" % (v(vTRA), v(vT4), v(vTRA)))
    A("v_lshlrev_b32 %s, 4, %s" % (v(vXNR), v(vT2)))
    A("v_add_u32 %s, %d, %s" % (v(vXNR), L_XN, v(vXNR)))
    A("v_lshrrev_b32 %s, 1, %s" % (v(vT3), v(vLANE)))
    A("v_lshlrev_b32 %s, 13, %s" % (v(vT3), v(vT3)))
    A("v_and_b32 %s, 1, %s" % (v(vT4), v(vLANE)))
    A("v_lshl_add_u32 %s, %s, 4, %s" % (v(vT3), v(vT4), v(vT3)))
    A("s_lshl_b32 s%d, s%d, 10" % (sT0, sG))
    A("s_lshl_b32 s%d, s%d, 5" % (sT1, sS))
    A("s_add_u32 s%d, s%d, s%d" % (sT0, sT0, sT1))
    A("v_add_u32 %s, s%d, %s" % (v(vT3), sT0, v(vT3)))
    A("v_lshlrev_b32 %s, 4, %s" % (v(vXNW), v(vLANE)))
    A("v_and_b32 %s, 7, %s" % (v(vT4), v(vLANE)))
    A("v_lshlrev_b32 %s, 2, %s" % (v(vT4), v(vT4)))
    A("v_add_u32 %s, s%d, %s" % (v(vT4), sT1, v(vT4)))
    A("s_waitcnt lgkmcnt(0)")
    stamp("start", loop=False)
    A("s_load_dword s%d, %s, 0" % (sE, sr(sWS)))
    A("global_load_dwordx4 %s, %s, %s" % (vr(vX, 4), v(vXNW), sr(sX)))
    for i in range(16):
        if i:
            A("v_add_u32 %s, 0x40000, %s" % (v(vT3), v(vT3)))
        A("global_load_dwordx4 %s, %s, %s%s" % (vr(vK + 4 * i, 4), v(vT3), sr(sWQ), NT))
    A("global_load_dword %s, %s, %s" % (v(vXR1), v(vT4), sr(sX)))
    A("global_load_dword %s, %s, %s" % (v(vB21), v(vT4), sr(sB2)))
    A("s_lshl_b32 s%d, s%d, 11" % (sT0, sG))
    A("v_lshlrev_b32 %s, 5, %s" % (v(vQLD), v(vLANE)))
    A("v_add_u32 %s, s%d, %s" % (v(vQLD), sT0, v(vQLD)))
    A("v_add_u32 %s, 0x%x, %s" % (v(vAGLD), AG_OFF, v(vQLD)))
    A("s_lshl_b32 s%d, s%d, 6" % (sT1, sS))
    A("s_add_u32 s%d, s%d, s%d" % (sT0, sT0, sT1))
    A("v_and_b32 %s, 12, %s" % (v(vQST), v(vLANE)))
    A("v_lshlrev_b32 %s, 2, %s" % (v(vQST), v(vQST)))
    A("v_add_u32 %s, s%d, %s" % (v(vQST), sT0, v(vQST)))
    A("s_add_u32 s%d, s%d, 0x%x" % (sT0, sT0, AG_OFF))
    A("v_and_b32 %s, 6, %s" % (v(vAGST), v(vLANE)))
    A("v_lshlrev_b32 %s, 3, %s" % (v(vAGST), v(vAGST)))
    A("v_add_u32 %s, s%d, %s" % (v(vAGST), sT0, v(vAGST)))
    A("s_lshl_b32 s%d, s%d, 10" % (sT0, sS))
    A("s_add_u32 s%d, s%d, 0x%x" % (sT0, sT0, XB_OFF))
    A("v_lshlrev_b32 %s, 4, %s" % (v(vXLD), v(vLANE)))
    A("v_add_u32 %s, s%d, %s" % (v(vXLD), sT0, v(vXLD)))
    A("s_lshl_b32 s%d, s%d, 7" % (sT1, sG))
    A("s_add_u32 s%d, s%d, s%d" % (sT0, sT0, sT1))
    A("v_and_b32 %s, 7, %s" % (v(vXST), v(vLANE)))
    A("v_lshlrev_b32 %s, 4, %s" % (v(vXST), v(vXST)))
    A("v_add_u32 %s, s%d, %s" % (v(vXST), sT0, v(vXST)))
    A("s_lshl_b32 s%d, s%d, 5" % (sT1, sG))
    A("s_add_u32 s%d, s%d, s%d" % (sT1, sT1, sS))
    A("s_lshl_b32 s%d, s%d, 12" % (sT1, sT1))
    A("v_lshlrev_b32 %s, 4, %s" % (v(vPLD), v(vLANE)))
    A("v_add_u32 %s, s%d, %s" % (v(vPLD), sT1, v(vPLD)))
    A("s_lshl_b32 s%d, s%d, 2" % (sT1, sG))
    A("s_lshr_b32 s%d, s%d, 3" % (sT2, sS))
    A("s_add_u32 s%d, s%d, s%d" % (sT1, sT1, sT2))
    A("s_lshl_b32 s%d, s%d, 9" % (sT1, sT1))
    A("s_add_u32 s%d, s%d, 0x%x" % (sT1, sT1, ML_OFF))
    A("v_lshrrev_b32 %s, 3, %s" % (v(vT3), v(vLANE)))
    A("v_lshlrev_b32 %s, 4, %s" % (v(vMLLD), v(vT3)))
    A("v_add_u32 %s, s%d, %s" % (v(vMLLD), sT1, v(vMLLD)))
    tags_setup()
    for i in range(16):
        A("s_waitcnt vmcnt(%d)" % (17 - i))
        A("ds_write_b128 %s, %s offset:%d" % (v(vXNW), vr(vK + 4 * i, 4), L_WQ + i * 1024))
    stamp("wq_staged", loop=False)
    prefetch_WQ()
    A("s_waitcnt vmcnt(0)")
    A("v_lshlrev_b32 %s, 16, %s" % (v(vXR0), v(vXR1)))
    A("v_and_b32 %s, 0xffff0000, %s" % (v(vXR1), v(vXR1)))
    A("v_lshlrev_b32 %s, 16, %s" % (v(vB20), v(vB21)))
    A("v_and_b32 %s, 0xffff0000, %s" % (v(vB21), v(vB21)))
    A.lab("L_mloop")
    layernorm([vX, vX + 1, vX + 2, vX + 3], L_XN)
    gemv(vS0, 16)
    T = vS0 + 4
    for e in range(4):
        A("v_mov_b32_dpp %s, %s quad_perm:[%d,%d,%d,%d]%s" % (v(T + 4 + e), v(vS0), e, e, e, e, DPPM))
    A("v_mov_b32 %s, s%d" % (v(T + 2), sTA))
    A("v_mov_b32 %s, s%d" % (v(T + 3), sTBX))
    A("v_cvt_pk_bf16_f32 %s, %s, %s" % (v(T), v(T + 4), v(T + 5)))
    A("v_cvt_pk_bf16_f32 %s, %s, %s" % (v(T + 1), v(T + 6), v(T + 7)))
    A("s_mov_b64 exec, 0x1111")
    publish(T, vQST)
    A("s_mov_b64 exec, -1")
    stamp("q_pub")
    Qg = vA
    poll([(Qg, vQLD, 0), (Qg + 4, vQLD, 16)], xcc=True)
    lf = first_begin()
    A("v_xor_b32 %s, s%d, %s" % (v(vT4), sTBX, v(Qg + 3)))
    A("v_xor_b32 %s, s%d, %s" % (v(vT3), sTBX, v(Qg + 7)))
    A("v_or_b32 %s, %s, %s" % (v(vT4), v(vT4), v(vT3)))
    A("v_cmp_ne_u32 vcc, 0, %s" % v(vT4))
    A("s_cmp_eq_u64 vcc, 0")
    A("s_cselect_b32 s%d, 1, 0" % sMODE)
    A("v_mov_b32 %s, s%d" % (v(vT3), sMODE))
    A("v_mov_b32 %s, %d" % (v(vT4), L_MODE))
    A("ds_write_b32 %s, %s" % (v(vT4), v(vT3)))
    A.lab(lf)
    A("v_mov_b32 %s, %s" % (v(Qg + 2), v(Qg + 4)))
    A("v_mov_b32 %s, %s" % (v(Qg + 3), v(Qg + 5)))
    A("ds_write_b128 %s, %s offset:%d" % (v(vXNW), vr(Qg, 4), L_Q))
    A("v_add_u32 %s, 0x%x, %s" % (v(vT0), PO_OFF, v(vPLD)))
    A("s_waitcnt lgkmcnt(0)")
    A("s_barrier")
    stamp("q_got")
    A("s_barrier")
    O = vB
    ML = O + 16
    poll([(ML + 4 * i, vMLLD, 128 * i) for i in range(4)] + [(O + 4 * i, vT0, 1024 * i) for i in range(4)])
    stamp("p_got")
    A("v_max_f32 %s, %s, %s" % (v(vT0), v(ML), v(ML + 4)))
    A("v_max3_f32 %s, %s, %s, %s" % (v(vT0), v(ML + 8), v(ML + 12), v(vT0)))
    dpp_reduce([vT0], ["row_ror:8"], "max")
    xrow([vT0], [vT1], "max")
    for i in range(4):
        A("v_sub_f32 %s, %s, %s" % (v(ML + 4 * i), v(ML + 4 * i), v(vT0)))
    for i in range(4):
        A("v_mul_f32 %s, s%d, %s" % (v(ML + 4 * i), sLOG2E, v(ML + 4 * i)))
    for i in range(4):
        A("v_exp_f32 %s, %s" % (v(ML + 4 * i), v(ML + 4 * i)))
    T = vS0
    A("v_lshlrev_b32 %s, 3, %s" % (v(vT2), v(vLANE)))
    A("v_mul_f32 %s, %s, %s" % (v(T), v(ML), v(O)))
    A("v_mul_f32 %s, %s, %s" % (v(T + 1), v(ML), v(O + 1)))
    A("v_mul_f32 %s, %s, %s" % (v(T + 2), v(ML), v(ML + 1)))
    for i in range(1, 4):
        A("v_fmac_f32 %s, %s, %s" % (v(T), v(ML + 4 * i), v(O + 4 * i)))
        A("v_fmac_f32 %s, %s, %s" % (v(T + 1), v(ML + 4 * i), v(O + 4 * i + 1)))
        A("v_fmac_f32 %s, %s, %s" % (v(T + 2), v(ML + 4 * i), v(ML + 4 * i + 1)))
    dpp_reduce([T, T + 1, T + 2], ["row_ror:8"], "add")
    xrow([T, T + 1, T + 2], [T + 4, T + 5, T + 6], "add")
    A("v_rcp_f32 %s, %s" % (v(T + 2), v(T + 2)))
    nop(1)
    A("v_mul_f32 %s, %s, %s" % (v(T), v(T), v(T + 2)))
    A("v_mul_f32 %s, %s, %s" % (v(T + 1), v(T + 1), v(T + 2)))
    A("v_cvt_pk_bf16_f32 %s, %s, %s" % (v(T + 2), v(T), v(T + 1)))
    A("v_lshlrev_b32 %s, 16, %s" % (v(T), v(T + 2)))
    A("v_and_b32 %s, 0xffff0000, %s" % (v(T + 1), v(T + 2)))
    A("s_mov_b64 exec, 0xff")
    A("ds_write_b64 %s, %s offset:%d" % (v(vT2), vr(T, 2), L_O))
    A("s_mov_b64 exec, -1")
    A("s_waitcnt lgkmcnt(0)")
    A("s_barrier")
    reduce_hops(0, mlp=False)
    stamp("ag1_pub")
    X = poll_AG(0, vA + 8)
    stamp("ag1_got")
    layernorm(X, L_XN + 1024)
    A("s_waitcnt lgkmcnt(0)")
    A("s_barrier")
    reduce_hops(1, mlp=True)
    prefetch_WQ()
    X = poll_AG(1, vA + 8)
    for i in range(4):
        A("v_mov_b32 %s, %s" % (v(vX + i), v(X[i])))
    stamp("ag2_got")
    next_layer()
    A("s_branch L_mloop")
    A.lab("L_final")
    T = vS0
    stamp("ag2_got")
    l = A.new("Lnoout")
    A("s_cmp_lg_u32 s%d, 0" % sG)
    A("s_cbranch_scc1 %s" % l)
    A("s_lshl_b32 s%d, s%d, 5" % (sT0, sS))
    A("v_lshlrev_b32 %s, 2, %s" % (v(vT0), v(vLANE)))
    A("v_add_u32 %s, s%d, %s" % (v(vT0), sT0, v(vT0)))
    A("s_mov_b64 exec, 0xff")
    A("global_store_dword %s, %s, %s" % (v(vT0), v(T), sr(sOUT)))
    A("s_mov_b64 exec, -1")
    A("s_cmp_lg_u32 s%d, 0" % sS)
    A("s_cbranch_scc1 %s" % l)
    A("s_add_u32 s%d, s%d, 1" % (sT0, sE))
    A("v_mov_b32 %s, s%d" % (v(vT1), sT0))
    A("v_mov_b32 %s, 0" % v(vT0))
    A("s_mov_b64 exec, 1")
    A("global_store_dword %s, %s, %s" % (v(vT0), v(vT1), sr(sWS)))
    A("s_mov_b64 exec, -1")
    A.lab(l)
    dump_stamps()
    A.lab("L_end")
    A("s_endpgm")

build()
out = HEADER
out += "; Override launch geometry by editing the next line (default: block=256,\n"
out += "; @launch grid=(256,1,1) block=(320,1,1) lds=%d\n" % LDS_SIZE
out += '.amdgcn_target "amdgcn-amd-amdhsa--gfx950"\n.text\n.globl %s_kernel\n.p2align 8\n.type %s_kernel,@function\n%s_kernel:\n' % (NAME, NAME, NAME)
out += "\n".join(A.L) + "\n"
out += """.section .rodata,"a"
.p2align 6
.amdhsa_kernel %s_kernel
  .amdhsa_next_free_vgpr %d
  .amdhsa_next_free_sgpr 102
  .amdhsa_accum_offset %d
  .amdhsa_group_segment_fixed_size 0
  .amdhsa_kernarg_size 104
  .amdhsa_user_sgpr_count 2
  .amdhsa_user_sgpr_kernarg_segment_ptr 1
  .amdhsa_system_sgpr_workgroup_id_x 1
.end_amdhsa_kernel
""" % (NAME, NVGPR, NVGPR)
dst = sys.argv[1] if len(sys.argv) > 1 else "cdna_kernels/%s.s" % NAME
open(dst, "w").write(out)
print("wrote", dst, len(A.L), "lines")
if STAMPS:
    names = PRO + ["-"] * (4 - len(PRO))
    for n in LOO: names += [n + "_0", n + "_1"]
    open(dst + ".stamps", "w").write(",".join(names))
```

```python
import sys, struct, os

NAME = "interleave_layers__sliding_block_cached__dense_activation_gelu__decode"
HEADER = open("cdna_kernels/%s.s.ref" % NAME).read().split("; Override launch geometry")[0]
def f2u(x): return struct.unpack("<I", struct.pack("<f", x))[0]

class Asm:
    def __init__(s): s.L = []; s.n = 0
    def __call__(s, t): s.L.append("    " + t)
    def lab(s, l): s.L.append(l + ":")
    def new(s, p="L"): s.n += 1; return "%s_%d" % (p, s.n)
    def c(s, t): s.L.append("    ; " + t)
A = Asm()
def v(i): return "v%d" % i
def vr(i, n): return "v[%d:%d]" % (i, i + n - 1)
def sr(i, n=2): return "s[%d:%d]" % (i, i + n - 1)

NT = os.environ.get("NTPOL", " nt")
STAMPS = int(os.environ.get("STAMPS", "0"))
B0 = int(os.environ.get("B0", "0"))
PRETOUCH = int(os.environ.get("PRETOUCH", "1"))
DEFER = int(os.environ.get("DEFER", "1"))
SEL = os.environ.get("STSEL", "").split(",")
STW = int(os.environ.get("STW", "0"))

sG, sS, sW = 3, 4, 5
sTA, sTB, sE = 6, 7, 8
sT0, sT1, sT2 = 9, 10, 11
sKB, sVB = 12, 14
sX, sK, sV, sWQ, sWO, sW1, sB1 = 16, 18, 20, 22, 24, 28, 30
sW2, sB2, sOUT, sDBG, sWS = 32, 34, 36, 38, 40
sF = 42
sMODE, sXCC, sTBX, sIT = 44, 45, 46, 48
sTA0 = 47
sXBO = 49
sM = 50
sLOG2E, sSCALE, sINV512, sPLO, sPHI, sC1, sC2, sEPS = 54, 55, 56, 57, 58, 59, 60, 61
sL = 63
sO = 64

F_OFF = 0x100000
QB_OFF = 0x000000
ML_OFF = 0x004000
AG_OFF = 0x008000
XB_OFF = 0x010000
PO_OFF = 0x100000
RS_OFF = 0x200000
LAYER_STRIDE = 0x400000

L_WQ = 0
L_W1 = 16384
L_XN = 24576
L_Q = L_XN + 2048
L_O = L_Q + 1024
L_MODE = L_O + 64
L_AT = L_MODE + 64
AT_STRIDE = 2080
LDS_SIZE = L_AT + 4 * AT_STRIDE

vLANE = 1
vQLD, vPOST, vPLD, vMLLD, vXLD, vAGLD, vTRA = 2, 3, 4, 5, 7, 8, 9
vXR0, vXR1 = 10, 11
vB1, vB20, vB21 = 12, 13, 14
vXNW, vXNR = 15, 16
vATW, vATR = 17, 18
vTR1 = 19
vT0, vT1, vT2, vT3, vT4, vT5 = 20, 21, 22, 23, 24, 25
vQST, vXST, vAGST = 26, 27, 6
vQRD = 2
vMLST = 4
vX = 28
vK = 32
vVT = 64
vWO = 96
vW2 = 128
vB = 144
vA = 208
vS0 = 240
NVGPR = 256
LIMIT = 400000

PRO = []; LOO = []
def stamp(name, loop=True):
    if not STAMPS: return
    if SEL != [""] and name not in SEL and name != "start": return
    A("s_memrealtime s[82:83]")
    A("s_waitcnt lgkmcnt(0)")
    if not loop:
        if name not in PRO: PRO.append(name)
        A("s_mov_b32 s%d, s82" % (84 + PRO.index(name)))
    else:
        if name not in LOO: LOO.append(name)
        i = 4 + 2 * LOO.index(name)
        assert i + 1 < 18
        A("s_cmp_eq_u32 s%d, 0" % sL)
        A("s_cselect_b32 s%d, s82, s%d" % (84 + i, 84 + i))
        A("s_cselect_b32 s%d, s%d, s82" % (84 + i + 1, 84 + i + 1))
def dump_stamps():
    if not STAMPS: return
    l = A.new("Lst")
    A("s_cmp_lg_u32 s%d, %d" % (sW, STW))
    A("s_cbranch_scc1 %s" % l)
    A("s_lshl_b32 s%d, s2, 7" % sT0)
    A("s_add_u32 s%d, s%d, 0x2000000" % (sT0, sT0))
    A("v_mov_b32 %s, s%d" % (v(vT0), sT0))
    A("s_mov_b64 exec, 1")
    for i in range(18):
        A("v_mov_b32 %s, s%d" % (v(vT1), 84 + i))
        A("global_store_dword %s, %s, %s offset:%d" % (v(vT0), v(vT1), sr(sWS), 4 * i))
        A("s_nop 1")
    A("s_mov_b64 exec, -1")
    A.lab(l)

def nop(n): A("s_nop %d" % (n - 1))
DPPM = " row_mask:0xf bank_mask:0xf"

def dpp_reduce(regs, ctls, op):
    ins = "v_add_f32" if op == "add" else "v_max_f32"
    for ctl in ctls:
        nop(2 if len(regs) == 1 else 1)
        for r in regs:
            A("%s_dpp %s, %s, %s %s%s" % (ins, v(r), v(r), v(r), ctl, DPPM))

def xrow(regs, tmps, op):
    ins = "v_add_f32" if op == "add" else "v_max_f32"
    for sw in ["v_permlane16_swap_b32", "v_permlane32_swap_b32"]:
        for r, t in zip(regs, tmps):
            A("v_mov_b32 %s, %s" % (v(t), v(r)))
        nop(2 if len(regs) == 1 else 1)
        for r, t in zip(regs, tmps):
            A("%s %s, %s" % (sw, v(r), v(t)))
        nop(2 if len(regs) == 1 else 1)
        for r, t in zip(regs, tmps):
            A("%s %s, %s, %s" % (ins, v(r), v(r), v(t)))

def poll(loads, xcc=False):
    acc = vT5
    lp = A.new("Lpoll")
    A("s_mov_b32 s%d, 0" % sIT)
    A.lab(lp)
    for (d, a, off) in loads:
        A("global_load_dwordx4 %s, %s, %s offset:%d sc1" % (vr(d, 4), v(a), sr(sF), off))
    A("s_add_u32 s%d, s%d, 1" % (sIT, sIT))
    A("s_cmp_gt_u32 s%d, %d" % (sIT, LIMIT))
    A("s_cbranch_scc1 L_end")
    n = len(loads)
    for i, (d, a, off) in enumerate(loads):
        A("s_waitcnt vmcnt(%d)" % (n - 1 - i))
        A("v_xor_b32 %s, s%d, %s" % (v(vT3), sTA, v(d + 2)))
        A("v_xor_b32 %s, s%d, %s" % (v(vT4), sTB, v(d + 3)))
        if xcc:
            A("v_lshrrev_b32 %s, 3, %s" % (v(vT4), v(vT4)))
        if i == 0:
            A("v_or_b32 %s, %s, %s" % (v(acc), v(vT3), v(vT4)))
        else:
            A("v_or3_b32 %s, %s, %s, %s" % (v(acc), v(vT3), v(vT4), v(acc)))
    A("v_cmp_ne_u32 vcc, 0, %s" % v(acc))
    A("s_cbranch_vccnz %s" % lp)

def publish(dreg, areg, off=0, fast=True):
    o = " offset:%d" % off if off else ""
    if fast:
        l1 = A.new("Lpf"); l2 = A.new("Lpe")
        A("s_cmp_eq_u32 s%d, 1" % sMODE)
        A("s_cbranch_scc1 %s" % l1)
        A("global_store_dwordx4 %s, %s, %s%s sc1" % (v(areg), vr(dreg, 4), sr(sF), o))
        A("s_branch %s" % l2)
        A.lab(l1)
        A("global_store_dwordx4 %s, %s, %s%s" % (v(areg), vr(dreg, 4), sr(sF), o))
        A.lab(l2)
    else:
        A("global_store_dwordx4 %s, %s, %s%s sc1" % (v(areg), vr(dreg, 4), sr(sF), o))

def set_tags(d):
    A("v_mov_b32 %s, s%d" % (v(d + 2), sTA))
    A("v_mov_b32 %s, s%d" % (v(d + 3), sTB))

def layernorm(X, ldsoff):
    f = [vS0 + i for i in range(8)]
    d = [vS0 + 8 + i for i in range(8)]
    for i in range(4):
        A("v_lshlrev_b32 %s, 16, %s" % (v(f[2 * i]), v(X[i])))
        A("v_and_b32 %s, 0xffff0000, %s" % (v(f[2 * i + 1]), v(X[i])))
    A("v_readfirstlane_b32 s%d, %s" % (sT2, v(f[0])))
    nop(2)
    for i in range(8):
        A("v_subrev_f32 %s, s%d, %s" % (v(d[i]), sT2, v(f[i])))
    A("v_add_f32 %s, %s, %s" % (v(vT0), v(d[0]), v(d[1])))
    A("v_mul_f32 %s, %s, %s" % (v(vT1), v(d[0]), v(d[0])))
    A("v_add_f32 %s, %s, %s" % (v(vT2), v(d[2]), v(d[3])))
    A("v_mul_f32 %s, %s, %s" % (v(vT3), v(d[1]), v(d[1])))
    for i in (2, 4, 6):
        A("v_fmac_f32 %s, %s, %s" % (v(vT1), v(d[i]), v(d[i])))
        A("v_fmac_f32 %s, %s, %s" % (v(vT3), v(d[i + 1]), v(d[i + 1])))
    A("v_add_f32 %s, %s, %s" % (v(vT0), v(vT0), v(d[4])))
    A("v_add_f32 %s, %s, %s" % (v(vT2), v(vT2), v(d[5])))
    A("v_add_f32 %s, %s, %s" % (v(vT0), v(vT0), v(d[6])))
    A("v_add_f32 %s, %s, %s" % (v(vT2), v(vT2), v(d[7])))
    A("v_add_f32 %s, %s, %s" % (v(vT1), v(vT1), v(vT3)))
    A("v_add_f32 %s, %s, %s" % (v(vT0), v(vT0), v(vT2)))
    dpp_reduce([vT1, vT0], ["quad_perm:[1,0,3,2]", "quad_perm:[2,3,0,1]", "row_half_mirror", "row_mirror"], "add")
    xrow([vT1, vT0], [vT3, vT2], "add")
    A("v_mul_f32 %s, s%d, %s" % (v(vT0), sINV512, v(vT0)))
    A("v_mul_f32 %s, s%d, %s" % (v(vT1), sINV512, v(vT1)))
    A("v_fma_f32 %s, -%s, %s, %s" % (v(vT1), v(vT0), v(vT0), v(vT1)))
    A("v_add_f32 %s, s%d, %s" % (v(vT0), sT2, v(vT0)))
    A("v_max_f32 %s, 0, %s" % (v(vT1), v(vT1)))
    A("v_cvt_pk_bf16_f32 %s, %s, %s" % (v(vT2), v(vT0), v(vT1)))
    A("v_lshlrev_b32 %s, 16, %s" % (v(vT0), v(vT2)))
    A("v_and_b32 %s, 0xffff0000, %s" % (v(vT1), v(vT2)))
    A("v_add_f32 %s, s%d, %s" % (v(vT1), sEPS, v(vT1)))
    for i in range(4):
        A("v_sub_f32 %s, %s, %s" % (v(f[i]), v(f[i]), v(vT0)))
    A("v_cvt_pk_bf16_f32 %s, %s, %s" % (v(vT1), v(vT1), v(vT1)))
    for i in range(4, 8):
        A("v_sub_f32 %s, %s, %s" % (v(f[i]), v(f[i]), v(vT0)))
    A("v_and_b32 %s, 0xffff0000, %s" % (v(vT1), v(vT1)))
    A("v_sqrt_f32 %s, %s" % (v(vT1), v(vT1)))
    for i in range(4):
        A("v_cvt_pk_bf16_f32 %s, %s, %s" % (v(d[i]), v(f[2 * i]), v(f[2 * i + 1])))
    A("v_cvt_pk_bf16_f32 %s, %s, %s" % (v(vT1), v(vT1), v(vT1)))
    A("v_and_b32 %s, 0xffff0000, %s" % (v(vT1), v(vT1)))
    A("v_rcp_f32 %s, %s" % (v(vT1), v(vT1)))
    for i in range(4):
        A("v_lshlrev_b32 %s, 16, %s" % (v(f[2 * i]), v(d[i])))
        A("v_and_b32 %s, 0xffff0000, %s" % (v(f[2 * i + 1]), v(d[i])))
    for i in range(8):
        A("v_mul_f32 %s, %s, %s" % (v(f[i]), v(f[i]), v(vT1)))
    for i in range(4):
        A("v_cvt_pk_bf16_f32 %s, %s, %s" % (v(d[4 + i]), v(f[2 * i]), v(f[2 * i + 1])))
    A("ds_write_b128 %s, %s offset:%d" % (v(vXNW), vr(d[4], 4), ldsoff))

def prefetch_WQ():
    for c in range(16):
        off = L_WQ + c * 1024
        A("ds_read_b64_tr_b16 %s, %s offset:%d" % (vr(vB + 4 * c, 2), v(vTRA), off))
        A("ds_read_b64_tr_b16 %s, %s offset:%d" % (vr(vB + 4 * c + 2, 2), v(vTRA), off + 128))

def prefetch_W1():
    for c in range(8):
        off = L_W1 + c * 512
        A("ds_read_b64_tr_b16 %s, %s offset:%d" % (vr(vB + 4 * c, 2), v(vTR1), off))
        A("ds_read_b64_tr_b16 %s, %s offset:%d" % (vr(vB + 4 * c + 2, 2), v(vTR1), off + 64))

def gemv(acc, nch):
    n0 = min(nch, 8)
    for c in range(n0):
        A("ds_read_b128 %s, %s offset:%d" % (vr(vA + 4 * c, 4), v(vXNR), c * 64))
    for c in range(nch):
        issued = n0 + min(c, nch - n0)
        A("s_waitcnt lgkmcnt(%d)" % (issued - c - 1))
        A("v_mfma_f32_16x16x32_bf16 %s, %s, %s, %s" % (vr(acc, 4), vr(vA + 4 * (c % 8), 4), vr(vB + 4 * c, 4), "0" if c == 0 else vr(acc, 4)))
        if c + 8 < nch:
            A("ds_read_b128 %s, %s offset:%d" % (vr(vA + 4 * c, 4), v(vXNR), (c + 8) * 64))
    nop(8); nop(2)

def first_begin():
    l = A.new("Lnf")
    A("s_cmp_lg_u32 s%d, 0" % sL)
    A("s_cbranch_scc1 %s" % l)
    return l
def notfirst_begin():
    l = A.new("Lnn")
    A("s_cmp_eq_u32 s%d, 0" % sL)
    A("s_cbranch_scc1 %s" % l)
    return l

def poll_AG(idx, X):
    a = vAGLD
    poll([(X, a, 0), (X + 4, a, 16)])
    return [X, X + 1, X + 4, X + 5]

def reduce_hops(idx, mlp):
    T = vS0
    A.c("---- RS consumer %d" % idx)
    phase(2 + idx)
    A("v_add_u32 %s, 0x%x, %s" % (v(vT0), RS_OFF, v(vPLD)))
    set_tags(T)
    poll([(vA + 4 * i, vT0, 1024 * i) for i in range(4)])
    stamp("rs_got%d" % idx)
    for d in range(2):
        A("v_add_f32 %s, %s, %s" % (v(T + d), v(vA + d), v(vA + 4 + d)))
        A("v_add_f32 %s, %s, %s" % (v(T + 4 + d), v(vA + 8 + d), v(vA + 12 + d)))
    for d in range(2):
        A("v_add_f32 %s, %s, %s" % (v(T + d), v(T + d), v(T + 4 + d)))
    dpp_reduce([T, T + 1], ["row_ror:8"], "add")
    xrow([T, T + 1], [T + 4, T + 5], "add")
    A("v_add_u32 %s, s%d, %s" % (v(vT0), sXBO, v(vXST)))
    A("s_mov_b64 exec, 0xff")
    publish(T, vT0, fast=False)
    A("s_mov_b64 exec, -1")
    A.c("---- X consumer %d" % idx)
    A("v_add_u32 %s, s%d, %s" % (v(vT0), sXBO, v(vXLD)))
    A("s_add_u32 s%d, s%d, 0x8000" % (sXBO, sXBO))
    poll([(vA, vT0, 0)])
    stamp("x_got%d" % idx)
    dpp_reduce([vA, vA + 1], ["row_ror:8"], "add")
    xrow([vA, vA + 1], [T + 4, T + 5], "add")
    A("v_cvt_pk_bf16_f32 %s, %s, %s" % (v(vT1), v(vA), v(vA + 1)))
    A("v_lshlrev_b32 %s, 16, %s" % (v(vA), v(vT1)))
    A("v_and_b32 %s, 0xffff0000, %s" % (v(vA + 1), v(vT1)))
    if mlp:
        A("v_add_f32 %s, %s, %s" % (v(vA), v(vA), v(vB20)))
        A("v_add_f32 %s, %s, %s" % (v(vA + 1), v(vA + 1), v(vB21)))
        A("v_cvt_pk_bf16_f32 %s, %s, %s" % (v(vT1), v(vA), v(vA + 1)))
        A("v_lshlrev_b32 %s, 16, %s" % (v(vA), v(vT1)))
        A("v_and_b32 %s, 0xffff0000, %s" % (v(vA + 1), v(vT1)))
    A("v_add_f32 %s, %s, %s" % (v(vA), v(vA), v(vXR0)))
    A("v_add_f32 %s, %s, %s" % (v(vA + 1), v(vA + 1), v(vXR1)))
    A("v_cvt_pk_bf16_f32 %s, %s, %s" % (v(T), v(vA), v(vA + 1)))
    A("v_lshlrev_b32 %s, 16, %s" % (v(vXR0), v(T)))
    A("v_and_b32 %s, 0xffff0000, %s" % (v(vXR1), v(T)))
    if mlp:
        A("s_cmp_eq_u32 s%d, 1" % sL)
        A("s_cbranch_scc1 L_final")
    A("v_mov_b32_dpp %s, %s quad_perm:[1,1,3,3]%s" % (v(T + 1), v(T), DPPM))
    A("s_mov_b64 exec, 0x55")
    publish(T, vAGST)
    A("s_mov_b64 exec, -1")

def tags_setup():
    A("s_add_u32 s%d, s%d, 0x%x" % (sF, sWS, F_OFF))
    A("s_addc_u32 s%d, s%d, 0" % (sF + 1, sWS + 1))
    A("s_mov_b32 s%d, 0" % sMODE)
    A("s_mov_b32 s%d, 0" % sL)
    A("s_mov_b32 s%d, 0" % sXBO)
    A("s_getreg_b32 s%d, hwreg(HW_REG_XCC_ID)" % sXCC)
    A("s_and_b32 s%d, s%d, 7" % (sXCC, sXCC))
    A("s_waitcnt lgkmcnt(0)")
    A("s_xor_b32 s%d, s%d, 0x9e3779b9" % (sTA0, sE))
    A("s_mov_b32 s%d, s%d" % (sTA, sTA0))
    A("s_mul_i32 s%d, s%d, 0x85ebca6b" % (sTB, sE))
    A("s_add_u32 s%d, s%d, 0xc2b2ae35" % (sTB, sTB))
    A("s_xor_b32 s%d, s%d, s%d" % (sTBX, sTB, sXCC))

def next_layer():
    A("s_add_u32 s%d, s%d, 4" % (sTA0, sTA0))
    A("s_add_u32 s%d, s%d, 1" % (sL, sL))
def phase(p):
    A("s_add_u32 s%d, s%d, %d" % (sTA, sTA0, p))

def build():
    A("s_cmp_ge_u32 s2, 256")
    A("s_cbranch_scc1 L_end")
    A("s_load_dwordx16 s[16:31], s[0:1], 0")
    A("s_load_dwordx8 s[32:39], s[0:1], 64")
    A("s_load_dwordx2 s[40:41], s[0:1], 96")
    A("s_and_b32 s%d, s2, 7" % sG)
    A("s_lshr_b32 s%d, s2, 3" % sS)
    A("v_and_b32 %s, 63, v0" % v(vLANE))
    A("v_lshrrev_b32 %s, 6, v0" % v(vT0))
    nop(1)
    A("v_readfirstlane_b32 s%d, %s" % (sW, v(vT0)))
    for (r, val) in [(sLOG2E, f2u(1.4426950408889634)), (sSCALE, f2u(0.08838834764831845)), (sINV512, f2u(1.0 / 512)),
                     (sPLO, 0x05040100), (sPHI, 0x07060302),
                     (sC1, f2u(-2 * 0.7978845608028654 * 1.4426950408889634)),
                     (sC2, f2u(-2 * 0.7978845608028654 * 0.044715 * 1.4426950408889634)), (sEPS, f2u(1e-5))]:
        A("s_mov_b32 s%d, 0x%08x" % (r, val))
    A("v_and_b32 %s, 15, %s" % (v(vT1), v(vLANE)))
    A("v_lshrrev_b32 %s, 4, %s" % (v(vT2), v(vLANE)))
    A("s_cmp_eq_u32 s%d, 4" % sW)
    A("s_cbranch_scc1 L_comm")

    A.c("=========== compute waves prologue")
    A("s_lshl_b32 s%d, s%d, 24" % (sT0, sG))
    A("s_lshl_b32 s%d, s%d, 15" % (sT1, sS))
    A("s_add_u32 s%d, s%d, s%d" % (sT0, sT0, sT1))
    A("s_lshl_b32 s%d, s%d, 13" % (sT1, sW))
    A("s_add_u32 s%d, s%d, s%d" % (sT0, sT0, sT1))
    A("s_add_u32 s%d, s%d, %d" % (sT0, sT0, 61440 * 256))
    A("v_lshlrev_b32 %s, 8, %s" % (v(vT3), v(vT1)))
    A("v_lshl_add_u32 %s, %s, 4, %s" % (v(vT3), v(vT2), v(vT3)))
    A("v_add_u32 %s, 0x1000, %s" % (v(vT4), v(vT3)))
    A("s_waitcnt lgkmcnt(0)")
    stamp("start", loop=False)
    A("s_load_dword s%d, %s, 0" % (sE, sr(sWS)))
    A("s_add_u32 s%d, s%d, s%d" % (sKB, sK, sT0))
    A("s_addc_u32 s%d, s%d, 0" % (sKB + 1, sK + 1))
    A("s_add_u32 s%d, s%d, s%d" % (sVB, sV, sT0))
    A("s_addc_u32 s%d, s%d, 0" % (sVB + 1, sV + 1))
    def kloads():
        A("v_lshlrev_b32 %s, 8, %s" % (v(vT3), v(vT1)))
        A("v_lshl_add_u32 %s, %s, 4, %s" % (v(vT3), v(vT2), v(vT3)))
        A("v_add_u32 %s, 0x1000, %s" % (v(vT4), v(vT3)))
        for T in range(2):
            for c in range(4):
                A("global_load_dwordx4 %s, %s, %s offset:%d%s" % (vr(vK + (T * 4 + c) * 4, 4), v(vT3 if T == 0 else vT4), sr(sKB), c * 64, NT))
    if B0 != 2: kloads()
    A("v_and_b32 %s, 3, %s" % (v(vT3), v(vT1)))
    A("v_lshlrev_b32 %s, 8, %s" % (v(vQRD), v(vT3)))
    A("v_lshl_add_u32 %s, %s, 4, %s" % (v(vQRD), v(vT2), v(vQRD)))
    A("v_add_u32 %s, %d, %s" % (v(vQRD), L_Q, v(vQRD)))
    A("v_lshrrev_b32 %s, 2, %s" % (v(vT3), v(vT1)))
    A("v_lshl_add_u32 %s, %s, 3, %s" % (v(vT3), v(vT2), v(vT3)))
    A("v_lshlrev_b32 %s, 4, %s" % (v(vTR1), v(vT3)))
    A("v_and_b32 %s, 1, %s" % (v(vT4), v(vT1)))
    A("v_lshl_add_u32 %s, %s, 3, %s" % (v(vTR1), v(vT4), v(vTR1)))
    A("v_and_b32 %s, 2, %s" % (v(vT4), v(vT1)))
    A("v_lshl_add_u32 %s, %s, 11, %s" % (v(vTR1), v(vT4), v(vTR1)))
    A("v_and_b32 %s, 1, %s" % (v(vT4), v(vT1)))
    A("v_lshlrev_b32 %s, 4, %s" % (v(vXNR), v(vT2)))
    A("v_lshl_add_u32 %s, %s, 9, %s" % (v(vXNR), v(vT4), v(vXNR)))
    A("v_add_u32 %s, %d, %s" % (v(vXNR), L_XN + 1024, v(vXNR)))
    A("v_lshrrev_b32 %s, 3, v0" % v(vT3))
    A("s_lshl_b32 s%d, s%d, 5" % (sT1, sG))
    A("v_add_u32 %s, s%d, %s" % (v(vT3), sT1, v(vT3)))
    A("v_lshlrev_b32 %s, 5, %s" % (v(vT3), v(vT3)))
    A("v_add_u32 %s, s%d, %s" % (v(vT3), sS, v(vT3)))
    A("v_lshlrev_b32 %s, 7, %s" % (v(vT3), v(vT3)))
    A("v_and_b32 %s, 7, v0" % v(vT4))
    A("v_lshl_add_u32 %s, %s, 4, %s" % (v(vPOST), v(vT4), v(vT3)))
    A("s_lshl_b32 s%d, s%d, 2" % (sT0, sG))
    A("s_add_u32 s%d, s%d, s%d" % (sT0, sT0, sW))
    A("s_lshl_b32 s%d, s%d, 5" % (sT0, sT0))
    A("s_add_u32 s%d, s%d, s%d" % (sT0, sT0, sS))
    A("s_lshl_b32 s%d, s%d, 4" % (sT0, sT0))
    A("s_add_u32 s%d, s%d, 0x%x" % (sT0, sT0, ML_OFF))
    A("v_mov_b32 %s, s%d" % (v(vMLST), sT0))
    A("s_mul_i32 s%d, s%d, %d" % (sT1, sW, AT_STRIDE))
    A("s_add_u32 s%d, s%d, %d" % (sT1, sT1, L_AT))
    A("v_lshlrev_b32 %s, 9, %s" % (v(vATW), v(vT1)))
    A("v_lshl_add_u32 %s, %s, 4, %s" % (v(vATW), v(vT2), v(vATW)))
    A("v_add_u32 %s, s%d, %s" % (v(vATW), sT1, v(vATW)))
    A("s_lshl_b32 s%d, s%d, 9" % (sT1, sW))
    A("s_add_u32 s%d, s%d, %d" % (sT1, sT1, L_AT))
    A("v_lshlrev_b32 %s, 3, %s" % (v(vATR), v(vLANE)))
    A("v_add_u32 %s, s%d, %s" % (v(vATR), sT1, v(vATR)))
    A("s_mov_b32 s%d, 0x000f000f" % sM)
    A("s_mov_b32 s%d, 0x000f000f" % (sM + 1))
    tags_setup()
    if B0: A("s_barrier")
    if B0 == 2: kloads()
    A("v_lshlrev_b32 %s, 10, %s" % (v(vT3), v(vT2)))
    A("v_lshl_add_u32 %s, %s, 4, %s" % (v(vT3), v(vT1), v(vT3)))
    A("v_add_u32 %s, 0x1000, %s" % (v(vT4), v(vT3)))
    VRAW = vB
    for j in range(8):
        A("global_load_dwordx4 %s, %s, %s offset:%d%s" % (vr(VRAW + 4 * j, 4), v(vT3 if j < 4 else vT4), sr(sVB), (j % 4) * 256, NT))
    W1RAW = vB + 32
    def wo_loads():
        A("s_lshl_b32 s%d, s%d, 2" % (sT0, sG))
        A("s_lshr_b32 s%d, s%d, 3" % (sT1, sS))
        A("s_add_u32 s%d, s%d, s%d" % (sT0, sT0, sT1))
        A("s_lshl_b32 s%d, s%d, 7" % (sT0, sT0))
        A("s_and_b32 s%d, s%d, 7" % (sT1, sS))
        A("s_add_u32 s%d, s%d, s%d" % (sT0, sT0, sT1))
        A("s_lshl_b32 s%d, s%d, 10" % (sT0, sT0))
        A("v_lshlrev_b32 %s, 2, v0" % v(vT0))
        A("v_add_u32 %s, s%d, %s" % (v(vT0), sT0, v(vT0)))
        for k in range(16):
            if k:
                A("v_add_u32 %s, 0x2000, %s" % (v(vT0), v(vT0)))
            A("global_load_dword %s, %s, %s%s" % (v(vWO + 16 + k), v(vT0), sr(sWO), NT))
    def w12_loads():
        A("s_min_u32 s%d, s%d, 27" % (sT0, sS))
        A("s_mul_i32 s%d, s%d, 28" % (sT1, sG))
        A("s_add_u32 s%d, s%d, s%d" % (sT0, sT0, sT1))
        A("s_lshl_b32 s%d, s%d, 4" % (sT1, sT0))
        A("v_mul_u32_u24 %s, 0xe00, v0" % v(vT3))
        A("v_add_u32 %s, s%d, %s" % (v(vT3), sT1, v(vT3)))
        A("global_load_dwordx4 %s, %s, %s%s" % (vr(W1RAW, 4), v(vT3), sr(sW1), NT))
        A("v_add_u32 %s, 0x%x, %s" % (v(vT3), 256 * 3584, v(vT3)))
        A("global_load_dwordx4 %s, %s, %s%s" % (vr(W1RAW + 4, 4), v(vT3), sr(sW1), NT))
        A("v_and_b32 %s, 7, %s" % (v(vT3), v(vLANE)))
        A("v_lshlrev_b32 %s, 1, %s" % (v(vT3), v(vT3)))
        A("v_add_u32 %s, s%d, %s" % (v(vT3), sT1, v(vT3)))
        A("global_load_ushort %s, %s, %s" % (v(vB1), v(vT3), sr(sB1)))
        A("s_lshl_b32 s%d, s%d, 13" % (sT1, sT0))
        A("v_lshlrev_b32 %s, 2, v0" % v(vT3))
        A("v_add_u32 %s, s%d, %s" % (v(vT3), sT1, v(vT3)))
        A("v_add_u32 %s, 0x1000, %s" % (v(vT4), v(vT3)))
        for k in range(8):
            A("global_load_dword %s, %s, %s offset:%d%s" % (v(vW2 + 8 + k), v(vT3 if k < 4 else vT4), sr(sW2), (k % 4) * 1024, NT))
    if DEFER == 0:
        wo_loads(); w12_loads()
    A("s_waitcnt vmcnt(%d)" % (27 if DEFER == 0 else 0))
    stamp("kv_landed", loop=False)
    for i in range(8):
        q = i // 2
        sel = sPLO if i % 2 == 0 else sPHI
        for p in range(4):
            A("v_perm_b32 %s, %s, %s, s%d" % (v(vVT + 4 * i + p), v(VRAW + 4 * (2 * p + 1) + q), v(VRAW + 4 * (2 * p) + q), sel))

    if DEFER == 1:
        wo_loads()
    if DEFER == 2:
        wo_loads(); w12_loads()
    A.lab("L_cloop")
    A.c("================= attention")
    A("s_barrier")
    Q = vB
    for c in range(4):
        A("ds_read_b128 %s, %s offset:%d" % (vr(Q + 4 * c, 4), v(vQRD), c * 64))
    lf = first_begin()
    A("v_mov_b32 %s, %d" % (v(vT4), L_MODE))
    A("ds_read_b32 %s, %s" % (v(vT3), v(vT4)))
    A("s_waitcnt lgkmcnt(0)")
    A("v_readfirstlane_b32 s%d, %s" % (sMODE, v(vT3)))
    A.lab(lf)
    stamp("b1")
    S = vS0
    for c in range(4):
        A("s_waitcnt lgkmcnt(%d)" % (3 - c))
        for T in range(2):
            A("v_mfma_f32_16x16x32_bf16 %s, %s, %s, %s" % (vr(S + 4 * T, 4), vr(vK + (T * 4 + c) * 4, 4), vr(Q + 4 * c, 4), "0" if c == 0 else vr(S + 4 * T, 4)))
    nop(8); nop(2)
    P = vS0 + 8
    for rnd in range(2):
        for i in range(4):
            A("v_cvt_pk_bf16_f32 %s, %s, %s" % (v(P + i), v(S + 2 * i), v(S + 2 * i + 1)))
        for i in range(4):
            A("v_lshlrev_b32 %s, 16, %s" % (v(S + 2 * i), v(P + i)))
            A("v_and_b32 %s, 0xffff0000, %s" % (v(S + 2 * i + 1), v(P + i)))
        if rnd == 0:
            for i in range(8):
                A("v_mul_f32 %s, s%d, %s" % (v(S + i), sSCALE, v(S + i)))
    A("v_max3_f32 %s, %s, %s, %s" % (v(vT0), v(S), v(S + 1), v(S + 2)))
    A("v_max3_f32 %s, %s, %s, %s" % (v(vT1), v(S + 3), v(S + 4), v(S + 5)))
    A("v_max3_f32 %s, %s, %s, %s" % (v(vT0), v(S + 6), v(S + 7), v(vT0)))
    A("v_max_f32 %s, %s, %s" % (v(vT0), v(vT0), v(vT1)))
    xrow([vT0], [vT1], "max")
    A("v_mul_f32 %s, s%d, %s" % (v(vT2), sLOG2E, v(vT0)))
    for i in range(8):
        A("v_fma_f32 %s, %s, s%d, -%s" % (v(S + i), v(S + i), sLOG2E, v(vT2)))
    for i in range(8):
        A("v_exp_f32 %s, %s" % (v(S + i), v(S + i)))
    nop(1)
    for i in range(4):
        A("v_cvt_pk_bf16_f32 %s, %s, %s" % (v(P + i), v(S + 2 * i), v(S + 2 * i + 1)))
    A("v_add_f32 %s, %s, %s" % (v(vT1), v(S), v(S + 1)))
    A("v_add_f32 %s, %s, %s" % (v(vT2), v(S + 2), v(S + 3)))
    D = vA
    for i in range(8):
        A("v_mfma_f32_16x16x32_bf16 %s, %s, %s, 0" % (vr(D + 4 * i, 4), vr(vVT + 4 * i, 4), vr(P, 4)))
        if i == 0:
            A("v_add_f32 %s, %s, %s" % (v(vT3), v(S + 4), v(S + 5)))
            A("v_add_f32 %s, %s, %s" % (v(vT4), v(S + 6), v(S + 7)))
        if i == 1:
            A("v_add_f32 %s, %s, %s" % (v(vT1), v(vT1), v(vT2)))
            A("v_add_f32 %s, %s, %s" % (v(vT3), v(vT3), v(vT4)))
        if i == 2:
            A("v_add_f32 %s, %s, %s" % (v(vT1), v(vT1), v(vT3)))
        if i == 3:
            xrow([vT1], [vT2], "add")
    A("s_mul_i32 s%d, s%d, %d" % (sT1, sW, AT_STRIDE))
    A("s_add_u32 s%d, s%d, %d" % (sT1, sT1, L_AT + 2048))
    A("v_lshlrev_b32 %s, 3, %s" % (v(vT2), v(vLANE)))
    A("v_add_u32 %s, s%d, %s" % (v(vT2), sT1, v(vT2)))
    A("s_mov_b64 exec, 0xf")
    A("ds_write_b64 %s, %s" % (v(vT2), vr(vT0, 2)))
    A("s_mov_b64 exec, %s" % sr(sM))
    for i in range(8):
        if i == 6: nop(4)
        A("ds_write_b128 %s, %s offset:%d" % (v(vATW), vr(D + 4 * i, 4), i * 64))
    A("s_mov_b64 exec, -1")
    A("s_lshl_b32 s%d, s%d, 3" % (sT1, sW))
    A("s_add_u32 s%d, s%d, %d" % (sT1, sT1, L_AT + 2048))
    A("v_mov_b32 %s, s%d" % (v(vT2), sT1))
    G = vS0
    phase(1)
    set_tags(G)
    set_tags(G + 4)
    A("v_add_u32 %s, 0x%x, %s" % (v(vT0), PO_OFF, v(vPOST)))
    A("s_waitcnt lgkmcnt(0)")
    A("s_barrier")
    R = vA
    for w in range(4):
        A("ds_read_b64 %s, %s offset:%d" % (vr(R + 8 + 2 * w, 2), v(vT2), w * AT_STRIDE))
    for w in range(4):
        A("ds_read_b64 %s, %s offset:%d" % (vr(R + 2 * w, 2), v(vATR), w * AT_STRIDE))
    A("s_waitcnt lgkmcnt(4)")
    A("v_max_f32 %s, %s, %s" % (v(G + 4), v(R + 8), v(R + 10)))
    A("v_max3_f32 %s, %s, %s, %s" % (v(G + 4), v(R + 12), v(R + 14), v(G + 4)))
    for w in range(4):
        A("v_sub_f32 %s, %s, %s" % (v(R + 8 + 2 * w), v(R + 8 + 2 * w), v(G + 4)))
    for w in range(4):
        A("v_mul_f32 %s, s%d, %s" % (v(R + 8 + 2 * w), sLOG2E, v(R + 8 + 2 * w)))
    for w in range(4):
        A("v_exp_f32 %s, %s" % (v(R + 8 + 2 * w), v(R + 8 + 2 * w)))
    A("s_waitcnt lgkmcnt(0)")
    A("v_mul_f32 %s, %s, %s" % (v(G), v(R + 8), v(R)))
    A("v_mul_f32 %s, %s, %s" % (v(G + 1), v(R + 8), v(R + 1)))
    A("v_mul_f32 %s, %s, %s" % (v(G + 5), v(R + 8), v(R + 9)))
    for w in range(1, 4):
        A("v_fmac_f32 %s, %s, %s" % (v(G), v(R + 8 + 2 * w), v(R + 2 * w)))
        A("v_fmac_f32 %s, %s, %s" % (v(G + 1), v(R + 8 + 2 * w), v(R + 2 * w + 1)))
        A("v_fmac_f32 %s, %s, %s" % (v(G + 5), v(R + 8 + 2 * w), v(R + 9 + 2 * w)))
    publish(G, vT0)
    A("s_mov_b64 exec, 1")
    publish(G + 4, vMLST)
    A("s_mov_b64 exec, -1")
    stamp("p_pub")
    def stage_w12():
        A("v_lshlrev_b32 %s, 4, v0" % v(vT0))
        A("ds_write_b128 %s, %s offset:%d" % (v(vT0), vr(W1RAW, 4), L_W1))
        A("ds_write_b128 %s, %s offset:%d" % (v(vT0), vr(W1RAW + 4, 4), L_W1 + 4096))
        for k in range(8):
            A("v_lshlrev_b32 %s, 16, %s" % (v(vW2 + k), v(vW2 + 8 + k)))
            A("v_and_b32 %s, 0xffff0000, %s" % (v(vW2 + 8 + k), v(vW2 + 8 + k)))
        A("v_lshlrev_b32 %s, 16, %s" % (v(vB1), v(vB1)))
        A("s_waitcnt lgkmcnt(0)")
    lf = first_begin()
    A.c("unpack wo, stage w1, unpack w2")
    A("s_waitcnt vmcnt(2)")
    for k in range(16):
        A("v_lshlrev_b32 %s, 16, %s" % (v(vWO + k), v(vWO + 16 + k)))
        A("v_and_b32 %s, 0xffff0000, %s" % (v(vWO + 16 + k), v(vWO + 16 + k)))
    if DEFER == 1:
        w12_loads()
    else:
        stage_w12()
    A.lab(lf)

    A.c("================= o-proj")
    G = vS0 + 8
    T = vS0
    phase(2)
    set_tags(G)
    A("v_mov_b32 %s, %d" % (v(vT1), L_O))
    A("v_add_u32 %s, 0x%x, %s" % (v(vT0), RS_OFF, v(vPOST)))
    A("s_barrier")
    O = vA
    for i in range(4):
        A("ds_read_b128 %s, %s offset:%d" % (vr(O + 4 * i, 4), v(vT1), 16 * i))
    stamp("b3")
    for i in range(4):
        A("s_waitcnt lgkmcnt(%d)" % (3 - i))
        for kk in range(4):
            k = 4 * i + kk
            a0, a1 = (G, G + 1) if k % 2 == 0 else (T + 4, T + 5)
            ins = "v_mul_f32" if k < 2 else "v_fmac_f32"
            A("%s %s, %s, %s" % (ins, v(a0), v(O + k), v(vWO + k)))
            A("%s %s, %s, %s" % (ins, v(a1), v(O + k), v(vWO + 16 + k)))
    A("v_add_f32 %s, %s, %s" % (v(G), v(G), v(T + 4)))
    A("v_add_f32 %s, %s, %s" % (v(G + 1), v(G + 1), v(T + 5)))
    publish(G, vT0)
    stamp("rs_pub0")

    A.c("================= MLP")
    if DEFER == 1:
        lf = first_begin()
        A("s_waitcnt vmcnt(0)")
        stage_w12()
        A.lab(lf)
        ln = notfirst_begin()
        prefetch_W1()
        A.lab(ln)
    else:
        prefetch_W1()
    A("v_add_u32 %s, 0x%x, %s" % (v(vT0), RS_OFF, v(vPOST)))
    A("s_barrier")
    if DEFER == 1:
        lf = first_begin()
        prefetch_W1()
        A.lab(lf)
    stamp("b4")
    gemv(vS0, 8)
    T = vS0
    A("v_add_f32_dpp %s, %s, %s row_ror:8%s" % (v(T), v(T + 1), v(T), DPPM))
    G = vS0 + 8
    phase(3)
    set_tags(G)
    A("v_cvt_pk_bf16_f32 %s, %s, %s" % (v(T), v(T), v(T)))
    A("v_and_b32 %s, 0xffff0000, %s" % (v(T), v(T)))
    A("v_add_f32 %s, %s, %s" % (v(T), v(T), v(vB1)))
    A("v_cvt_pk_bf16_f32 %s, %s, %s" % (v(T), v(T), v(T)))
    A("v_and_b32 %s, 0xffff0000, %s" % (v(T), v(T)))
    A("v_mul_f32 %s, %s, %s" % (v(T + 1), v(T), v(T)))
    A("v_mov_b32 %s, s%d" % (v(T + 2), sC1))
    A("v_fmac_f32 %s, s%d, %s" % (v(T + 2), sC2, v(T + 1)))
    A("v_mul_f32 %s, %s, %s" % (v(T + 2), v(T + 2), v(T)))
    A("v_exp_f32 %s, %s" % (v(T + 2), v(T + 2)))
    nop(1)
    A("v_add_f32 %s, 1.0, %s" % (v(T + 2), v(T + 2)))
    A("v_rcp_f32 %s, %s" % (v(T + 2), v(T + 2)))
    nop(1)
    A("v_mul_f32 %s, %s, %s" % (v(T), v(T), v(T + 2)))
    A("v_cvt_pk_bf16_f32 %s, %s, %s" % (v(T), v(T), v(T)))
    A("v_and_b32 %s, 0xffff0000, %s" % (v(T), v(T)))
    A("s_cmp_lt_u32 s%d, 28" % sS)
    A("s_cbranch_scc1 L_hok")
    A("v_mov_b32 %s, 0" % v(T))
    A.lab("L_hok")
    nop(1)
    for k in range(8):
        A("v_readlane_b32 s%d, %s, %d" % (sO + k, v(T), k))
    A("v_mul_f32 %s, s%d, %s" % (v(G), sO, v(vW2)))
    A("v_mul_f32 %s, s%d, %s" % (v(G + 1), sO, v(vW2 + 8)))
    A("v_mul_f32 %s, s%d, %s" % (v(T + 4), sO + 1, v(vW2 + 1)))
    A("v_mul_f32 %s, s%d, %s" % (v(T + 5), sO + 1, v(vW2 + 9)))
    for k in range(2, 8, 2):
        A("v_fmac_f32 %s, s%d, %s" % (v(G), sO + k, v(vW2 + k)))
        A("v_fmac_f32 %s, s%d, %s" % (v(G + 1), sO + k, v(vW2 + 8 + k)))
        A("v_fmac_f32 %s, s%d, %s" % (v(T + 4), sO + k + 1, v(vW2 + k + 1)))
        A("v_fmac_f32 %s, s%d, %s" % (v(T + 5), sO + k + 1, v(vW2 + 9 + k)))
    A("v_add_f32 %s, %s, %s" % (v(G), v(G), v(T + 4)))
    A("v_add_f32 %s, %s, %s" % (v(G + 1), v(G + 1), v(T + 5)))
    publish(G, vT0)
    stamp("rs_pub1")
    next_layer()
    A("s_cmp_lt_u32 s%d, 2" % sL)
    A("s_cbranch_scc1 L_cloop")
    dump_stamps()
    A("s_endpgm")

    A.lab("L_comm")
    if os.environ.get("THR"):
        A("s_memrealtime s[100:101]")
    A("s_setprio 3")
    A("v_lshrrev_b32 %s, 2, %s" % (v(vT3), v(vT1)))
    A("v_lshl_add_u32 %s, %s, 3, %s" % (v(vT3), v(vT2), v(vT3)))
    A("v_and_b32 %s, 3, %s" % (v(vT4), v(vT1)))
    A("v_lshlrev_b32 %s, 5, %s" % (v(vTRA), v(vT3)))
    A("v_lshl_add_u32 %s, %s, 3, %s" % (v(vTRA), v(vT4), v(vTRA)))
    A("v_lshlrev_b32 %s, 4, %s" % (v(vXNR), v(vT2)))
    A("v_add_u32 %s, %d, %s" % (v(vXNR), L_XN, v(vXNR)))
    A("v_lshrrev_b32 %s, 1, %s" % (v(vT3), v(vLANE)))
    A("v_lshlrev_b32 %s, 13, %s" % (v(vT3), v(vT3)))
    A("v_and_b32 %s, 1, %s" % (v(vT4), v(vLANE)))
    A("v_lshl_add_u32 %s, %s, 4, %s" % (v(vT3), v(vT4), v(vT3)))
    A("s_lshl_b32 s%d, s%d, 10" % (sT0, sG))
    A("s_lshl_b32 s%d, s%d, 5" % (sT1, sS))
    A("s_add_u32 s%d, s%d, s%d" % (sT0, sT0, sT1))
    A("v_add_u32 %s, s%d, %s" % (v(vT3), sT0, v(vT3)))
    A("v_lshlrev_b32 %s, 4, %s" % (v(vXNW), v(vLANE)))
    A("v_and_b32 %s, 7, %s" % (v(vT4), v(vLANE)))
    A("v_lshlrev_b32 %s, 2, %s" % (v(vT4), v(vT4)))
    A("v_add_u32 %s, s%d, %s" % (v(vT4), sT1, v(vT4)))
    A("s_waitcnt lgkmcnt(0)")
    stamp("start", loop=False)
    A("s_load_dword s%d, %s, 0" % (sE, sr(sWS)))
    A("global_load_dwordx4 %s, %s, %s" % (vr(vX, 4), v(vXNW), sr(sX)))
    for i in range(16):
        if i:
            A("v_add_u32 %s, 0x40000, %s" % (v(vT3), v(vT3)))
        A("global_load_dwordx4 %s, %s, %s%s" % (vr(vK + 4 * i, 4), v(vT3), sr(sWQ), NT))
    A("global_load_dword %s, %s, %s" % (v(vXR1), v(vT4), sr(sX)))
    A("global_load_dword %s, %s, %s" % (v(vB21), v(vT4), sr(sB2)))
    A("s_lshl_b32 s%d, s%d, 11" % (sT0, sG))
    A("v_lshlrev_b32 %s, 5, %s" % (v(vQLD), v(vLANE)))
    A("v_add_u32 %s, s%d, %s" % (v(vQLD), sT0, v(vQLD)))
    A("v_add_u32 %s, 0x%x, %s" % (v(vAGLD), AG_OFF, v(vQLD)))
    A("s_lshl_b32 s%d, s%d, 6" % (sT1, sS))
    A("s_add_u32 s%d, s%d, s%d" % (sT0, sT0, sT1))
    A("v_and_b32 %s, 12, %s" % (v(vQST), v(vLANE)))
    A("v_lshlrev_b32 %s, 2, %s" % (v(vQST), v(vQST)))
    A("v_add_u32 %s, s%d, %s" % (v(vQST), sT0, v(vQST)))
    A("s_add_u32 s%d, s%d, 0x%x" % (sT0, sT0, AG_OFF))
    A("v_and_b32 %s, 6, %s" % (v(vAGST), v(vLANE)))
    A("v_lshlrev_b32 %s, 3, %s" % (v(vAGST), v(vAGST)))
    A("v_add_u32 %s, s%d, %s" % (v(vAGST), sT0, v(vAGST)))
    A("s_lshl_b32 s%d, s%d, 10" % (sT0, sS))
    A("s_add_u32 s%d, s%d, 0x%x" % (sT0, sT0, XB_OFF))
    A("v_lshlrev_b32 %s, 4, %s" % (v(vXLD), v(vLANE)))
    A("v_add_u32 %s, s%d, %s" % (v(vXLD), sT0, v(vXLD)))
    A("s_lshl_b32 s%d, s%d, 7" % (sT1, sG))
    A("s_add_u32 s%d, s%d, s%d" % (sT0, sT0, sT1))
    A("v_and_b32 %s, 7, %s" % (v(vXST), v(vLANE)))
    A("v_lshlrev_b32 %s, 4, %s" % (v(vXST), v(vXST)))
    A("v_add_u32 %s, s%d, %s" % (v(vXST), sT0, v(vXST)))
    A("s_lshl_b32 s%d, s%d, 5" % (sT1, sG))
    A("s_add_u32 s%d, s%d, s%d" % (sT1, sT1, sS))
    A("s_lshl_b32 s%d, s%d, 12" % (sT1, sT1))
    A("v_lshlrev_b32 %s, 4, %s" % (v(vPLD), v(vLANE)))
    A("v_add_u32 %s, s%d, %s" % (v(vPLD), sT1, v(vPLD)))
    A("s_lshl_b32 s%d, s%d, 2" % (sT1, sG))
    A("s_lshr_b32 s%d, s%d, 3" % (sT2, sS))
    A("s_add_u32 s%d, s%d, s%d" % (sT1, sT1, sT2))
    A("s_lshl_b32 s%d, s%d, 9" % (sT1, sT1))
    A("s_add_u32 s%d, s%d, 0x%x" % (sT1, sT1, ML_OFF))
    A("v_lshrrev_b32 %s, 3, %s" % (v(vT3), v(vLANE)))
    A("v_lshlrev_b32 %s, 4, %s" % (v(vMLLD), v(vT3)))
    A("v_add_u32 %s, s%d, %s" % (v(vMLLD), sT1, v(vMLLD)))
    tags_setup()
    NPT = 0
    if PRETOUCH:
        PT = vWO
        A("v_add_u32 %s, 0x%x, %s" % (v(vT0), PO_OFF, v(vPLD)))
        A("v_add_u32 %s, 0x%x, %s" % (v(vT3), RS_OFF, v(vPLD)))
        for i in range(4):
            A("global_load_dword %s, %s, %s offset:%d" % (v(PT + i), v(vT0), sr(sF), 1024 * i))
            A("global_load_dword %s, %s, %s offset:%d" % (v(PT + 4 + i), v(vT3), sr(sF), 1024 * i))
        A("global_load_dword %s, %s, %s" % (v(PT + 8), v(vQLD), sr(sF)))
        A("global_load_dword %s, %s, %s" % (v(PT + 9), v(vAGLD), sr(sF)))
        for i in range(4):
            A("global_load_dword %s, %s, %s offset:%d" % (v(PT + 10 + i), v(vMLLD), sr(sF), 128 * i))
        NPT = 14
    for i in range(16):
        A("s_waitcnt vmcnt(%d)" % (17 + NPT - i))
        if i == 15 and B0:
            A("s_barrier")
        A("ds_write_b128 %s, %s offset:%d" % (v(vXNW), vr(vK + 4 * i, 4), L_WQ + i * 1024))
    stamp("wq_staged", loop=False)
    prefetch_WQ()
    A.lab("L_mloop")
    phase(0)
    layernorm([vX, vX + 1, vX + 2, vX + 3], L_XN)
    gemv(vS0, 16)
    T = vS0 + 4
    for e in range(4):
        A("v_mov_b32_dpp %s, %s quad_perm:[%d,%d,%d,%d]%s" % (v(T + 4 + e), v(vS0), e, e, e, e, DPPM))
    A("v_mov_b32 %s, s%d" % (v(T + 2), sTA))
    A("v_mov_b32 %s, s%d" % (v(T + 3), sTBX))
    A("v_cvt_pk_bf16_f32 %s, %s, %s" % (v(T), v(T + 4), v(T + 5)))
    A("v_cvt_pk_bf16_f32 %s, %s, %s" % (v(T + 1), v(T + 6), v(T + 7)))
    A("s_mov_b64 exec, 0x1111")
    publish(T, vQST)
    A("s_mov_b64 exec, -1")
    stamp("q_pub")
    Qg = vA
    poll([(Qg, vQLD, 0), (Qg + 4, vQLD, 16)], xcc=True)
    lf = first_begin()
    A("v_lshlrev_b32 %s, 16, %s" % (v(vXR0), v(vXR1)))
    A("v_and_b32 %s, 0xffff0000, %s" % (v(vXR1), v(vXR1)))
    A("v_lshlrev_b32 %s, 16, %s" % (v(vB20), v(vB21)))
    A("v_and_b32 %s, 0xffff0000, %s" % (v(vB21), v(vB21)))
    A("v_xor_b32 %s, s%d, %s" % (v(vT4), sTBX, v(Qg + 3)))
    A("v_xor_b32 %s, s%d, %s" % (v(vT3), sTBX, v(Qg + 7)))
    A("v_or_b32 %s, %s, %s" % (v(vT4), v(vT4), v(vT3)))
    A("v_cmp_ne_u32 vcc, 0, %s" % v(vT4))
    A("s_cmp_eq_u64 vcc, 0")
    A("s_cselect_b32 s%d, 1, 0" % sMODE)
    A("v_mov_b32 %s, s%d" % (v(vT3), sMODE))
    A("v_mov_b32 %s, %d" % (v(vT4), L_MODE))
    A("ds_write_b32 %s, %s" % (v(vT4), v(vT3)))
    A.lab(lf)
    A("v_mov_b32 %s, %s" % (v(Qg + 2), v(Qg + 4)))
    A("v_mov_b32 %s, %s" % (v(Qg + 3), v(Qg + 5)))
    A("ds_write_b128 %s, %s offset:%d" % (v(vXNW), vr(Qg, 4), L_Q))
    A("v_add_u32 %s, 0x%x, %s" % (v(vT0), PO_OFF, v(vPLD)))
    A("s_waitcnt lgkmcnt(0)")
    A("s_barrier")
    stamp("q_got")
    A("s_barrier")
    phase(1)
    O = vB
    ML = O + 16
    poll([(ML + 4 * i, vMLLD, 128 * i) for i in range(4)] + [(O + 4 * i, vT0, 1024 * i) for i in range(4)])
    stamp("p_got")
    A("v_max_f32 %s, %s, %s" % (v(vT0), v(ML), v(ML + 4)))
    A("v_max3_f32 %s, %s, %s, %s" % (v(vT0), v(ML + 8), v(ML + 12), v(vT0)))
    dpp_reduce([vT0], ["row_ror:8"], "max")
    xrow([vT0], [vT1], "max")
    for i in range(4):
        A("v_sub_f32 %s, %s, %s" % (v(ML + 4 * i), v(ML + 4 * i), v(vT0)))
    for i in range(4):
        A("v_mul_f32 %s, s%d, %s" % (v(ML + 4 * i), sLOG2E, v(ML + 4 * i)))
    for i in range(4):
        A("v_exp_f32 %s, %s" % (v(ML + 4 * i), v(ML + 4 * i)))
    T = vS0
    A("v_lshlrev_b32 %s, 3, %s" % (v(vT2), v(vLANE)))
    A("v_mul_f32 %s, %s, %s" % (v(T), v(ML), v(O)))
    A("v_mul_f32 %s, %s, %s" % (v(T + 1), v(ML), v(O + 1)))
    A("v_mul_f32 %s, %s, %s" % (v(T + 2), v(ML), v(ML + 1)))
    for i in range(1, 4):
        A("v_fmac_f32 %s, %s, %s" % (v(T), v(ML + 4 * i), v(O + 4 * i)))
        A("v_fmac_f32 %s, %s, %s" % (v(T + 1), v(ML + 4 * i), v(O + 4 * i + 1)))
        A("v_fmac_f32 %s, %s, %s" % (v(T + 2), v(ML + 4 * i), v(ML + 4 * i + 1)))
    dpp_reduce([T, T + 1, T + 2], ["row_ror:8"], "add")
    xrow([T, T + 1, T + 2], [T + 4, T + 5, T + 6], "add")
    A("v_rcp_f32 %s, %s" % (v(T + 2), v(T + 2)))
    nop(1)
    A("v_mul_f32 %s, %s, %s" % (v(T), v(T), v(T + 2)))
    A("v_mul_f32 %s, %s, %s" % (v(T + 1), v(T + 1), v(T + 2)))
    A("v_cvt_pk_bf16_f32 %s, %s, %s" % (v(T + 2), v(T), v(T + 1)))
    A("v_lshlrev_b32 %s, 16, %s" % (v(T), v(T + 2)))
    A("v_and_b32 %s, 0xffff0000, %s" % (v(T + 1), v(T + 2)))
    A("s_mov_b64 exec, 0xff")
    A("ds_write_b64 %s, %s offset:%d" % (v(vT2), vr(T, 2), L_O))
    A("s_mov_b64 exec, -1")
    A("s_waitcnt lgkmcnt(0)")
    A("s_barrier")
    reduce_hops(0, mlp=False)
    stamp("ag1_pub")
    X = poll_AG(0, vA + 8)
    stamp("ag1_got")
    layernorm(X, L_XN + 1024)
    A("s_waitcnt lgkmcnt(0)")
    A("s_barrier")
    reduce_hops(1, mlp=True)
    prefetch_WQ()
    X = poll_AG(1, vA + 8)
    for i in range(4):
        A("v_mov_b32 %s, %s" % (v(vX + i), v(X[i])))
    stamp("ag2_got")
    next_layer()
    A("s_branch L_mloop")
    A.lab("L_final")
    if os.environ.get("THR"):
        A("s_memrealtime s[82:83]")
        A("s_waitcnt lgkmcnt(0)")
        A("s_sub_u32 s82, s82, s100")
        A("s_cmp_gt_u32 s82, %s" % os.environ["THR"])
        A("s_cbranch_scc0 L_nodelay")
        for i in range(30):
            A("s_sleep 64")
        A.lab("L_nodelay")
    T = vS0
    stamp("ag2_got")
    l = A.new("Lnoout")
    A("s_cmp_lg_u32 s%d, 0" % sG)
    A("s_cbranch_scc1 %s" % l)
    A("s_lshl_b32 s%d, s%d, 5" % (sT0, sS))
    A("v_lshlrev_b32 %s, 2, %s" % (v(vT0), v(vLANE)))
    A("v_add_u32 %s, s%d, %s" % (v(vT0), sT0, v(vT0)))
    A("s_mov_b64 exec, 0xff")
    A("global_store_dword %s, %s, %s" % (v(vT0), v(T), sr(sOUT)))
    A("s_mov_b64 exec, -1")
    A("s_cmp_lg_u32 s%d, 0" % sS)
    A("s_cbranch_scc1 %s" % l)
    A("s_add_u32 s%d, s%d, 1" % (sT0, sE))
    A("v_mov_b32 %s, s%d" % (v(vT1), sT0))
    A("v_mov_b32 %s, 0" % v(vT0))
    A("s_mov_b64 exec, 1")
    A("global_store_dword %s, %s, %s" % (v(vT0), v(vT1), sr(sWS)))
    A("s_mov_b64 exec, -1")
    A.lab(l)
    dump_stamps()
    A.lab("L_end")
    A("s_endpgm")

build()
out = HEADER
out += "; Override launch geometry by editing the next line (default: block=256,\n"
out += "; @launch grid=(256,1,1) block=(320,1,1) lds=%d\n" % LDS_SIZE
out += '.amdgcn_target "amdgcn-amd-amdhsa--gfx950"\n.text\n.globl %s_kernel\n.p2align 8\n.type %s_kernel,@function\n%s_kernel:\n' % (NAME, NAME, NAME)
out += "\n".join(A.L) + "\n"
out += """.section .rodata,"a"
.p2align 6
.amdhsa_kernel %s_kernel
  .amdhsa_next_free_vgpr %d
  .amdhsa_next_free_sgpr 102
  .amdhsa_accum_offset %d
  .amdhsa_group_segment_fixed_size 0
  .amdhsa_kernarg_size 104
  .amdhsa_user_sgpr_count 2
  .amdhsa_user_sgpr_kernarg_segment_ptr 1
  .amdhsa_system_sgpr_workgroup_id_x 1
.end_amdhsa_kernel
""" % (NAME, NVGPR, NVGPR)
dst = sys.argv[1] if len(sys.argv) > 1 else "cdna_kernels/%s.s" % NAME
open(dst, "w").write(out)
print("wrote", dst, len(A.L), "lines")
if STAMPS:
    names = PRO + ["-"] * (4 - len(PRO))
    for n in LOO: names += [n + "_0", n + "_1"]
    open(dst + ".stamps", "w").write(",".join(names))
```

```python
import sys, struct, os

NAME = "interleave_layers__sliding_block_cached__dense_activation_gelu__decode"
HEADER = open("cdna_kernels/%s.s.ref" % NAME).read().split("; Override launch geometry")[0]
def f2u(x): return struct.unpack("<I", struct.pack("<f", x))[0]

class Asm:
    def __init__(s): s.L = []; s.n = 0
    def __call__(s, t): s.L.append("    " + t)
    def lab(s, l): s.L.append(l + ":")
    def new(s, p="L"): s.n += 1; return "%s_%d" % (p, s.n)
    def c(s, t): s.L.append("    ; " + t)
A = Asm()
def v(i): return "v%d" % i
def vr(i, n): return "v[%d:%d]" % (i, i + n - 1)
def sr(i, n=2): return "s[%d:%d]" % (i, i + n - 1)

NT = os.environ.get("NTPOL", " nt")
STAMPS = int(os.environ.get("STAMPS", "0"))
B0 = int(os.environ.get("B0", "5"))
PRETOUCH = int(os.environ.get("PRETOUCH", "1"))
DEFER = int(os.environ.get("DEFER", "2"))
TH = int(os.environ.get("TH", "0"))
HELLO = int(os.environ.get("HELLO", "0"))
W1C = int(os.environ.get("W1C", "0"))
TLBW = int(os.environ.get("TLBW", "1"))
HB_OFF = 0x00c000
SEL = os.environ.get("STSEL", "").split(",")
STW = int(os.environ.get("STW", "0"))

sG, sS, sW = 3, 4, 5
sTA, sTB, sE = 6, 7, 8
sT0, sT1, sT2 = 9, 10, 11
sKB, sVB = 12, 14
sX, sK, sV, sWQ, sWO, sW1, sB1 = 16, 18, 20, 22, 24, 28, 30
sW2, sB2, sOUT, sDBG, sWS = 32, 34, 36, 38, 40
sF = 42
sMODE, sXCC, sTBX, sIT = 44, 45, 46, 48
sTA0 = 47
sXBO = 49
sM = 50
sLOG2E, sSCALE, sINV512, sPLO, sPHI, sC1, sC2, sEPS = 54, 55, 56, 57, 58, 59, 60, 61
sL = 63
sO = 64

F_OFF = 0x100000
QB_OFF = 0x000000
ML_OFF = 0x004000
AG_OFF = 0x008000
XB_OFF = 0x010000
PO_OFF = 0x100000
RS_OFF = 0x200000
LAYER_STRIDE = 0x400000

L_WQ = 0
L_W1 = 16384
L_XN = 24576
L_Q = L_XN + 2048
L_O = L_Q + 1024
L_MODE = L_O + 64
L_AT = L_MODE + 64
AT_STRIDE = 2080
LDS_SIZE = L_AT + 4 * AT_STRIDE

vLANE = 1
vQLD, vPOST, vPLD, vMLLD, vXLD, vAGLD, vTRA = 2, 3, 4, 5, 7, 8, 9
vXR0, vXR1 = 10, 11
vB1, vB20, vB21 = 12, 13, 14
vXNW, vXNR = 15, 16
vATW, vATR = 17, 18
vTR1 = 19
vT0, vT1, vT2, vT3, vT4, vT5 = 20, 21, 22, 23, 24, 25
vQST, vXST, vAGST = 26, 27, 6
vQRD = 2
vMLST = 4
vX = 28
vK = 32
vVT = 64
vWO = 96
vW2 = 128
vB = 144
vA = 208
vS0 = 240
NVGPR = 256
LIMIT = 400000

PRO = []; LOO = []
def stamp(name, loop=True):
    if not STAMPS: return
    if SEL != [""] and name not in SEL and name != "start": return
    A("s_memrealtime s[82:83]")
    A("s_waitcnt lgkmcnt(0)")
    if not loop:
        if name not in PRO: PRO.append(name)
        A("s_mov_b32 s%d, s82" % (84 + PRO.index(name)))
    else:
        if name not in LOO: LOO.append(name)
        i = 4 + 2 * LOO.index(name)
        assert i + 1 < 18
        A("s_cmp_eq_u32 s%d, 0" % sL)
        A("s_cselect_b32 s%d, s82, s%d" % (84 + i, 84 + i))
        A("s_cselect_b32 s%d, s%d, s82" % (84 + i + 1, 84 + i + 1))
def dump_stamps():
    if not STAMPS: return
    l = A.new("Lst")
    A("s_cmp_lg_u32 s%d, %d" % (sW, STW))
    A("s_cbranch_scc1 %s" % l)
    A("s_lshl_b32 s%d, s2, 7" % sT0)
    A("s_add_u32 s%d, s%d, 0x2000000" % (sT0, sT0))
    A("v_mov_b32 %s, s%d" % (v(vT0), sT0))
    A("s_mov_b64 exec, 1")
    for i in range(18):
        A("v_mov_b32 %s, s%d" % (v(vT1), 84 + i))
        A("global_store_dword %s, %s, %s offset:%d" % (v(vT0), v(vT1), sr(sWS), 4 * i))
        A("s_nop 1")
    A("s_mov_b64 exec, -1")
    A.lab(l)

def nop(n): A("s_nop %d" % (n - 1))
DPPM = " row_mask:0xf bank_mask:0xf"

def dpp_reduce(regs, ctls, op):
    ins = "v_add_f32" if op == "add" else "v_max_f32"
    for ctl in ctls:
        nop(2 if len(regs) == 1 else 1)
        for r in regs:
            A("%s_dpp %s, %s, %s %s%s" % (ins, v(r), v(r), v(r), ctl, DPPM))

def xrow(regs, tmps, op):
    ins = "v_add_f32" if op == "add" else "v_max_f32"
    for sw in ["v_permlane16_swap_b32", "v_permlane32_swap_b32"]:
        for r, t in zip(regs, tmps):
            A("v_mov_b32 %s, %s" % (v(t), v(r)))
        nop(2 if len(regs) == 1 else 1)
        for r, t in zip(regs, tmps):
            A("%s %s, %s" % (sw, v(r), v(t)))
        nop(2 if len(regs) == 1 else 1)
        for r, t in zip(regs, tmps):
            A("%s %s, %s, %s" % (ins, v(r), v(r), v(t)))

def poll(loads, xcc=False):
    acc = vT5
    lp = A.new("Lpoll")
    A("s_mov_b32 s%d, 0" % sIT)
    A.lab(lp)
    for (d, a, off) in loads:
        A("global_load_dwordx4 %s, %s, %s offset:%d sc1" % (vr(d, 4), v(a), sr(sF), off))
    A("s_add_u32 s%d, s%d, 1" % (sIT, sIT))
    A("s_cmp_gt_u32 s%d, %d" % (sIT, LIMIT))
    A("s_cbranch_scc1 L_end")
    n = len(loads)
    for i, (d, a, off) in enumerate(loads):
        A("s_waitcnt vmcnt(%d)" % (n - 1 - i))
        A("v_xor_b32 %s, s%d, %s" % (v(vT3), sTA, v(d + 2)))
        A("v_xor_b32 %s, s%d, %s" % (v(vT4), sTB, v(d + 3)))
        if xcc:
            A("v_lshrrev_b32 %s, 3, %s" % (v(vT4), v(vT4)))
        if i == 0:
            A("v_or_b32 %s, %s, %s" % (v(acc), v(vT3), v(vT4)))
        else:
            A("v_or3_b32 %s, %s, %s, %s" % (v(acc), v(vT3), v(vT4), v(acc)))
    A("v_cmp_ne_u32 vcc, 0, %s" % v(acc))
    A("s_cbranch_vccnz %s" % lp)

def publish(dreg, areg, off=0, fast=True):
    o = " offset:%d" % off if off else ""
    if fast:
        l1 = A.new("Lpf"); l2 = A.new("Lpe")
        A("s_cmp_eq_u32 s%d, 1" % sMODE)
        A("s_cbranch_scc1 %s" % l1)
        A("global_store_dwordx4 %s, %s, %s%s sc1" % (v(areg), vr(dreg, 4), sr(sF), o))
        A("s_branch %s" % l2)
        A.lab(l1)
        A("global_store_dwordx4 %s, %s, %s%s" % (v(areg), vr(dreg, 4), sr(sF), o))
        A.lab(l2)
    else:
        A("global_store_dwordx4 %s, %s, %s%s sc1" % (v(areg), vr(dreg, 4), sr(sF), o))

def set_tags(d):
    A("v_mov_b32 %s, s%d" % (v(d + 2), sTA))
    A("v_mov_b32 %s, s%d" % (v(d + 3), sTB))

def layernorm(X, ldsoff):
    f = [vS0 + i for i in range(8)]
    d = [vS0 + 8 + i for i in range(8)]
    for i in range(4):
        A("v_lshlrev_b32 %s, 16, %s" % (v(f[2 * i]), v(X[i])))
        A("v_and_b32 %s, 0xffff0000, %s" % (v(f[2 * i + 1]), v(X[i])))
    A("v_readfirstlane_b32 s%d, %s" % (sT2, v(f[0])))
    nop(2)
    for i in range(8):
        A("v_subrev_f32 %s, s%d, %s" % (v(d[i]), sT2, v(f[i])))
    A("v_add_f32 %s, %s, %s" % (v(vT0), v(d[0]), v(d[1])))
    A("v_mul_f32 %s, %s, %s" % (v(vT1), v(d[0]), v(d[0])))
    A("v_add_f32 %s, %s, %s" % (v(vT2), v(d[2]), v(d[3])))
    A("v_mul_f32 %s, %s, %s" % (v(vT3), v(d[1]), v(d[1])))
    for i in (2, 4, 6):
        A("v_fmac_f32 %s, %s, %s" % (v(vT1), v(d[i]), v(d[i])))
        A("v_fmac_f32 %s, %s, %s" % (v(vT3), v(d[i + 1]), v(d[i + 1])))
    A("v_add_f32 %s, %s, %s" % (v(vT0), v(vT0), v(d[4])))
    A("v_add_f32 %s, %s, %s" % (v(vT2), v(vT2), v(d[5])))
    A("v_add_f32 %s, %s, %s" % (v(vT0), v(vT0), v(d[6])))
    A("v_add_f32 %s, %s, %s" % (v(vT2), v(vT2), v(d[7])))
    A("v_add_f32 %s, %s, %s" % (v(vT1), v(vT1), v(vT3)))
    A("v_add_f32 %s, %s, %s" % (v(vT0), v(vT0), v(vT2)))
    dpp_reduce([vT1, vT0], ["quad_perm:[1,0,3,2]", "quad_perm:[2,3,0,1]", "row_half_mirror", "row_mirror"], "add")
    xrow([vT1, vT0], [vT3, vT2], "add")
    A("v_mul_f32 %s, s%d, %s" % (v(vT0), sINV512, v(vT0)))
    A("v_mul_f32 %s, s%d, %s" % (v(vT1), sINV512, v(vT1)))
    A("v_fma_f32 %s, -%s, %s, %s" % (v(vT1), v(vT0), v(vT0), v(vT1)))
    A("v_add_f32 %s, s%d, %s" % (v(vT0), sT2, v(vT0)))
    A("v_max_f32 %s, 0, %s" % (v(vT1), v(vT1)))
    A("v_cvt_pk_bf16_f32 %s, %s, %s" % (v(vT2), v(vT0), v(vT1)))
    A("v_lshlrev_b32 %s, 16, %s" % (v(vT0), v(vT2)))
    A("v_and_b32 %s, 0xffff0000, %s" % (v(vT1), v(vT2)))
    A("v_add_f32 %s, s%d, %s" % (v(vT1), sEPS, v(vT1)))
    for i in range(4):
        A("v_sub_f32 %s, %s, %s" % (v(f[i]), v(f[i]), v(vT0)))
    A("v_cvt_pk_bf16_f32 %s, %s, %s" % (v(vT1), v(vT1), v(vT1)))
    for i in range(4, 8):
        A("v_sub_f32 %s, %s, %s" % (v(f[i]), v(f[i]), v(vT0)))
    A("v_and_b32 %s, 0xffff0000, %s" % (v(vT1), v(vT1)))
    A("v_sqrt_f32 %s, %s" % (v(vT1), v(vT1)))
    for i in range(4):
        A("v_cvt_pk_bf16_f32 %s, %s, %s" % (v(d[i]), v(f[2 * i]), v(f[2 * i + 1])))
    A("v_cvt_pk_bf16_f32 %s, %s, %s" % (v(vT1), v(vT1), v(vT1)))
    A("v_and_b32 %s, 0xffff0000, %s" % (v(vT1), v(vT1)))
    A("v_rcp_f32 %s, %s" % (v(vT1), v(vT1)))
    for i in range(4):
        A("v_lshlrev_b32 %s, 16, %s" % (v(f[2 * i]), v(d[i])))
        A("v_and_b32 %s, 0xffff0000, %s" % (v(f[2 * i + 1]), v(d[i])))
    for i in range(8):
        A("v_mul_f32 %s, %s, %s" % (v(f[i]), v(f[i]), v(vT1)))
    for i in range(4):
        A("v_cvt_pk_bf16_f32 %s, %s, %s" % (v(d[4 + i]), v(f[2 * i]), v(f[2 * i + 1])))
    A("ds_write_b128 %s, %s offset:%d" % (v(vXNW), vr(d[4], 4), ldsoff))

def prefetch_WQ():
    for c in range(16):
        off = L_WQ + c * 1024
        A("ds_read_b64_tr_b16 %s, %s offset:%d" % (vr(vB + 4 * c, 2), v(vTRA), off))
        A("ds_read_b64_tr_b16 %s, %s offset:%d" % (vr(vB + 4 * c + 2, 2), v(vTRA), off + 128))

def prefetch_W1():
    for c in range(8):
        off = L_W1 + c * 512
        A("ds_read_b64_tr_b16 %s, %s offset:%d" % (vr(vB + 4 * c, 2), v(vTR1), off))
        A("ds_read_b64_tr_b16 %s, %s offset:%d" % (vr(vB + 4 * c + 2, 2), v(vTR1), off + 64))

def gemv(acc, nch):
    n0 = min(nch, 8)
    for c in range(n0):
        A("ds_read_b128 %s, %s offset:%d" % (vr(vA + 4 * c, 4), v(vXNR), c * 64))
    for c in range(nch):
        issued = n0 + min(c, nch - n0)
        A("s_waitcnt lgkmcnt(%d)" % (issued - c - 1))
        A("v_mfma_f32_16x16x32_bf16 %s, %s, %s, %s" % (vr(acc, 4), vr(vA + 4 * (c % 8), 4), vr(vB + 4 * c, 4), "0" if c == 0 else vr(acc, 4)))
        if c + 8 < nch:
            A("ds_read_b128 %s, %s offset:%d" % (vr(vA + 4 * c, 4), v(vXNR), (c + 8) * 64))
    nop(8); nop(2)

def first_begin():
    l = A.new("Lnf")
    A("s_cmp_lg_u32 s%d, 0" % sL)
    A("s_cbranch_scc1 %s" % l)
    return l
def notfirst_begin():
    l = A.new("Lnn")
    A("s_cmp_eq_u32 s%d, 0" % sL)
    A("s_cbranch_scc1 %s" % l)
    return l

def poll_AG(idx, X):
    a = vAGLD
    poll([(X, a, 0), (X + 4, a, 16)])
    return [X, X + 1, X + 4, X + 5]

def reduce_hops(idx, mlp):
    T = vS0
    A.c("---- RS consumer %d" % idx)
    phase(2 + idx)
    A("v_add_u32 %s, 0x%x, %s" % (v(vT0), RS_OFF, v(vPLD)))
    set_tags(T)
    poll([(vA + 4 * i, vT0, 1024 * i) for i in range(4)])
    stamp("rs_got%d" % idx)
    for d in range(2):
        A("v_add_f32 %s, %s, %s" % (v(T + d), v(vA + d), v(vA + 4 + d)))
        A("v_add_f32 %s, %s, %s" % (v(T + 4 + d), v(vA + 8 + d), v(vA + 12 + d)))
    for d in range(2):
        A("v_add_f32 %s, %s, %s" % (v(T + d), v(T + d), v(T + 4 + d)))
    dpp_reduce([T, T + 1], ["row_ror:8"], "add")
    xrow([T, T + 1], [T + 4, T + 5], "add")
    A("v_add_u32 %s, s%d, %s" % (v(vT0), sXBO, v(vXST)))
    A("s_mov_b64 exec, 0xff")
    publish(T, vT0, fast=False)
    A("s_mov_b64 exec, -1")
    A.c("---- X consumer %d" % idx)
    A("v_add_u32 %s, s%d, %s" % (v(vT0), sXBO, v(vXLD)))
    A("s_add_u32 s%d, s%d, 0x8000" % (sXBO, sXBO))
    poll([(vA, vT0, 0)])
    stamp("x_got%d" % idx)
    dpp_reduce([vA, vA + 1], ["row_ror:8"], "add")
    xrow([vA, vA + 1], [T + 4, T + 5], "add")
    A("v_cvt_pk_bf16_f32 %s, %s, %s" % (v(vT1), v(vA), v(vA + 1)))
    A("v_lshlrev_b32 %s, 16, %s" % (v(vA), v(vT1)))
    A("v_and_b32 %s, 0xffff0000, %s" % (v(vA + 1), v(vT1)))
    if mlp:
        A("v_add_f32 %s, %s, %s" % (v(vA), v(vA), v(vB20)))
        A("v_add_f32 %s, %s, %s" % (v(vA + 1), v(vA + 1), v(vB21)))
        A("v_cvt_pk_bf16_f32 %s, %s, %s" % (v(vT1), v(vA), v(vA + 1)))
        A("v_lshlrev_b32 %s, 16, %s" % (v(vA), v(vT1)))
        A("v_and_b32 %s, 0xffff0000, %s" % (v(vA + 1), v(vT1)))
    A("v_add_f32 %s, %s, %s" % (v(vA), v(vA), v(vXR0)))
    A("v_add_f32 %s, %s, %s" % (v(vA + 1), v(vA + 1), v(vXR1)))
    A("v_cvt_pk_bf16_f32 %s, %s, %s" % (v(T), v(vA), v(vA + 1)))
    A("v_lshlrev_b32 %s, 16, %s" % (v(vXR0), v(T)))
    A("v_and_b32 %s, 0xffff0000, %s" % (v(vXR1), v(T)))
    if mlp:
        A("s_cmp_eq_u32 s%d, 1" % sL)
        A("s_cbranch_scc1 L_final")
    A("v_mov_b32_dpp %s, %s quad_perm:[1,1,3,3]%s" % (v(T + 1), v(T), DPPM))
    A("s_mov_b64 exec, 0x55")
    publish(T, vAGST)
    A("s_mov_b64 exec, -1")

def tags_setup():
    A("s_add_u32 s%d, s%d, 0x%x" % (sF, sWS, F_OFF))
    A("s_addc_u32 s%d, s%d, 0" % (sF + 1, sWS + 1))
    A("s_mov_b32 s%d, 0" % sMODE)
    A("s_mov_b32 s%d, 0" % sL)
    A("s_mov_b32 s%d, 0" % sXBO)
    A("s_getreg_b32 s%d, hwreg(HW_REG_XCC_ID)" % sXCC)
    A("s_and_b32 s%d, s%d, 7" % (sXCC, sXCC))
    A("s_waitcnt lgkmcnt(0)")
    A("s_xor_b32 s%d, s%d, 0x9e3779b9" % (sTA0, sE))
    A("s_mov_b32 s%d, s%d" % (sTA, sTA0))
    A("s_mul_i32 s%d, s%d, 0x85ebca6b" % (sTB, sE))
    A("s_add_u32 s%d, s%d, 0xc2b2ae35" % (sTB, sTB))
    A("s_xor_b32 s%d, s%d, s%d" % (sTBX, sTB, sXCC))

def next_layer():
    A("s_add_u32 s%d, s%d, 4" % (sTA0, sTA0))
    A("s_add_u32 s%d, s%d, 1" % (sL, sL))
def phase(p):
    A("s_add_u32 s%d, s%d, %d" % (sTA, sTA0, p))

def build():
    A("s_cmp_ge_u32 s2, 256")
    A("s_cbranch_scc1 L_end")
    A("s_load_dwordx16 s[16:31], s[0:1], 0")
    A("s_load_dwordx8 s[32:39], s[0:1], 64")
    A("s_load_dwordx2 s[40:41], s[0:1], 96")
    A("s_and_b32 s%d, s2, 7" % sG)
    A("s_lshr_b32 s%d, s2, 3" % sS)
    A("v_and_b32 %s, 63, v0" % v(vLANE))
    A("v_lshrrev_b32 %s, 6, v0" % v(vT0))
    nop(1)
    A("v_readfirstlane_b32 s%d, %s" % (sW, v(vT0)))
    for (r, val) in [(sLOG2E, f2u(1.4426950408889634)), (sSCALE, f2u(0.08838834764831845)), (sINV512, f2u(1.0 / 512)),
                     (sPLO, 0x05040100), (sPHI, 0x07060302),
                     (sC1, f2u(-2 * 0.7978845608028654 * 1.4426950408889634)),
                     (sC2, f2u(-2 * 0.7978845608028654 * 0.044715 * 1.4426950408889634)), (sEPS, f2u(1e-5))]:
        A("s_mov_b32 s%d, 0x%08x" % (r, val))
    A("v_and_b32 %s, 15, %s" % (v(vT1), v(vLANE)))
    A("v_lshrrev_b32 %s, 4, %s" % (v(vT2), v(vLANE)))
    A("s_cmp_eq_u32 s%d, 4" % sW)
    A("s_cbranch_scc1 L_comm")

    A.c("=========== compute waves prologue")
    A("s_lshl_b32 s%d, s%d, 24" % (sT0, sG))
    A("s_lshl_b32 s%d, s%d, 15" % (sT1, sS))
    A("s_add_u32 s%d, s%d, s%d" % (sT0, sT0, sT1))
    A("s_lshl_b32 s%d, s%d, 13" % (sT1, sW))
    A("s_add_u32 s%d, s%d, s%d" % (sT0, sT0, sT1))
    A("s_add_u32 s%d, s%d, %d" % (sT0, sT0, 61440 * 256))
    A("v_lshlrev_b32 %s, 8, %s" % (v(vT3), v(vT1)))
    A("v_lshl_add_u32 %s, %s, 4, %s" % (v(vT3), v(vT2), v(vT3)))
    A("v_add_u32 %s, 0x1000, %s" % (v(vT4), v(vT3)))
    A("s_waitcnt lgkmcnt(0)")
    stamp("start", loop=False)
    A("s_load_dword s%d, %s, 0" % (sE, sr(sWS)))
    A("s_add_u32 s%d, s%d, s%d" % (sKB, sK, sT0))
    A("s_addc_u32 s%d, s%d, 0" % (sKB + 1, sK + 1))
    A("s_add_u32 s%d, s%d, s%d" % (sVB, sV, sT0))
    A("s_addc_u32 s%d, s%d, 0" % (sVB + 1, sV + 1))
    if TLBW:
        A("s_lshl_b32 s%d, s2, 14" % sT1)
        A("v_mov_b32 %s, s%d" % (v(vS0), sT1))
        A("s_lshl_b32 s%d, s2, 12" % sT1)
        A("v_mov_b32 %s, s%d" % (v(vS0 + 1), sT1))
        A("v_mov_b32 %s, 0" % v(vS0 + 2))
        A("s_mov_b64 exec, 1")
        A("global_load_dword %s, %s, %s" % (v(vS0 + 4), v(vS0 + 2), sr(sKB)))
        A("global_load_dword %s, %s, %s" % (v(vS0 + 5), v(vS0 + 2), sr(sVB)))
        A("global_load_dword %s, %s, %s" % (v(vS0 + 6), v(vS0), sr(sWO)))
        A("global_load_dword %s, %s, %s" % (v(vS0 + 7), v(vS0 + 1), sr(sW1)))
        A("global_load_dword %s, %s, %s" % (v(vS0 + 8), v(vS0 + 1), sr(sW2)))
        A("global_load_dword %s, %s, %s" % (v(vS0 + 9), v(vS0 + 2), sr(sB1)))
        A("s_mov_b64 exec, -1")
    def kloads():
        A("v_lshlrev_b32 %s, 8, %s" % (v(vT3), v(vT1)))
        A("v_lshl_add_u32 %s, %s, 4, %s" % (v(vT3), v(vT2), v(vT3)))
        A("v_add_u32 %s, 0x1000, %s" % (v(vT4), v(vT3)))
        for T in range(2):
            for c in range(4):
                if TH and T * 4 + c >= TH: A("s_waitcnt vmcnt(%d)" % (TH - 1))
                A("global_load_dwordx4 %s, %s, %s offset:%d%s" % (vr(vK + (T * 4 + c) * 4, 4), v(vT3 if T == 0 else vT4), sr(sKB), c * 64, NT))
    W1RAW = vB + 32
    def wo_loads():
        A("s_lshl_b32 s%d, s%d, 2" % (sT0, sG))
        A("s_lshr_b32 s%d, s%d, 3" % (sT1, sS))
        A("s_add_u32 s%d, s%d, s%d" % (sT0, sT0, sT1))
        A("s_lshl_b32 s%d, s%d, 7" % (sT0, sT0))
        A("s_and_b32 s%d, s%d, 7" % (sT1, sS))
        A("s_add_u32 s%d, s%d, s%d" % (sT0, sT0, sT1))
        A("s_lshl_b32 s%d, s%d, 10" % (sT0, sT0))
        A("v_lshlrev_b32 %s, 2, v0" % v(vT0))
        A("v_add_u32 %s, s%d, %s" % (v(vT0), sT0, v(vT0)))
        for k in range(16):
            if k:
                A("v_add_u32 %s, 0x2000, %s" % (v(vT0), v(vT0)))
            A("global_load_dword %s, %s, %s%s" % (v(vWO + 16 + k), v(vT0), sr(sWO), NT))
    def w12_loads():
        A("s_min_u32 s%d, s%d, 27" % (sT0, sS))
        A("s_mul_i32 s%d, s%d, 28" % (sT1, sG))
        A("s_add_u32 s%d, s%d, s%d" % (sT0, sT0, sT1))
        A("s_lshl_b32 s%d, s%d, 4" % (sT1, sT0))
        A("v_mul_u32_u24 %s, 0xe00, v0" % v(vT3))
        A("v_add_u32 %s, s%d, %s" % (v(vT3), sT1, v(vT3)))
        if not W1C:
            A("global_load_dwordx4 %s, %s, %s%s" % (vr(W1RAW, 4), v(vT3), sr(sW1), NT))
            A("v_add_u32 %s, 0x%x, %s" % (v(vT3), 256 * 3584, v(vT3)))
            A("global_load_dwordx4 %s, %s, %s%s" % (vr(W1RAW + 4, 4), v(vT3), sr(sW1), NT))
        A("v_and_b32 %s, 7, %s" % (v(vT3), v(vLANE)))
        A("v_lshlrev_b32 %s, 1, %s" % (v(vT3), v(vT3)))
        A("v_add_u32 %s, s%d, %s" % (v(vT3), sT1, v(vT3)))
        A("global_load_ushort %s, %s, %s" % (v(vB1), v(vT3), sr(sB1)))
        A("s_lshl_b32 s%d, s%d, 13" % (sT1, sT0))
        A("v_lshlrev_b32 %s, 2, v0" % v(vT3))
        A("v_add_u32 %s, s%d, %s" % (v(vT3), sT1, v(vT3)))
        A("v_add_u32 %s, 0x1000, %s" % (v(vT4), v(vT3)))
        for k in range(8):
            A("global_load_dword %s, %s, %s offset:%d%s" % (v(vW2 + 8 + k), v(vT3 if k < 4 else vT4), sr(sW2), (k % 4) * 1024, NT))
    if DEFER == 4:
        wo_loads(); w12_loads()
    if B0 < 2: kloads()
    A("v_and_b32 %s, 3, %s" % (v(vT3), v(vT1)))
    A("v_lshlrev_b32 %s, 8, %s" % (v(vQRD), v(vT3)))
    A("v_lshl_add_u32 %s, %s, 4, %s" % (v(vQRD), v(vT2), v(vQRD)))
    A("v_add_u32 %s, %d, %s" % (v(vQRD), L_Q, v(vQRD)))
    A("v_lshrrev_b32 %s, 2, %s" % (v(vT3), v(vT1)))
    A("v_lshl_add_u32 %s, %s, 3, %s" % (v(vT3), v(vT2), v(vT3)))
    A("v_lshlrev_b32 %s, 4, %s" % (v(vTR1), v(vT3)))
    A("v_and_b32 %s, 1, %s" % (v(vT4), v(vT1)))
    A("v_lshl_add_u32 %s, %s, 3, %s" % (v(vTR1), v(vT4), v(vTR1)))
    A("v_and_b32 %s, 2, %s" % (v(vT4), v(vT1)))
    A("v_lshl_add_u32 %s, %s, 11, %s" % (v(vTR1), v(vT4), v(vTR1)))
    A("v_and_b32 %s, 1, %s" % (v(vT4), v(vT1)))
    A("v_lshlrev_b32 %s, 4, %s" % (v(vXNR), v(vT2)))
    A("v_lshl_add_u32 %s, %s, 9, %s" % (v(vXNR), v(vT4), v(vXNR)))
    A("v_add_u32 %s, %d, %s" % (v(vXNR), L_XN + 1024, v(vXNR)))
    A("v_lshrrev_b32 %s, 3, v0" % v(vT3))
    A("s_lshl_b32 s%d, s%d, 5" % (sT1, sG))
    A("v_add_u32 %s, s%d, %s" % (v(vT3), sT1, v(vT3)))
    A("v_lshlrev_b32 %s, 5, %s" % (v(vT3), v(vT3)))
    A("v_add_u32 %s, s%d, %s" % (v(vT3), sS, v(vT3)))
    A("v_lshlrev_b32 %s, 7, %s" % (v(vT3), v(vT3)))
    A("v_and_b32 %s, 7, v0" % v(vT4))
    A("v_lshl_add_u32 %s, %s, 4, %s" % (v(vPOST), v(vT4), v(vT3)))
    A("s_lshl_b32 s%d, s%d, 2" % (sT0, sG))
    A("s_add_u32 s%d, s%d, s%d" % (sT0, sT0, sW))
    A("s_lshl_b32 s%d, s%d, 5" % (sT0, sT0))
    A("s_add_u32 s%d, s%d, s%d" % (sT0, sT0, sS))
    A("s_lshl_b32 s%d, s%d, 4" % (sT0, sT0))
    A("s_add_u32 s%d, s%d, 0x%x" % (sT0, sT0, ML_OFF))
    A("v_mov_b32 %s, s%d" % (v(vMLST), sT0))
    A("s_mul_i32 s%d, s%d, %d" % (sT1, sW, AT_STRIDE))
    A("s_add_u32 s%d, s%d, %d" % (sT1, sT1, L_AT))
    A("v_lshlrev_b32 %s, 9, %s" % (v(vATW), v(vT1)))
    A("v_lshl_add_u32 %s, %s, 4, %s" % (v(vATW), v(vT2), v(vATW)))
    A("v_add_u32 %s, s%d, %s" % (v(vATW), sT1, v(vATW)))
    A("s_lshl_b32 s%d, s%d, 9" % (sT1, sW))
    A("s_add_u32 s%d, s%d, %d" % (sT1, sT1, L_AT))
    A("v_lshlrev_b32 %s, 3, %s" % (v(vATR), v(vLANE)))
    A("v_add_u32 %s, s%d, %s" % (v(vATR), sT1, v(vATR)))
    A("s_mov_b32 s%d, 0x000f000f" % sM)
    A("s_mov_b32 s%d, 0x000f000f" % (sM + 1))
    tags_setup()
    if B0: A("s_barrier")
    if B0 >= 2: kloads()
    A("v_lshlrev_b32 %s, 10, %s" % (v(vT3), v(vT2)))
    A("v_lshl_add_u32 %s, %s, 4, %s" % (v(vT3), v(vT1), v(vT3)))
    A("v_add_u32 %s, 0x1000, %s" % (v(vT4), v(vT3)))
    VRAW = vB
    for j in range(8):
        if TH and 8 + j >= TH: A("s_waitcnt vmcnt(%d)" % (TH - 1))
        A("global_load_dwordx4 %s, %s, %s offset:%d%s" % (vr(VRAW + 4 * j, 4), v(vT3 if j < 4 else vT4), sr(sVB), (j % 4) * 256, NT))
    if DEFER == 0:
        wo_loads(); w12_loads()
    if DEFER == 5:
        wo_loads()
    if DEFER == 4:
        A("s_waitcnt vmcnt(16)")
        for k in range(16):
            A("v_lshlrev_b32 %s, 16, %s" % (v(vWO + k), v(vWO + 16 + k)))
            A("v_and_b32 %s, 0xffff0000, %s" % (v(vWO + 16 + k), v(vWO + 16 + k)))
        A("v_lshlrev_b32 %s, 4, v0" % v(vT0))
        if not W1C:
            A("ds_write_b128 %s, %s offset:%d" % (v(vT0), vr(W1RAW, 4), L_W1))
            A("ds_write_b128 %s, %s offset:%d" % (v(vT0), vr(W1RAW + 4, 4), L_W1 + 4096))
        for k in range(8):
            A("v_lshlrev_b32 %s, 16, %s" % (v(vW2 + k), v(vW2 + 8 + k)))
            A("v_and_b32 %s, 0xffff0000, %s" % (v(vW2 + 8 + k), v(vW2 + 8 + k)))
        A("v_lshlrev_b32 %s, 16, %s" % (v(vB1), v(vB1)))
    A("s_waitcnt vmcnt(%d)" % (27 if DEFER == 0 else (16 if DEFER == 5 else 0)))
    stamp("kv_landed", loop=False)
    for i in range(8):
        q = i // 2
        sel = sPLO if i % 2 == 0 else sPHI
        for p in range(4):
            A("v_perm_b32 %s, %s, %s, s%d" % (v(vVT + 4 * i + p), v(VRAW + 4 * (2 * p + 1) + q), v(VRAW + 4 * (2 * p) + q), sel))

    if DEFER == 1:
        wo_loads()
    if DEFER == 2:
        wo_loads(); w12_loads()
    A.lab("L_cloop")
    A.c("================= attention")
    A("s_barrier")
    Q = vB
    for c in range(4):
        A("ds_read_b128 %s, %s offset:%d" % (vr(Q + 4 * c, 4), v(vQRD), c * 64))
    lf = first_begin()
    A("v_mov_b32 %s, %d" % (v(vT4), L_MODE))
    A("ds_read_b32 %s, %s" % (v(vT3), v(vT4)))
    if DEFER == 3: wo_loads()
    A("s_waitcnt lgkmcnt(0)")
    A("v_readfirstlane_b32 s%d, %s" % (sMODE, v(vT3)))
    A.lab(lf)
    stamp("b1")
    S = vS0
    for c in range(4):
        A("s_waitcnt lgkmcnt(%d)" % (3 - c))
        for T in range(2):
            A("v_mfma_f32_16x16x32_bf16 %s, %s, %s, %s" % (vr(S + 4 * T, 4), vr(vK + (T * 4 + c) * 4, 4), vr(Q + 4 * c, 4), "0" if c == 0 else vr(S + 4 * T, 4)))
    nop(8); nop(2)
    P = vS0 + 8
    for rnd in range(2):
        for i in range(4):
            A("v_cvt_pk_bf16_f32 %s, %s, %s" % (v(P + i), v(S + 2 * i), v(S + 2 * i + 1)))
        for i in range(4):
            A("v_lshlrev_b32 %s, 16, %s" % (v(S + 2 * i), v(P + i)))
            A("v_and_b32 %s, 0xffff0000, %s" % (v(S + 2 * i + 1), v(P + i)))
        if rnd == 0:
            for i in range(8):
                A("v_mul_f32 %s, s%d, %s" % (v(S + i), sSCALE, v(S + i)))
    A("v_max3_f32 %s, %s, %s, %s" % (v(vT0), v(S), v(S + 1), v(S + 2)))
    A("v_max3_f32 %s, %s, %s, %s" % (v(vT1), v(S + 3), v(S + 4), v(S + 5)))
    A("v_max3_f32 %s, %s, %s, %s" % (v(vT0), v(S + 6), v(S + 7), v(vT0)))
    A("v_max_f32 %s, %s, %s" % (v(vT0), v(vT0), v(vT1)))
    xrow([vT0], [vT1], "max")
    A("v_mul_f32 %s, s%d, %s" % (v(vT2), sLOG2E, v(vT0)))
    for i in range(8):
        A("v_fma_f32 %s, %s, s%d, -%s" % (v(S + i), v(S + i), sLOG2E, v(vT2)))
    for i in range(8):
        A("v_exp_f32 %s, %s" % (v(S + i), v(S + i)))
    nop(1)
    for i in range(4):
        A("v_cvt_pk_bf16_f32 %s, %s, %s" % (v(P + i), v(S + 2 * i), v(S + 2 * i + 1)))
    A("v_add_f32 %s, %s, %s" % (v(vT1), v(S), v(S + 1)))
    A("v_add_f32 %s, %s, %s" % (v(vT2), v(S + 2), v(S + 3)))
    D = vA
    for i in range(8):
        A("v_mfma_f32_16x16x32_bf16 %s, %s, %s, 0" % (vr(D + 4 * i, 4), vr(vVT + 4 * i, 4), vr(P, 4)))
        if i == 0:
            A("v_add_f32 %s, %s, %s" % (v(vT3), v(S + 4), v(S + 5)))
            A("v_add_f32 %s, %s, %s" % (v(vT4), v(S + 6), v(S + 7)))
        if i == 1:
            A("v_add_f32 %s, %s, %s" % (v(vT1), v(vT1), v(vT2)))
            A("v_add_f32 %s, %s, %s" % (v(vT3), v(vT3), v(vT4)))
        if i == 2:
            A("v_add_f32 %s, %s, %s" % (v(vT1), v(vT1), v(vT3)))
        if i == 3:
            xrow([vT1], [vT2], "add")
    A("s_mul_i32 s%d, s%d, %d" % (sT1, sW, AT_STRIDE))
    A("s_add_u32 s%d, s%d, %d" % (sT1, sT1, L_AT + 2048))
    A("v_lshlrev_b32 %s, 3, %s" % (v(vT2), v(vLANE)))
    A("v_add_u32 %s, s%d, %s" % (v(vT2), sT1, v(vT2)))
    A("s_mov_b64 exec, 0xf")
    A("ds_write_b64 %s, %s" % (v(vT2), vr(vT0, 2)))
    A("s_mov_b64 exec, %s" % sr(sM))
    for i in range(8):
        if i == 6: nop(4)
        A("ds_write_b128 %s, %s offset:%d" % (v(vATW), vr(D + 4 * i, 4), i * 64))
    A("s_mov_b64 exec, -1")
    A("s_lshl_b32 s%d, s%d, 3" % (sT1, sW))
    A("s_add_u32 s%d, s%d, %d" % (sT1, sT1, L_AT + 2048))
    A("v_mov_b32 %s, s%d" % (v(vT2), sT1))
    G = vS0
    phase(1)
    set_tags(G)
    set_tags(G + 4)
    A("v_add_u32 %s, 0x%x, %s" % (v(vT0), PO_OFF, v(vPOST)))
    A("s_waitcnt lgkmcnt(0)")
    A("s_barrier")
    R = vA
    for w in range(4):
        A("ds_read_b64 %s, %s offset:%d" % (vr(R + 8 + 2 * w, 2), v(vT2), w * AT_STRIDE))
    for w in range(4):
        A("ds_read_b64 %s, %s offset:%d" % (vr(R + 2 * w, 2), v(vATR), w * AT_STRIDE))
    A("s_waitcnt lgkmcnt(4)")
    A("v_max_f32 %s, %s, %s" % (v(G + 4), v(R + 8), v(R + 10)))
    A("v_max3_f32 %s, %s, %s, %s" % (v(G + 4), v(R + 12), v(R + 14), v(G + 4)))
    for w in range(4):
        A("v_sub_f32 %s, %s, %s" % (v(R + 8 + 2 * w), v(R + 8 + 2 * w), v(G + 4)))
    for w in range(4):
        A("v_mul_f32 %s, s%d, %s" % (v(R + 8 + 2 * w), sLOG2E, v(R + 8 + 2 * w)))
    for w in range(4):
        A("v_exp_f32 %s, %s" % (v(R + 8 + 2 * w), v(R + 8 + 2 * w)))
    A("s_waitcnt lgkmcnt(0)")
    A("v_mul_f32 %s, %s, %s" % (v(G), v(R + 8), v(R)))
    A("v_mul_f32 %s, %s, %s" % (v(G + 1), v(R + 8), v(R + 1)))
    A("v_mul_f32 %s, %s, %s" % (v(G + 5), v(R + 8), v(R + 9)))
    for w in range(1, 4):
        A("v_fmac_f32 %s, %s, %s" % (v(G), v(R + 8 + 2 * w), v(R + 2 * w)))
        A("v_fmac_f32 %s, %s, %s" % (v(G + 1), v(R + 8 + 2 * w), v(R + 2 * w + 1)))
        A("v_fmac_f32 %s, %s, %s" % (v(G + 5), v(R + 8 + 2 * w), v(R + 9 + 2 * w)))
    publish(G, vT0)
    A("s_mov_b64 exec, 1")
    publish(G + 4, vMLST)
    A("s_mov_b64 exec, -1")
    stamp("p_pub")
    def stage_w12():
        A("v_lshlrev_b32 %s, 4, v0" % v(vT0))
        if not W1C:
            A("ds_write_b128 %s, %s offset:%d" % (v(vT0), vr(W1RAW, 4), L_W1))
            A("ds_write_b128 %s, %s offset:%d" % (v(vT0), vr(W1RAW + 4, 4), L_W1 + 4096))
        for k in range(8):
            A("v_lshlrev_b32 %s, 16, %s" % (v(vW2 + k), v(vW2 + 8 + k)))
            A("v_and_b32 %s, 0xffff0000, %s" % (v(vW2 + 8 + k), v(vW2 + 8 + k)))
        A("v_lshlrev_b32 %s, 16, %s" % (v(vB1), v(vB1)))
        A("s_waitcnt lgkmcnt(0)")
    lf = first_begin() if DEFER != 4 else None
    if DEFER != 4:
      A.c("unpack wo, stage w1, unpack w2")
    if DEFER != 4:
        A("s_waitcnt vmcnt(2)")
        for k in range(16):
            A("v_lshlrev_b32 %s, 16, %s" % (v(vWO + k), v(vWO + 16 + k)))
            A("v_and_b32 %s, 0xffff0000, %s" % (v(vWO + 16 + k), v(vWO + 16 + k)))
        if DEFER in (1, 3, 5):
            w12_loads()
        else:
            stage_w12()
        A.lab(lf)

    A.c("================= o-proj")
    G = vS0 + 8
    T = vS0
    phase(2)
    set_tags(G)
    A("v_mov_b32 %s, %d" % (v(vT1), L_O))
    A("v_add_u32 %s, 0x%x, %s" % (v(vT0), RS_OFF, v(vPOST)))
    A("s_barrier")
    O = vA
    for i in range(4):
        A("ds_read_b128 %s, %s offset:%d" % (vr(O + 4 * i, 4), v(vT1), 16 * i))
    stamp("b3")
    for i in range(4):
        A("s_waitcnt lgkmcnt(%d)" % (3 - i))
        for kk in range(4):
            k = 4 * i + kk
            a0, a1 = (G, G + 1) if k % 2 == 0 else (T + 4, T + 5)
            ins = "v_mul_f32" if k < 2 else "v_fmac_f32"
            A("%s %s, %s, %s" % (ins, v(a0), v(O + k), v(vWO + k)))
            A("%s %s, %s, %s" % (ins, v(a1), v(O + k), v(vWO + 16 + k)))
    A("v_add_f32 %s, %s, %s" % (v(G), v(G), v(T + 4)))
    A("v_add_f32 %s, %s, %s" % (v(G + 1), v(G + 1), v(T + 5)))
    publish(G, vT0)
    stamp("rs_pub0")

    A.c("================= MLP")
    if DEFER in (1, 3, 5):
        lf = first_begin()
        A("s_waitcnt vmcnt(0)")
        stage_w12()
        A.lab(lf)
        ln = notfirst_begin()
        prefetch_W1()
        A.lab(ln)
    else:
        prefetch_W1()
    A("v_add_u32 %s, 0x%x, %s" % (v(vT0), RS_OFF, v(vPOST)))
    A("s_barrier")
    if DEFER in (1, 3, 5):
        lf = first_begin()
        prefetch_W1()
        A.lab(lf)
    stamp("b4")
    gemv(vS0, 8)
    T = vS0
    A("v_add_f32_dpp %s, %s, %s row_ror:8%s" % (v(T), v(T + 1), v(T), DPPM))
    G = vS0 + 8
    phase(3)
    set_tags(G)
    A("v_cvt_pk_bf16_f32 %s, %s, %s" % (v(T), v(T), v(T)))
    A("v_and_b32 %s, 0xffff0000, %s" % (v(T), v(T)))
    A("v_add_f32 %s, %s, %s" % (v(T), v(T), v(vB1)))
    A("v_cvt_pk_bf16_f32 %s, %s, %s" % (v(T), v(T), v(T)))
    A("v_and_b32 %s, 0xffff0000, %s" % (v(T), v(T)))
    A("v_mul_f32 %s, %s, %s" % (v(T + 1), v(T), v(T)))
    A("v_mov_b32 %s, s%d" % (v(T + 2), sC1))
    A("v_fmac_f32 %s, s%d, %s" % (v(T + 2), sC2, v(T + 1)))
    A("v_mul_f32 %s, %s, %s" % (v(T + 2), v(T + 2), v(T)))
    A("v_exp_f32 %s, %s" % (v(T + 2), v(T + 2)))
    nop(1)
    A("v_add_f32 %s, 1.0, %s" % (v(T + 2), v(T + 2)))
    A("v_rcp_f32 %s, %s" % (v(T + 2), v(T + 2)))
    nop(1)
    A("v_mul_f32 %s, %s, %s" % (v(T), v(T), v(T + 2)))
    A("v_cvt_pk_bf16_f32 %s, %s, %s" % (v(T), v(T), v(T)))
    A("v_and_b32 %s, 0xffff0000, %s" % (v(T), v(T)))
    A("s_cmp_lt_u32 s%d, 28" % sS)
    A("s_cbranch_scc1 L_hok")
    A("v_mov_b32 %s, 0" % v(T))
    A.lab("L_hok")
    nop(1)
    for k in range(8):
        A("v_readlane_b32 s%d, %s, %d" % (sO + k, v(T), k))
    A("v_mul_f32 %s, s%d, %s" % (v(G), sO, v(vW2)))
    A("v_mul_f32 %s, s%d, %s" % (v(G + 1), sO, v(vW2 + 8)))
    A("v_mul_f32 %s, s%d, %s" % (v(T + 4), sO + 1, v(vW2 + 1)))
    A("v_mul_f32 %s, s%d, %s" % (v(T + 5), sO + 1, v(vW2 + 9)))
    for k in range(2, 8, 2):
        A("v_fmac_f32 %s, s%d, %s" % (v(G), sO + k, v(vW2 + k)))
        A("v_fmac_f32 %s, s%d, %s" % (v(G + 1), sO + k, v(vW2 + 8 + k)))
        A("v_fmac_f32 %s, s%d, %s" % (v(T + 4), sO + k + 1, v(vW2 + k + 1)))
        A("v_fmac_f32 %s, s%d, %s" % (v(T + 5), sO + k + 1, v(vW2 + 9 + k)))
    A("v_add_f32 %s, %s, %s" % (v(G), v(G), v(T + 4)))
    A("v_add_f32 %s, %s, %s" % (v(G + 1), v(G + 1), v(T + 5)))
    publish(G, vT0)
    stamp("rs_pub1")
    next_layer()
    A("s_cmp_lt_u32 s%d, 2" % sL)
    A("s_cbranch_scc1 L_cloop")
    dump_stamps()
    A("s_endpgm")

    A.lab("L_comm")
    A("s_setprio 3")
    A("v_lshrrev_b32 %s, 2, %s" % (v(vT3), v(vT1)))
    A("v_lshl_add_u32 %s, %s, 3, %s" % (v(vT3), v(vT2), v(vT3)))
    A("v_and_b32 %s, 3, %s" % (v(vT4), v(vT1)))
    A("v_lshlrev_b32 %s, 5, %s" % (v(vTRA), v(vT3)))
    A("v_lshl_add_u32 %s, %s, 3, %s" % (v(vTRA), v(vT4), v(vTRA)))
    A("v_lshlrev_b32 %s, 4, %s" % (v(vXNR), v(vT2)))
    A("v_add_u32 %s, %d, %s" % (v(vXNR), L_XN, v(vXNR)))
    A("v_lshrrev_b32 %s, 1, %s" % (v(vT3), v(vLANE)))
    A("v_lshlrev_b32 %s, 13, %s" % (v(vT3), v(vT3)))
    A("v_and_b32 %s, 1, %s" % (v(vT4), v(vLANE)))
    A("v_lshl_add_u32 %s, %s, 4, %s" % (v(vT3), v(vT4), v(vT3)))
    A("s_lshl_b32 s%d, s%d, 10" % (sT0, sG))
    A("s_lshl_b32 s%d, s%d, 5" % (sT1, sS))
    A("s_add_u32 s%d, s%d, s%d" % (sT0, sT0, sT1))
    A("v_add_u32 %s, s%d, %s" % (v(vT3), sT0, v(vT3)))
    A("v_lshlrev_b32 %s, 4, %s" % (v(vXNW), v(vLANE)))
    A("v_and_b32 %s, 7, %s" % (v(vT4), v(vLANE)))
    A("v_lshlrev_b32 %s, 2, %s" % (v(vT4), v(vT4)))
    A("v_add_u32 %s, s%d, %s" % (v(vT4), sT1, v(vT4)))
    A("s_waitcnt lgkmcnt(0)")
    stamp("start", loop=False)
    A("s_load_dword s%d, %s, 0" % (sE, sr(sWS)))
    A("global_load_dwordx4 %s, %s, %s" % (vr(vX, 4), v(vXNW), sr(sX)))
    for i in range(16):
        if i:
            A("v_add_u32 %s, 0x40000, %s" % (v(vT3), v(vT3)))
        A("global_load_dwordx4 %s, %s, %s%s" % (vr(vK + 4 * i, 4), v(vT3), sr(sWQ), NT))
    A("global_load_dword %s, %s, %s" % (v(vXR1), v(vT4), sr(sX)))
    A("global_load_dword %s, %s, %s" % (v(vB21), v(vT4), sr(sB2)))
    NW1 = 0
    if W1C:
        A("s_min_u32 s%d, s%d, 27" % (sT0, sS))
        A("s_mul_i32 s%d, s%d, 28" % (sT1, sG))
        A("s_add_u32 s%d, s%d, s%d" % (sT0, sT0, sT1))
        A("s_lshl_b32 s%d, s%d, 4" % (sT1, sT0))
        A("v_mul_u32_u24 %s, 0xe00, %s" % (v(vT3), v(vLANE)))
        A("v_add_u32 %s, s%d, %s" % (v(vT3), sT1, v(vT3)))
        for i in range(8):
            if i:
                A("v_add_u32 %s, 0x%x, %s" % (v(vT3), 64 * 3584, v(vT3)))
            A("global_load_dwordx4 %s, %s, %s%s" % (vr(vB + 32 + 4 * i, 4), v(vT3), sr(sW1), NT))
        NW1 = 8
    if B0 == 3: A("s_barrier")
    A("s_lshl_b32 s%d, s%d, 11" % (sT0, sG))
    A("v_lshlrev_b32 %s, 5, %s" % (v(vQLD), v(vLANE)))
    A("v_add_u32 %s, s%d, %s" % (v(vQLD), sT0, v(vQLD)))
    A("v_add_u32 %s, 0x%x, %s" % (v(vAGLD), AG_OFF, v(vQLD)))
    A("s_lshl_b32 s%d, s%d, 6" % (sT1, sS))
    A("s_add_u32 s%d, s%d, s%d" % (sT0, sT0, sT1))
    A("v_and_b32 %s, 12, %s" % (v(vQST), v(vLANE)))
    A("v_lshlrev_b32 %s, 2, %s" % (v(vQST), v(vQST)))
    A("v_add_u32 %s, s%d, %s" % (v(vQST), sT0, v(vQST)))
    A("s_add_u32 s%d, s%d, 0x%x" % (sT0, sT0, AG_OFF))
    A("v_and_b32 %s, 6, %s" % (v(vAGST), v(vLANE)))
    A("v_lshlrev_b32 %s, 3, %s" % (v(vAGST), v(vAGST)))
    A("v_add_u32 %s, s%d, %s" % (v(vAGST), sT0, v(vAGST)))
    A("s_lshl_b32 s%d, s%d, 10" % (sT0, sS))
    A("s_add_u32 s%d, s%d, 0x%x" % (sT0, sT0, XB_OFF))
    A("v_lshlrev_b32 %s, 4, %s" % (v(vXLD), v(vLANE)))
    A("v_add_u32 %s, s%d, %s" % (v(vXLD), sT0, v(vXLD)))
    A("s_lshl_b32 s%d, s%d, 7" % (sT1, sG))
    A("s_add_u32 s%d, s%d, s%d" % (sT0, sT0, sT1))
    A("v_and_b32 %s, 7, %s" % (v(vXST), v(vLANE)))
    A("v_lshlrev_b32 %s, 4, %s" % (v(vXST), v(vXST)))
    A("v_add_u32 %s, s%d, %s" % (v(vXST), sT0, v(vXST)))
    A("s_lshl_b32 s%d, s%d, 5" % (sT1, sG))
    A("s_add_u32 s%d, s%d, s%d" % (sT1, sT1, sS))
    A("s_lshl_b32 s%d, s%d, 12" % (sT1, sT1))
    A("v_lshlrev_b32 %s, 4, %s" % (v(vPLD), v(vLANE)))
    A("v_add_u32 %s, s%d, %s" % (v(vPLD), sT1, v(vPLD)))
    A("s_lshl_b32 s%d, s%d, 2" % (sT1, sG))
    A("s_lshr_b32 s%d, s%d, 3" % (sT2, sS))
    A("s_add_u32 s%d, s%d, s%d" % (sT1, sT1, sT2))
    A("s_lshl_b32 s%d, s%d, 9" % (sT1, sT1))
    A("s_add_u32 s%d, s%d, 0x%x" % (sT1, sT1, ML_OFF))
    A("v_lshrrev_b32 %s, 3, %s" % (v(vT3), v(vLANE)))
    A("v_lshlrev_b32 %s, 4, %s" % (v(vMLLD), v(vT3)))
    A("v_add_u32 %s, s%d, %s" % (v(vMLLD), sT1, v(vMLLD)))
    tags_setup()
    NPT = 0
    HG = vW2
    if HELLO:
        A("v_mov_b32 %s, s%d" % (v(HG), sXCC))
        A("v_mov_b32 %s, 0" % v(HG + 1))
        A("s_add_u32 s%d, s%d, 9" % (sT0, sTA0))
        A("v_mov_b32 %s, s%d" % (v(HG + 2), sT0))
        A("v_mov_b32 %s, s%d" % (v(HG + 3), sTB))
        A("s_lshl_b32 s%d, s%d, 11" % (sT0, sG))
        A("s_add_u32 s%d, s%d, 0x%x" % (sT0, sT0, HB_OFF))
        A("s_lshl_b32 s%d, s%d, 6" % (sT1, sS))
        A("s_add_u32 s%d, s%d, s%d" % (sT1, sT1, sT0))
        A("v_mov_b32 %s, s%d" % (v(HG + 8), sT1))
        A("v_and_b32 %s, 31, %s" % (v(HG + 9), v(vLANE)))
        A("v_lshlrev_b32 %s, 6, %s" % (v(HG + 9), v(HG + 9)))
        A("v_add_u32 %s, s%d, %s" % (v(HG + 9), sT0, v(HG + 9)))
        A("s_mov_b64 exec, 1")
        A("global_store_dwordx4 %s, %s, %s sc1" % (v(HG + 8), vr(HG, 4), sr(sF)))
        A("s_mov_b64 exec, -1")
        NPT = 1
    if PRETOUCH:
        PT = vWO
        A("v_add_u32 %s, 0x%x, %s" % (v(vT0), PO_OFF, v(vPLD)))
        A("v_add_u32 %s, 0x%x, %s" % (v(vT3), RS_OFF, v(vPLD)))
        for i in range(4):
            A("global_load_dword %s, %s, %s offset:%d" % (v(PT + i), v(vT0), sr(sF), 1024 * i))
            A("global_load_dword %s, %s, %s offset:%d" % (v(PT + 4 + i), v(vT3), sr(sF), 1024 * i))
        A("global_load_dword %s, %s, %s" % (v(PT + 8), v(vQLD), sr(sF)))
        A("global_load_dword %s, %s, %s" % (v(PT + 9), v(vAGLD), sr(sF)))
        for i in range(4):
            A("global_load_dword %s, %s, %s offset:%d" % (v(PT + 10 + i), v(vMLLD), sr(sF), 128 * i))
        NPT += 14
    for i in range(16):
        A("s_waitcnt vmcnt(%d)" % (17 + NPT + NW1 - i))
        if i == 7 and B0 == 4:
            A("s_barrier")
        if i == 15 and B0 in (1, 2):
            A("s_barrier")
        A("ds_write_b128 %s, %s offset:%d" % (v(vXNW), vr(vK + 4 * i, 4), L_WQ + i * 1024))
    stamp("wq_staged", loop=False)
    if W1C:
        A("s_waitcnt vmcnt(%d)" % NPT)
        for i in range(8):
            A("ds_write_b128 %s, %s offset:%d" % (v(vXNW), vr(vB + 32 + 4 * i, 4), L_W1 + i * 1024))
        A("s_nop 4")
    if HELLO:
        A("global_load_dwordx4 %s, %s, %s sc1" % (vr(HG + 4, 4), v(HG + 9), sr(sF)))
    prefetch_WQ()
    A.lab("L_mloop")
    phase(0)
    layernorm([vX, vX + 1, vX + 2, vX + 3], L_XN)
    gemv(vS0, 16)
    T = vS0 + 4
    for e in range(4):
        A("v_mov_b32_dpp %s, %s quad_perm:[%d,%d,%d,%d]%s" % (v(T + 4 + e), v(vS0), e, e, e, e, DPPM))
    A("v_mov_b32 %s, s%d" % (v(T + 2), sTA))
    A("v_mov_b32 %s, s%d" % (v(T + 3), sTBX))
    A("v_cvt_pk_bf16_f32 %s, %s, %s" % (v(T), v(T + 4), v(T + 5)))
    A("v_cvt_pk_bf16_f32 %s, %s, %s" % (v(T + 1), v(T + 6), v(T + 7)))
    if HELLO:
        lf = first_begin()
        A("s_add_u32 s%d, s%d, 9" % (sT0, sTA0))
        A("s_waitcnt vmcnt(0)")
        A("v_xor_b32 %s, s%d, %s" % (v(vT3), sT0, v(HG + 6)))
        A("v_xor_b32 %s, s%d, %s" % (v(vT4), sTB, v(HG + 7)))
        A("v_xor_b32 %s, s%d, %s" % (v(vT5), sXCC, v(HG + 4)))
        A("v_or3_b32 %s, %s, %s, %s" % (v(vT3), v(vT3), v(vT4), v(vT5)))
        A("v_cmp_ne_u32 vcc, 0, %s" % v(vT3))
        A("s_cmp_eq_u64 vcc, 0")
        A("s_cselect_b32 s%d, 1, 0" % sMODE)
        A.lab(lf)
    A("s_mov_b64 exec, 0x1111")
    publish(T, vQST)
    A("s_mov_b64 exec, -1")
    if B0 == 5:
        lf = first_begin()
        A("s_barrier")
        A.lab(lf)
    stamp("q_pub")
    Qg = vA
    poll([(Qg, vQLD, 0), (Qg + 4, vQLD, 16)], xcc=True)
    lf = first_begin()
    A("v_lshlrev_b32 %s, 16, %s" % (v(vXR0), v(vXR1)))
    A("v_and_b32 %s, 0xffff0000, %s" % (v(vXR1), v(vXR1)))
    A("v_lshlrev_b32 %s, 16, %s" % (v(vB20), v(vB21)))
    A("v_and_b32 %s, 0xffff0000, %s" % (v(vB21), v(vB21)))
    A("v_xor_b32 %s, s%d, %s" % (v(vT4), sTBX, v(Qg + 3)))
    A("v_xor_b32 %s, s%d, %s" % (v(vT3), sTBX, v(Qg + 7)))
    A("v_or_b32 %s, %s, %s" % (v(vT4), v(vT4), v(vT3)))
    A("v_cmp_ne_u32 vcc, 0, %s" % v(vT4))
    A("s_cmp_eq_u64 vcc, 0")
    A("s_cselect_b32 s%d, 1, 0" % sMODE)
    A("v_mov_b32 %s, s%d" % (v(vT3), sMODE))
    A("v_mov_b32 %s, %d" % (v(vT4), L_MODE))
    A("ds_write_b32 %s, %s" % (v(vT4), v(vT3)))
    A.lab(lf)
    A("v_mov_b32 %s, %s" % (v(Qg + 2), v(Qg + 4)))
    A("v_mov_b32 %s, %s" % (v(Qg + 3), v(Qg + 5)))
    A("ds_write_b128 %s, %s offset:%d" % (v(vXNW), vr(Qg, 4), L_Q))
    A("v_add_u32 %s, 0x%x, %s" % (v(vT0), PO_OFF, v(vPLD)))
    A("s_waitcnt lgkmcnt(0)")
    A("s_barrier")
    stamp("q_got")
    A("s_barrier")
    phase(1)
    O = vB
    ML = O + 16
    poll([(ML + 4 * i, vMLLD, 128 * i) for i in range(4)] + [(O + 4 * i, vT0, 1024 * i) for i in range(4)])
    stamp("p_got")
    A("v_max_f32 %s, %s, %s" % (v(vT0), v(ML), v(ML + 4)))
    A("v_max3_f32 %s, %s, %s, %s" % (v(vT0), v(ML + 8), v(ML + 12), v(vT0)))
    dpp_reduce([vT0], ["row_ror:8"], "max")
    xrow([vT0], [vT1], "max")
    for i in range(4):
        A("v_sub_f32 %s, %s, %s" % (v(ML + 4 * i), v(ML + 4 * i), v(vT0)))
    for i in range(4):
        A("v_mul_f32 %s, s%d, %s" % (v(ML + 4 * i), sLOG2E, v(ML + 4 * i)))
    for i in range(4):
        A("v_exp_f32 %s, %s" % (v(ML + 4 * i), v(ML + 4 * i)))
    T = vS0
    A("v_lshlrev_b32 %s, 3, %s" % (v(vT2), v(vLANE)))
    A("v_mul_f32 %s, %s, %s" % (v(T), v(ML), v(O)))
    A("v_mul_f32 %s, %s, %s" % (v(T + 1), v(ML), v(O + 1)))
    A("v_mul_f32 %s, %s, %s" % (v(T + 2), v(ML), v(ML + 1)))
    for i in range(1, 4):
        A("v_fmac_f32 %s, %s, %s" % (v(T), v(ML + 4 * i), v(O + 4 * i)))
        A("v_fmac_f32 %s, %s, %s" % (v(T + 1), v(ML + 4 * i), v(O + 4 * i + 1)))
        A("v_fmac_f32 %s, %s, %s" % (v(T + 2), v(ML + 4 * i), v(ML + 4 * i + 1)))
    dpp_reduce([T, T + 1, T + 2], ["row_ror:8"], "add")
    xrow([T, T + 1, T + 2], [T + 4, T + 5, T + 6], "add")
    A("v_rcp_f32 %s, %s" % (v(T + 2), v(T + 2)))
    nop(1)
    A("v_mul_f32 %s, %s, %s" % (v(T), v(T), v(T + 2)))
    A("v_mul_f32 %s, %s, %s" % (v(T + 1), v(T + 1), v(T + 2)))
    A("v_cvt_pk_bf16_f32 %s, %s, %s" % (v(T + 2), v(T), v(T + 1)))
    A("v_lshlrev_b32 %s, 16, %s" % (v(T), v(T + 2)))
    A("v_and_b32 %s, 0xffff0000, %s" % (v(T + 1), v(T + 2)))
    A("s_mov_b64 exec, 0xff")
    A("ds_write_b64 %s, %s offset:%d" % (v(vT2), vr(T, 2), L_O))
    A("s_mov_b64 exec, -1")
    A("s_waitcnt lgkmcnt(0)")
    A("s_barrier")
    reduce_hops(0, mlp=False)
    stamp("ag1_pub")
    X = poll_AG(0, vA + 8)
    stamp("ag1_got")
    layernorm(X, L_XN + 1024)
    A("s_waitcnt lgkmcnt(0)")
    A("s_barrier")
    reduce_hops(1, mlp=True)
    prefetch_WQ()
    X = poll_AG(1, vA + 8)
    for i in range(4):
        A("v_mov_b32 %s, %s" % (v(vX + i), v(X[i])))
    stamp("ag2_got")
    next_layer()
    A("s_branch L_mloop")
    A.lab("L_final")
    T = vS0
    stamp("ag2_got")
    l = A.new("Lnoout")
    A("s_cmp_lg_u32 s%d, 0" % sG)
    A("s_cbranch_scc1 %s" % l)
    A("s_lshl_b32 s%d, s%d, 5" % (sT0, sS))
    A("v_lshlrev_b32 %s, 2, %s" % (v(vT0), v(vLANE)))
    A("v_add_u32 %s, s%d, %s" % (v(vT0), sT0, v(vT0)))
    A("s_mov_b64 exec, 0xff")
    A("global_store_dword %s, %s, %s" % (v(vT0), v(T), sr(sOUT)))
    A("s_mov_b64 exec, -1")
    A("s_cmp_lg_u32 s%d, 0" % sS)
    A("s_cbranch_scc1 %s" % l)
    A("s_add_u32 s%d, s%d, 1" % (sT0, sE))
    A("v_mov_b32 %s, s%d" % (v(vT1), sT0))
    A("v_mov_b32 %s, 0" % v(vT0))
    A("s_mov_b64 exec, 1")
    A("global_store_dword %s, %s, %s" % (v(vT0), v(vT1), sr(sWS)))
    A("s_mov_b64 exec, -1")
    A.lab(l)
    dump_stamps()
    A.lab("L_end")
    A("s_endpgm")

build()
out = HEADER
out += "; Override launch geometry by editing the next line (default: block=256,\n"
out += "; @launch grid=(256,1,1) block=(320,1,1) lds=%d\n" % LDS_SIZE
out += '.amdgcn_target "amdgcn-amd-amdhsa--gfx950"\n.text\n.globl %s_kernel\n.p2align 8\n.type %s_kernel,@function\n%s_kernel:\n' % (NAME, NAME, NAME)
out += "\n".join(A.L) + "\n"
out += """.section .rodata,"a"
.p2align 6
.amdhsa_kernel %s_kernel
  .amdhsa_next_free_vgpr %d
  .amdhsa_next_free_sgpr 102
  .amdhsa_accum_offset %d
  .amdhsa_group_segment_fixed_size 0
  .amdhsa_kernarg_size 104
  .amdhsa_user_sgpr_count 2
  .amdhsa_user_sgpr_kernarg_segment_ptr 1
  .amdhsa_system_sgpr_workgroup_id_x 1
.end_amdhsa_kernel
""" % (NAME, NVGPR, NVGPR)
dst = sys.argv[1] if len(sys.argv) > 1 else "cdna_kernels/%s.s" % NAME
open(dst, "w").write(out)
print("wrote", dst, len(A.L), "lines")
if STAMPS:
    names = PRO + ["-"] * (4 - len(PRO))
    for n in LOO: names += [n + "_0", n + "_1"]
    open(dst + ".stamps", "w").write(",".join(names))
```

```python
import sys, struct, os

NAME = "interleave_layers__sliding_block_cached__dense_activation_gelu__decode"
HEADER = open("cdna_kernels/%s.s.ref" % NAME).read().split("; Override launch geometry")[0]
def f2u(x): return struct.unpack("<I", struct.pack("<f", x))[0]

class Asm:
    def __init__(s): s.L = []; s.n = 0
    def __call__(s, t): s.L.append("    " + t)
    def lab(s, l): s.L.append(l + ":")
    def new(s, p="L"): s.n += 1; return "%s_%d" % (p, s.n)
    def c(s, t): s.L.append("    ; " + t)
A = Asm()
def v(i): return "v%d" % i
def vr(i, n): return "v[%d:%d]" % (i, i + n - 1)
def sr(i, n=2): return "s[%d:%d]" % (i, i + n - 1)

NT = os.environ.get("NTPOL", " nt")
STAMPS = int(os.environ.get("STAMPS", "0"))
B0 = int(os.environ.get("B0", "5"))
PRETOUCH = int(os.environ.get("PRETOUCH", "1"))
DEFER = int(os.environ.get("DEFER", "2"))
TH = int(os.environ.get("TH", "0"))
HELLO = int(os.environ.get("HELLO", "0"))
W1C = int(os.environ.get("W1C", "0"))
TLBW = int(os.environ.get("TLBW", "1"))
XPIPE = int(os.environ.get("XPIPE", "0"))
PRE = int(os.environ.get("PRE", "0"))
VL = int(os.environ.get("VL", "0"))
HB_OFF = 0x00c000
SEL = os.environ.get("STSEL", "").split(",")
STW = int(os.environ.get("STW", "0"))

sG, sS, sW = 3, 4, 5
sTA, sTB, sE = 6, 7, 8
sT0, sT1, sT2 = 9, 10, 11
sKB, sVB = 12, 14
sX, sK, sV, sWQ, sWO, sW1, sB1 = 16, 18, 20, 22, 24, 28, 30
sW2, sB2, sOUT, sDBG, sWS = 32, 34, 36, 38, 40
sF = 42
sMODE, sXCC, sTBX, sIT = 44, 45, 46, 48
sTA0 = 47
sXBO = 49
sM = 50
sLOG2E, sSCALE, sINV512, sPLO, sPHI, sC1, sC2, sEPS = 54, 55, 56, 57, 58, 59, 60, 61
sL = 63
sO = 64

F_OFF = 0x100000
QB_OFF = 0x000000
ML_OFF = 0x004000
AG_OFF = 0x008000
XB_OFF = 0x010000
PO_OFF = 0x100000
RS_OFF = 0x200000
LAYER_STRIDE = 0x400000

L_WQ = 0
L_W1 = 16384
L_XN = 24576
XN_SZ = 1152
L_Q = L_XN + 2 * XN_SZ
L_O = L_Q + 1280
L_MODE = L_O + 64
L_AT = L_MODE + 64
AT_STRIDE = 2336
HSTR = 576
ML_IN = 2304
LDS_SIZE = L_AT + 4 * AT_STRIDE

vLANE = 1
vQLD, vPOST, vPLD, vMLLD, vXLD, vAGLD, vTRA = 2, 3, 4, 5, 7, 8, 9
vXR0, vXR1 = 10, 11
vB1, vB20, vB21 = 12, 13, 14
vXNW, vXNR = 15, 16
vATW, vATR = 17, 18
vTR1 = 19
vT0, vT1, vT2, vT3, vT4, vT5 = 20, 21, 22, 23, 24, 25
vQST, vXST, vAGST = 26, 27, 6
vQRD = 2
vMLST = 4
vXNW2 = 17
vQW = 18
vX = 28
vK = 32
vVT = 64
vWO = 96
vW2 = 128
vB = 144
vA = 208
vS0 = 240
NVGPR = 256
LIMIT = 400000

PRO = []; LOO = []
def stamp(name, loop=True):
    if not STAMPS: return
    if SEL != [""] and name not in SEL and name != "start": return
    A("s_memrealtime s[82:83]")
    A("s_waitcnt lgkmcnt(0)")
    if not loop:
        if name not in PRO: PRO.append(name)
        A("s_mov_b32 s%d, s82" % (84 + PRO.index(name)))
    else:
        if name not in LOO: LOO.append(name)
        i = 4 + 2 * LOO.index(name)
        assert i + 1 < 18
        A("s_cmp_eq_u32 s%d, 0" % sL)
        A("s_cselect_b32 s%d, s82, s%d" % (84 + i, 84 + i))
        A("s_cselect_b32 s%d, s%d, s82" % (84 + i + 1, 84 + i + 1))
def dump_stamps():
    if not STAMPS: return
    l = A.new("Lst")
    A("s_cmp_lg_u32 s%d, %d" % (sW, STW))
    A("s_cbranch_scc1 %s" % l)
    A("s_lshl_b32 s%d, s2, 7" % sT0)
    A("s_add_u32 s%d, s%d, 0x2000000" % (sT0, sT0))
    A("v_mov_b32 %s, s%d" % (v(vT0), sT0))
    A("s_mov_b64 exec, 1")
    for i in range(18):
        A("v_mov_b32 %s, s%d" % (v(vT1), 84 + i))
        A("global_store_dword %s, %s, %s offset:%d" % (v(vT0), v(vT1), sr(sWS), 4 * i))
        A("s_nop 1")
    A("s_mov_b64 exec, -1")
    A.lab(l)

def nop(n): A("s_nop %d" % (n - 1))
DPPM = " row_mask:0xf bank_mask:0xf"

def dpp_reduce(regs, ctls, op):
    ins = "v_add_f32" if op == "add" else "v_max_f32"
    for ctl in ctls:
        nop(2 if len(regs) == 1 else 1)
        for r in regs:
            A("%s_dpp %s, %s, %s %s%s" % (ins, v(r), v(r), v(r), ctl, DPPM))

def xrow(regs, tmps, op):
    ins = "v_add_f32" if op == "add" else "v_max_f32"
    for sw in ["v_permlane16_swap_b32", "v_permlane32_swap_b32"]:
        for r, t in zip(regs, tmps):
            A("v_mov_b32 %s, %s" % (v(t), v(r)))
        nop(2 if len(regs) == 1 else 1)
        for r, t in zip(regs, tmps):
            A("%s %s, %s" % (sw, v(r), v(t)))
        nop(2 if len(regs) == 1 else 1)
        for r, t in zip(regs, tmps):
            A("%s %s, %s, %s" % (ins, v(r), v(r), v(t)))

def poll(loads, xcc=False):
    acc = vT5
    lp = A.new("Lpoll")
    A("s_mov_b32 s%d, 0" % sIT)
    A.lab(lp)
    for (d, a, off) in loads:
        A("global_load_dwordx4 %s, %s, %s offset:%d sc1" % (vr(d, 4), v(a), sr(sF), off))
    A("s_add_u32 s%d, s%d, 1" % (sIT, sIT))
    A("s_cmp_gt_u32 s%d, %d" % (sIT, LIMIT))
    A("s_cbranch_scc1 L_end")
    n = len(loads)
    for i, (d, a, off) in enumerate(loads):
        A("s_waitcnt vmcnt(%d)" % (n - 1 - i))
        A("v_xor_b32 %s, s%d, %s" % (v(vT3), sTA, v(d + 2)))
        A("v_xor_b32 %s, s%d, %s" % (v(vT4), sTB, v(d + 3)))
        if xcc:
            A("v_lshrrev_b32 %s, 3, %s" % (v(vT4), v(vT4)))
        if i == 0:
            A("v_or_b32 %s, %s, %s" % (v(acc), v(vT3), v(vT4)))
        else:
            A("v_or3_b32 %s, %s, %s, %s" % (v(acc), v(vT3), v(vT4), v(acc)))
    A("v_cmp_ne_u32 vcc, 0, %s" % v(acc))
    A("s_cbranch_vccnz %s" % lp)

def poll_pipe(dst, sets, addr):
    n = len(sets)
    lp = A.new("Lpp"); done = A.new("Lppd")
    A("s_mov_b32 s%d, 0" % sIT)
    for d in sets:
        A("global_load_dwordx4 %s, %s, %s sc1" % (vr(d, 4), v(addr), sr(sF)))
    A.lab(lp)
    for i, d in enumerate(sets):
        ok = A.new("Lppo")
        A("s_waitcnt vmcnt(%d)" % (n - 1))
        A("v_xor_b32 %s, s%d, %s" % (v(vT3), sTA, v(d + 2)))
        A("v_xor_b32 %s, s%d, %s" % (v(vT4), sTB, v(d + 3)))
        A("v_or_b32 %s, %s, %s" % (v(vT3), v(vT3), v(vT4)))
        A("v_mov_b32 %s, %s" % (v(dst), v(d)))
        A("v_mov_b32 %s, %s" % (v(dst + 1), v(d + 1)))
        A("v_cmp_ne_u32 vcc, 0, %s" % v(vT3))
        A("s_cbranch_vccz %s" % done)
        A("global_load_dwordx4 %s, %s, %s sc1" % (vr(d, 4), v(addr), sr(sF)))
    A("s_add_u32 s%d, s%d, 1" % (sIT, sIT))
    A("s_cmp_gt_u32 s%d, %d" % (sIT, LIMIT))
    A("s_cbranch_scc1 L_end")
    A("s_branch %s" % lp)
    A.lab(done)

def publish(dreg, areg, off=0, fast=True):
    o = " offset:%d" % off if off else ""
    if fast:
        l1 = A.new("Lpf"); l2 = A.new("Lpe")
        A("s_cmp_eq_u32 s%d, 1" % sMODE)
        A("s_cbranch_scc1 %s" % l1)
        A("global_store_dwordx4 %s, %s, %s%s sc1" % (v(areg), vr(dreg, 4), sr(sF), o))
        A("s_branch %s" % l2)
        A.lab(l1)
        A("global_store_dwordx4 %s, %s, %s%s" % (v(areg), vr(dreg, 4), sr(sF), o))
        A.lab(l2)
    else:
        A("global_store_dwordx4 %s, %s, %s%s sc1" % (v(areg), vr(dreg, 4), sr(sF), o))

def set_tags(d):
    A("v_mov_b32 %s, s%d" % (v(d + 2), sTA))
    A("v_mov_b32 %s, s%d" % (v(d + 3), sTB))

def layernorm(X, ldsoff):
    f = [vS0 + i for i in range(8)]
    d = [vS0 + 8 + i for i in range(8)]
    for i in range(4):
        A("v_lshlrev_b32 %s, 16, %s" % (v(f[2 * i]), v(X[i])))
        A("v_and_b32 %s, 0xffff0000, %s" % (v(f[2 * i + 1]), v(X[i])))
    A("v_readfirstlane_b32 s%d, %s" % (sT2, v(f[0])))
    nop(2)
    for i in range(8):
        A("v_subrev_f32 %s, s%d, %s" % (v(d[i]), sT2, v(f[i])))
    A("v_add_f32 %s, %s, %s" % (v(vT0), v(d[0]), v(d[1])))
    A("v_mul_f32 %s, %s, %s" % (v(vT1), v(d[0]), v(d[0])))
    A("v_add_f32 %s, %s, %s" % (v(vT2), v(d[2]), v(d[3])))
    A("v_mul_f32 %s, %s, %s" % (v(vT3), v(d[1]), v(d[1])))
    for i in (2, 4, 6):
        A("v_fmac_f32 %s, %s, %s" % (v(vT1), v(d[i]), v(d[i])))
        A("v_fmac_f32 %s, %s, %s" % (v(vT3), v(d[i + 1]), v(d[i + 1])))
    A("v_add_f32 %s, %s, %s" % (v(vT0), v(vT0), v(d[4])))
    A("v_add_f32 %s, %s, %s" % (v(vT2), v(vT2), v(d[5])))
    A("v_add_f32 %s, %s, %s" % (v(vT0), v(vT0), v(d[6])))
    A("v_add_f32 %s, %s, %s" % (v(vT2), v(vT2), v(d[7])))
    A("v_add_f32 %s, %s, %s" % (v(vT1), v(vT1), v(vT3)))
    A("v_add_f32 %s, %s, %s" % (v(vT0), v(vT0), v(vT2)))
    dpp_reduce([vT1, vT0], ["quad_perm:[1,0,3,2]", "quad_perm:[2,3,0,1]", "row_half_mirror", "row_mirror"], "add")
    xrow([vT1, vT0], [vT3, vT2], "add")
    A("v_mul_f32 %s, s%d, %s" % (v(vT0), sINV512, v(vT0)))
    A("v_mul_f32 %s, s%d, %s" % (v(vT1), sINV512, v(vT1)))
    A("v_fma_f32 %s, -%s, %s, %s" % (v(vT1), v(vT0), v(vT0), v(vT1)))
    A("v_add_f32 %s, s%d, %s" % (v(vT0), sT2, v(vT0)))
    A("v_max_f32 %s, 0, %s" % (v(vT1), v(vT1)))
    A("v_cvt_pk_bf16_f32 %s, %s, %s" % (v(vT2), v(vT0), v(vT1)))
    A("v_lshlrev_b32 %s, 16, %s" % (v(vT0), v(vT2)))
    A("v_and_b32 %s, 0xffff0000, %s" % (v(vT1), v(vT2)))
    A("v_add_f32 %s, s%d, %s" % (v(vT1), sEPS, v(vT1)))
    for i in range(4):
        A("v_sub_f32 %s, %s, %s" % (v(f[i]), v(f[i]), v(vT0)))
    A("v_cvt_pk_bf16_f32 %s, %s, %s" % (v(vT1), v(vT1), v(vT1)))
    for i in range(4, 8):
        A("v_sub_f32 %s, %s, %s" % (v(f[i]), v(f[i]), v(vT0)))
    A("v_and_b32 %s, 0xffff0000, %s" % (v(vT1), v(vT1)))
    A("v_sqrt_f32 %s, %s" % (v(vT1), v(vT1)))
    for i in range(4):
        A("v_cvt_pk_bf16_f32 %s, %s, %s" % (v(d[i]), v(f[2 * i]), v(f[2 * i + 1])))
    A("v_cvt_pk_bf16_f32 %s, %s, %s" % (v(vT1), v(vT1), v(vT1)))
    A("v_and_b32 %s, 0xffff0000, %s" % (v(vT1), v(vT1)))
    A("v_rcp_f32 %s, %s" % (v(vT1), v(vT1)))
    for i in range(4):
        A("v_lshlrev_b32 %s, 16, %s" % (v(f[2 * i]), v(d[i])))
        A("v_and_b32 %s, 0xffff0000, %s" % (v(f[2 * i + 1]), v(d[i])))
    for i in range(8):
        A("v_mul_f32 %s, %s, %s" % (v(f[i]), v(f[i]), v(vT1)))
    for i in range(4):
        A("v_cvt_pk_bf16_f32 %s, %s, %s" % (v(d[4 + i]), v(f[2 * i]), v(f[2 * i + 1])))
    A("ds_write_b128 %s, %s offset:%d" % (v(vXNW2), vr(d[4], 4), ldsoff))

def prefetch_WQ():
    for c in range(16):
        off = L_WQ + c * 1024
        A("ds_read_b64_tr_b16 %s, %s offset:%d" % (vr(vB + 4 * c, 2), v(vTRA), off))
        A("ds_read_b64_tr_b16 %s, %s offset:%d" % (vr(vB + 4 * c + 2, 2), v(vTRA), off + 128))

def prefetch_W1():
    for c in range(8):
        off = L_W1 + c * 512
        A("ds_read_b64_tr_b16 %s, %s offset:%d" % (vr(vB + 4 * c, 2), v(vTR1), off))
        A("ds_read_b64_tr_b16 %s, %s offset:%d" % (vr(vB + 4 * c + 2, 2), v(vTR1), off + 64))

def gemv(acc, nch):
    n0 = min(nch, 8)
    for c in range(n0):
        A("ds_read_b128 %s, %s offset:%d" % (vr(vA + 4 * c, 4), v(vXNR), c * 64))
    for c in range(nch):
        issued = n0 + min(c, nch - n0)
        A("s_waitcnt lgkmcnt(%d)" % (issued - c - 1))
        A("v_mfma_f32_16x16x32_bf16 %s, %s, %s, %s" % (vr(acc, 4), vr(vA + 4 * (c % 8), 4), vr(vB + 4 * c, 4), "0" if c == 0 else vr(acc, 4)))
        if c + 8 < nch:
            A("ds_read_b128 %s, %s offset:%d" % (vr(vA + 4 * c, 4), v(vXNR), (c + 8) * 64 + 64))
    nop(8); nop(2)

def first_begin():
    l = A.new("Lnf")
    A("s_cmp_lg_u32 s%d, 0" % sL)
    A("s_cbranch_scc1 %s" % l)
    return l
def notfirst_begin():
    l = A.new("Lnn")
    A("s_cmp_eq_u32 s%d, 0" % sL)
    A("s_cbranch_scc1 %s" % l)
    return l

def poll_AG(idx, X):
    a = vAGLD
    poll([(X, a, 0), (X + 4, a, 16)])
    return [X, X + 1, X + 4, X + 5]

def reduce_hops(idx, mlp):
    T = vS0
    A.c("---- RS consumer %d" % idx)
    phase(2 + idx)
    A("v_add_u32 %s, 0x%x, %s" % (v(vT0), RS_OFF, v(vPLD)))
    set_tags(T)
    poll([(vA + 4 * i, vT0, 1024 * i) for i in range(4)])
    stamp("rs_got%d" % idx)
    for d in range(2):
        A("v_add_f32 %s, %s, %s" % (v(T + d), v(vA + d), v(vA + 4 + d)))
        A("v_add_f32 %s, %s, %s" % (v(T + 4 + d), v(vA + 8 + d), v(vA + 12 + d)))
    for d in range(2):
        A("v_add_f32 %s, %s, %s" % (v(T + d), v(T + d), v(T + 4 + d)))
    dpp_reduce([T, T + 1], ["row_ror:8"], "add")
    xrow([T, T + 1], [T + 4, T + 5], "add")
    A("v_add_u32 %s, s%d, %s" % (v(vT0), sXBO, v(vXST)))
    A("s_mov_b64 exec, 0xff")
    publish(T, vT0, fast=False)
    A("s_mov_b64 exec, -1")
    A.c("---- X consumer %d" % idx)
    A("v_add_u32 %s, s%d, %s" % (v(vT0), sXBO, v(vXLD)))
    A("s_add_u32 s%d, s%d, 0x8000" % (sXBO, sXBO))
    if XPIPE:
        poll_pipe(vA, [vWO + 4 * i for i in range(XPIPE)], vT0)
    else:
        poll([(vA, vT0, 0)])
    stamp("x_got%d" % idx)
    dpp_reduce([vA, vA + 1], ["row_ror:8"], "add")
    xrow([vA, vA + 1], [T + 4, T + 5], "add")
    A("v_cvt_pk_bf16_f32 %s, %s, %s" % (v(vT1), v(vA), v(vA + 1)))
    A("v_lshlrev_b32 %s, 16, %s" % (v(vA), v(vT1)))
    A("v_and_b32 %s, 0xffff0000, %s" % (v(vA + 1), v(vT1)))
    if mlp:
        A("v_add_f32 %s, %s, %s" % (v(vA), v(vA), v(vB20)))
        A("v_add_f32 %s, %s, %s" % (v(vA + 1), v(vA + 1), v(vB21)))
        A("v_cvt_pk_bf16_f32 %s, %s, %s" % (v(vT1), v(vA), v(vA + 1)))
        A("v_lshlrev_b32 %s, 16, %s" % (v(vA), v(vT1)))
        A("v_and_b32 %s, 0xffff0000, %s" % (v(vA + 1), v(vT1)))
    A("v_add_f32 %s, %s, %s" % (v(vA), v(vA), v(vXR0)))
    A("v_add_f32 %s, %s, %s" % (v(vA + 1), v(vA + 1), v(vXR1)))
    A("v_cvt_pk_bf16_f32 %s, %s, %s" % (v(T), v(vA), v(vA + 1)))
    A("v_lshlrev_b32 %s, 16, %s" % (v(vXR0), v(T)))
    A("v_and_b32 %s, 0xffff0000, %s" % (v(vXR1), v(T)))
    if mlp:
        A("s_cmp_eq_u32 s%d, 1" % sL)
        A("s_cbranch_scc1 L_final")
    A("v_mov_b32_dpp %s, %s quad_perm:[1,1,3,3]%s" % (v(T + 1), v(T), DPPM))
    A("s_mov_b64 exec, 0x55")
    publish(T, vAGST)
    A("s_mov_b64 exec, -1")

def tags_setup():
    A("s_add_u32 s%d, s%d, 0x%x" % (sF, sWS, F_OFF))
    A("s_addc_u32 s%d, s%d, 0" % (sF + 1, sWS + 1))
    A("s_mov_b32 s%d, 0" % sMODE)
    A("s_mov_b32 s%d, 0" % sL)
    A("s_mov_b32 s%d, 0" % sXBO)
    A("s_getreg_b32 s%d, hwreg(HW_REG_XCC_ID)" % sXCC)
    A("s_and_b32 s%d, s%d, 7" % (sXCC, sXCC))
    A("s_waitcnt lgkmcnt(0)")
    A("s_xor_b32 s%d, s%d, 0x9e3779b9" % (sTA0, sE))
    A("s_mov_b32 s%d, s%d" % (sTA, sTA0))
    A("s_mul_i32 s%d, s%d, 0x85ebca6b" % (sTB, sE))
    A("s_add_u32 s%d, s%d, 0xc2b2ae35" % (sTB, sTB))
    A("s_xor_b32 s%d, s%d, s%d" % (sTBX, sTB, sXCC))

def next_layer():
    A("s_add_u32 s%d, s%d, 4" % (sTA0, sTA0))
    A("s_add_u32 s%d, s%d, 1" % (sL, sL))
def phase(p):
    A("s_add_u32 s%d, s%d, %d" % (sTA, sTA0, p))

def build():
    A("s_cmp_ge_u32 s2, 256")
    A("s_cbranch_scc1 L_end")
    A("s_load_dwordx16 s[16:31], s[0:1], 0")
    A("s_load_dwordx8 s[32:39], s[0:1], 64")
    A("s_load_dwordx2 s[40:41], s[0:1], 96")
    A("s_and_b32 s%d, s2, 7" % sG)
    A("s_lshr_b32 s%d, s2, 3" % sS)
    A("v_and_b32 %s, 63, v0" % v(vLANE))
    A("v_lshrrev_b32 %s, 6, v0" % v(vT0))
    nop(1)
    A("v_readfirstlane_b32 s%d, %s" % (sW, v(vT0)))
    for (r, val) in [(sLOG2E, f2u(1.4426950408889634)), (sSCALE, f2u(0.08838834764831845)), (sINV512, f2u(1.0 / 512)),
                     (sPLO, 0x05040100), (sPHI, 0x07060302),
                     (sC1, f2u(-2 * 0.7978845608028654 * 1.4426950408889634)),
                     (sC2, f2u(-2 * 0.7978845608028654 * 0.044715 * 1.4426950408889634)), (sEPS, f2u(1e-5))]:
        A("s_mov_b32 s%d, 0x%08x" % (r, val))
    A("v_and_b32 %s, 15, %s" % (v(vT1), v(vLANE)))
    A("v_lshrrev_b32 %s, 4, %s" % (v(vT2), v(vLANE)))
    A("s_cmp_eq_u32 s%d, 4" % sW)
    A("s_cbranch_scc1 L_comm")

    A.c("=========== compute waves prologue")
    A("s_lshl_b32 s%d, s%d, 24" % (sT0, sG))
    A("s_lshl_b32 s%d, s%d, 15" % (sT1, sS))
    A("s_add_u32 s%d, s%d, s%d" % (sT0, sT0, sT1))
    A("s_lshl_b32 s%d, s%d, 13" % (sT1, sW))
    A("s_add_u32 s%d, s%d, s%d" % (sT0, sT0, sT1))
    A("s_add_u32 s%d, s%d, %d" % (sT0, sT0, 61440 * 256))
    A("v_lshlrev_b32 %s, 8, %s" % (v(vT3), v(vT1)))
    A("v_lshl_add_u32 %s, %s, 4, %s" % (v(vT3), v(vT2), v(vT3)))
    A("v_add_u32 %s, 0x1000, %s" % (v(vT4), v(vT3)))
    A("s_waitcnt lgkmcnt(0)")
    stamp("start", loop=False)
    A("s_load_dword s%d, %s, 0" % (sE, sr(sWS)))
    A("s_add_u32 s%d, s%d, s%d" % (sKB, sK, sT0))
    A("s_addc_u32 s%d, s%d, 0" % (sKB + 1, sK + 1))
    A("s_add_u32 s%d, s%d, s%d" % (sVB, sV, sT0))
    A("s_addc_u32 s%d, s%d, 0" % (sVB + 1, sV + 1))
    if TLBW:
        A("s_lshl_b32 s%d, s2, 14" % sT1)
        A("v_mov_b32 %s, s%d" % (v(vS0), sT1))
        A("s_lshl_b32 s%d, s2, 12" % sT1)
        A("v_mov_b32 %s, s%d" % (v(vS0 + 1), sT1))
        A("v_mov_b32 %s, 0" % v(vS0 + 2))
        A("s_mov_b64 exec, 1")
        A("global_load_dword %s, %s, %s" % (v(vS0 + 4), v(vS0 + 2), sr(sKB)))
        A("global_load_dword %s, %s, %s" % (v(vS0 + 5), v(vS0 + 2), sr(sVB)))
        A("global_load_dword %s, %s, %s" % (v(vS0 + 6), v(vS0), sr(sWO)))
        A("global_load_dword %s, %s, %s" % (v(vS0 + 7), v(vS0 + 1), sr(sW1)))
        A("global_load_dword %s, %s, %s" % (v(vS0 + 8), v(vS0 + 1), sr(sW2)))
        A("global_load_dword %s, %s, %s" % (v(vS0 + 9), v(vS0 + 2), sr(sB1)))
        A("s_mov_b64 exec, -1")
    def kloads(lo=0, hi=8):
        A("v_lshlrev_b32 %s, 8, %s" % (v(vT3), v(vT1)))
        A("v_lshl_add_u32 %s, %s, 4, %s" % (v(vT3), v(vT2), v(vT3)))
        A("v_add_u32 %s, 0x1000, %s" % (v(vT4), v(vT3)))
        for T in range(2):
            for c in range(4):
                if not (lo <= T * 4 + c < hi): continue
                A("global_load_dwordx4 %s, %s, %s offset:%d%s" % (vr(vK + (T * 4 + c) * 4, 4), v(vT3 if T == 0 else vT4), sr(sKB), c * 64, NT))
    if PRE: kloads(0, PRE)
    W1RAW = vB + 32
    def wo_loads():
        A("s_lshl_b32 s%d, s%d, 2" % (sT0, sG))
        A("s_lshr_b32 s%d, s%d, 3" % (sT1, sS))
        A("s_add_u32 s%d, s%d, s%d" % (sT0, sT0, sT1))
        A("s_lshl_b32 s%d, s%d, 7" % (sT0, sT0))
        A("s_and_b32 s%d, s%d, 7" % (sT1, sS))
        A("s_add_u32 s%d, s%d, s%d" % (sT0, sT0, sT1))
        A("s_lshl_b32 s%d, s%d, 10" % (sT0, sT0))
        A("v_lshlrev_b32 %s, 2, v0" % v(vT0))
        A("v_add_u32 %s, s%d, %s" % (v(vT0), sT0, v(vT0)))
        for k in range(16):
            if k:
                A("v_add_u32 %s, 0x2000, %s" % (v(vT0), v(vT0)))
            A("global_load_dword %s, %s, %s%s" % (v(vWO + 16 + k), v(vT0), sr(sWO), NT))
    def w12_loads():
        A("s_min_u32 s%d, s%d, 27" % (sT0, sS))
        A("s_mul_i32 s%d, s%d, 28" % (sT1, sG))
        A("s_add_u32 s%d, s%d, s%d" % (sT0, sT0, sT1))
        A("s_lshl_b32 s%d, s%d, 4" % (sT1, sT0))
        A("v_mul_u32_u24 %s, 0xe00, v0" % v(vT3))
        A("v_add_u32 %s, s%d, %s" % (v(vT3), sT1, v(vT3)))
        if not W1C:
            A("global_load_dwordx4 %s, %s, %s%s" % (vr(W1RAW, 4), v(vT3), sr(sW1), NT))
            A("v_add_u32 %s, 0x%x, %s" % (v(vT3), 256 * 3584, v(vT3)))
            A("global_load_dwordx4 %s, %s, %s%s" % (vr(W1RAW + 4, 4), v(vT3), sr(sW1), NT))
        A("v_and_b32 %s, 7, %s" % (v(vT3), v(vLANE)))
        A("v_lshlrev_b32 %s, 1, %s" % (v(vT3), v(vT3)))
        A("v_add_u32 %s, s%d, %s" % (v(vT3), sT1, v(vT3)))
        A("global_load_ushort %s, %s, %s" % (v(vB1), v(vT3), sr(sB1)))
        A("s_lshl_b32 s%d, s%d, 13" % (sT1, sT0))
        A("v_lshlrev_b32 %s, 2, v0" % v(vT3))
        A("v_add_u32 %s, s%d, %s" % (v(vT3), sT1, v(vT3)))
        A("v_add_u32 %s, 0x1000, %s" % (v(vT4), v(vT3)))
        for k in range(8):
            A("global_load_dword %s, %s, %s offset:%d%s" % (v(vW2 + 8 + k), v(vT3 if k < 4 else vT4), sr(sW2), (k % 4) * 1024, NT))
    if DEFER == 4:
        wo_loads(); w12_loads()
    if B0 < 2: kloads()
    A("v_and_b32 %s, 3, %s" % (v(vT3), v(vT1)))
    A("v_mul_u32_u24 %s, 320, %s" % (v(vQRD), v(vT3)))
    A("v_lshl_add_u32 %s, %s, 4, %s" % (v(vQRD), v(vT2), v(vQRD)))
    A("v_add_u32 %s, %d, %s" % (v(vQRD), L_Q, v(vQRD)))
    A("v_lshrrev_b32 %s, 2, %s" % (v(vT3), v(vT1)))
    A("v_lshl_add_u32 %s, %s, 3, %s" % (v(vT3), v(vT2), v(vT3)))
    A("v_lshlrev_b32 %s, 4, %s" % (v(vTR1), v(vT3)))
    A("v_and_b32 %s, 1, %s" % (v(vT4), v(vT1)))
    A("v_lshl_add_u32 %s, %s, 3, %s" % (v(vTR1), v(vT4), v(vTR1)))
    A("v_and_b32 %s, 2, %s" % (v(vT4), v(vT1)))
    A("v_lshl_add_u32 %s, %s, 11, %s" % (v(vTR1), v(vT4), v(vTR1)))
    A("v_and_b32 %s, 1, %s" % (v(vT4), v(vT1)))
    A("v_mul_u32_u24 %s, 576, %s" % (v(vXNR), v(vT4)))
    A("v_lshl_add_u32 %s, %s, 4, %s" % (v(vXNR), v(vT2), v(vXNR)))
    A("v_add_u32 %s, %d, %s" % (v(vXNR), L_XN + XN_SZ, v(vXNR)))
    A("v_lshrrev_b32 %s, 3, v0" % v(vT3))
    A("s_lshl_b32 s%d, s%d, 5" % (sT1, sG))
    A("v_add_u32 %s, s%d, %s" % (v(vT3), sT1, v(vT3)))
    A("v_lshlrev_b32 %s, 5, %s" % (v(vT3), v(vT3)))
    A("v_add_u32 %s, s%d, %s" % (v(vT3), sS, v(vT3)))
    A("v_lshlrev_b32 %s, 7, %s" % (v(vT3), v(vT3)))
    A("v_and_b32 %s, 7, v0" % v(vT4))
    A("v_lshl_add_u32 %s, %s, 4, %s" % (v(vPOST), v(vT4), v(vT3)))
    A("s_lshl_b32 s%d, s%d, 2" % (sT0, sG))
    A("s_add_u32 s%d, s%d, s%d" % (sT0, sT0, sW))
    A("s_lshl_b32 s%d, s%d, 5" % (sT0, sT0))
    A("s_add_u32 s%d, s%d, s%d" % (sT0, sT0, sS))
    A("s_lshl_b32 s%d, s%d, 4" % (sT0, sT0))
    A("s_add_u32 s%d, s%d, 0x%x" % (sT0, sT0, ML_OFF))
    A("v_mov_b32 %s, s%d" % (v(vMLST), sT0))
    A("s_mul_i32 s%d, s%d, %d" % (sT1, sW, AT_STRIDE))
    A("s_add_u32 s%d, s%d, %d" % (sT1, sT1, L_AT))
    A("v_mul_u32_u24 %s, %d, %s" % (v(vATW), HSTR, v(vT1)))
    A("v_lshl_add_u32 %s, %s, 4, %s" % (v(vATW), v(vT2), v(vATW)))
    A("v_add_u32 %s, s%d, %s" % (v(vATW), sT1, v(vATW)))
    A("s_mul_i32 s%d, s%d, %d" % (sT1, sW, HSTR))
    A("s_add_u32 s%d, s%d, %d" % (sT1, sT1, L_AT))
    A("v_lshlrev_b32 %s, 3, %s" % (v(vATR), v(vLANE)))
    A("v_add_u32 %s, s%d, %s" % (v(vATR), sT1, v(vATR)))
    A("s_mov_b32 s%d, 0x000f000f" % sM)
    A("s_mov_b32 s%d, 0x000f000f" % (sM + 1))
    tags_setup()
    if B0: A("s_barrier")
    if B0 >= 2: kloads(PRE, 8)
    A("v_lshlrev_b32 %s, 10, %s" % (v(vT3), v(vT2)))
    A("v_lshl_add_u32 %s, %s, 4, %s" % (v(vT3), v(vT1), v(vT3)))
    A("v_add_u32 %s, 0x1000, %s" % (v(vT4), v(vT3)))
    VRAW = vB
    for j in range(8):
        if TH and 8 + j >= TH: A("s_waitcnt vmcnt(%d)" % (TH - 1))
        A("global_load_dwordx4 %s, %s, %s offset:%d%s" % (vr(VRAW + 4 * j, 4), v(vT3 if j < 4 else vT4), sr(sVB), (j % 4) * 256, NT))
    if DEFER == 0:
        wo_loads(); w12_loads()
    if DEFER == 5:
        wo_loads()
    if DEFER == 4:
        A("s_waitcnt vmcnt(16)")
        for k in range(16):
            A("v_lshlrev_b32 %s, 16, %s" % (v(vWO + k), v(vWO + 16 + k)))
            A("v_and_b32 %s, 0xffff0000, %s" % (v(vWO + 16 + k), v(vWO + 16 + k)))
        A("v_lshlrev_b32 %s, 4, v0" % v(vT0))
        if not W1C:
            A("ds_write_b128 %s, %s offset:%d" % (v(vT0), vr(W1RAW, 4), L_W1))
            A("ds_write_b128 %s, %s offset:%d" % (v(vT0), vr(W1RAW + 4, 4), L_W1 + 4096))
        for k in range(8):
            A("v_lshlrev_b32 %s, 16, %s" % (v(vW2 + k), v(vW2 + 8 + k)))
            A("v_and_b32 %s, 0xffff0000, %s" % (v(vW2 + 8 + k), v(vW2 + 8 + k)))
        A("v_lshlrev_b32 %s, 16, %s" % (v(vB1), v(vB1)))
    A("s_waitcnt vmcnt(%d)" % (27 if DEFER == 0 else ((24 if VL else 16) if DEFER == 5 else 0)))
    stamp("kv_landed", loop=False)
    def vperms():
        for i in range(8):
            q = i // 2
            sel = sPLO if i % 2 == 0 else sPHI
            for p in range(4):
                A("v_perm_b32 %s, %s, %s, s%d" % (v(vVT + 4 * i + p), v(VRAW + 4 * (2 * p + 1) + q), v(VRAW + 4 * (2 * p) + q), sel))
    if not VL: vperms()

    if DEFER == 1:
        wo_loads()
    if DEFER == 2:
        wo_loads(); w12_loads()
    A.lab("L_cloop")
    A.c("================= attention")
    A("s_barrier")
    Q = vA if VL else vB
    for c in range(4):
        A("ds_read_b128 %s, %s offset:%d" % (vr(Q + 4 * c, 4), v(vQRD), c * 64))
    lf = first_begin()
    A("v_mov_b32 %s, %d" % (v(vT4), L_MODE))
    A("ds_read_b32 %s, %s" % (v(vT3), v(vT4)))
    if DEFER == 3: wo_loads()
    A("s_waitcnt lgkmcnt(0)")
    A("v_readfirstlane_b32 s%d, %s" % (sMODE, v(vT3)))
    A.lab(lf)
    stamp("b1")
    S = vS0
    for c in range(4):
        A("s_waitcnt lgkmcnt(%d)" % (3 - c))
        for T in range(2):
            A("v_mfma_f32_16x16x32_bf16 %s, %s, %s, %s" % (vr(S + 4 * T, 4), vr(vK + (T * 4 + c) * 4, 4), vr(Q + 4 * c, 4), "0" if c == 0 else vr(S + 4 * T, 4)))
    nop(8); nop(2)
    stamp("a_qk")
    P = vS0 + 8
    for rnd in range(2):
        for i in range(4):
            A("v_cvt_pk_bf16_f32 %s, %s, %s" % (v(P + i), v(S + 2 * i), v(S + 2 * i + 1)))
        for i in range(4):
            A("v_lshlrev_b32 %s, 16, %s" % (v(S + 2 * i), v(P + i)))
            A("v_and_b32 %s, 0xffff0000, %s" % (v(S + 2 * i + 1), v(P + i)))
        if rnd == 0:
            for i in range(8):
                A("v_mul_f32 %s, s%d, %s" % (v(S + i), sSCALE, v(S + i)))
    A("v_max3_f32 %s, %s, %s, %s" % (v(vT0), v(S), v(S + 1), v(S + 2)))
    A("v_max3_f32 %s, %s, %s, %s" % (v(vT1), v(S + 3), v(S + 4), v(S + 5)))
    A("v_max3_f32 %s, %s, %s, %s" % (v(vT0), v(S + 6), v(S + 7), v(vT0)))
    A("v_max_f32 %s, %s, %s" % (v(vT0), v(vT0), v(vT1)))
    xrow([vT0], [vT1], "max")
    A("v_mul_f32 %s, s%d, %s" % (v(vT2), sLOG2E, v(vT0)))
    for i in range(8):
        A("v_fma_f32 %s, %s, s%d, -%s" % (v(S + i), v(S + i), sLOG2E, v(vT2)))
    for i in range(8):
        A("v_exp_f32 %s, %s" % (v(S + i), v(S + i)))
    nop(1)
    for i in range(4):
        A("v_cvt_pk_bf16_f32 %s, %s, %s" % (v(P + i), v(S + 2 * i), v(S + 2 * i + 1)))
    A("v_add_f32 %s, %s, %s" % (v(vT1), v(S), v(S + 1)))
    A("v_add_f32 %s, %s, %s" % (v(vT2), v(S + 2), v(S + 3)))
    stamp("a_sm")
    D = vA
    if VL:
        lf = first_begin()
        A("s_waitcnt vmcnt(16)")
        vperms()
        nop(2)
        A.lab(lf)
    for i in range(8):
        A("v_mfma_f32_16x16x32_bf16 %s, %s, %s, 0" % (vr(D + 4 * i, 4), vr(vVT + 4 * i, 4), vr(P, 4)))
        if i == 0:
            A("v_add_f32 %s, %s, %s" % (v(vT3), v(S + 4), v(S + 5)))
            A("v_add_f32 %s, %s, %s" % (v(vT4), v(S + 6), v(S + 7)))
        if i == 1:
            A("v_add_f32 %s, %s, %s" % (v(vT1), v(vT1), v(vT2)))
            A("v_add_f32 %s, %s, %s" % (v(vT3), v(vT3), v(vT4)))
        if i == 2:
            A("v_add_f32 %s, %s, %s" % (v(vT1), v(vT1), v(vT3)))
        if i == 3:
            xrow([vT1], [vT2], "add")
    A("s_mul_i32 s%d, s%d, %d" % (sT1, sW, AT_STRIDE))
    A("s_add_u32 s%d, s%d, %d" % (sT1, sT1, L_AT + ML_IN))
    A("v_lshlrev_b32 %s, 3, %s" % (v(vT2), v(vLANE)))
    A("v_add_u32 %s, s%d, %s" % (v(vT2), sT1, v(vT2)))
    A("s_mov_b64 exec, 0xf")
    A("ds_write_b64 %s, %s" % (v(vT2), vr(vT0, 2)))
    A("s_mov_b64 exec, %s" % sr(sM))
    for i in range(8):
        if i == 6: nop(4)
        A("ds_write_b128 %s, %s offset:%d" % (v(vATW), vr(D + 4 * i, 4), i * 64))
    A("s_mov_b64 exec, -1")
    A("s_lshl_b32 s%d, s%d, 3" % (sT1, sW))
    A("s_add_u32 s%d, s%d, %d" % (sT1, sT1, L_AT + ML_IN))
    A("v_mov_b32 %s, s%d" % (v(vT2), sT1))
    G = vS0
    phase(1)
    set_tags(G)
    set_tags(G + 4)
    A("v_add_u32 %s, 0x%x, %s" % (v(vT0), PO_OFF, v(vPOST)))
    A("s_waitcnt lgkmcnt(0)")
    stamp("a_pv")
    A("s_barrier")
    stamp("a_b2")
    R = vA
    for w in range(4):
        A("ds_read_b64 %s, %s offset:%d" % (vr(R + 8 + 2 * w, 2), v(vT2), w * AT_STRIDE))
    for w in range(4):
        A("ds_read_b64 %s, %s offset:%d" % (vr(R + 2 * w, 2), v(vATR), w * AT_STRIDE))
    A("s_waitcnt lgkmcnt(4)")
    A("v_max_f32 %s, %s, %s" % (v(G + 4), v(R + 8), v(R + 10)))
    A("v_max3_f32 %s, %s, %s, %s" % (v(G + 4), v(R + 12), v(R + 14), v(G + 4)))
    for w in range(4):
        A("v_sub_f32 %s, %s, %s" % (v(R + 8 + 2 * w), v(R + 8 + 2 * w), v(G + 4)))
    for w in range(4):
        A("v_mul_f32 %s, s%d, %s" % (v(R + 8 + 2 * w), sLOG2E, v(R + 8 + 2 * w)))
    for w in range(4):
        A("v_exp_f32 %s, %s" % (v(R + 8 + 2 * w), v(R + 8 + 2 * w)))
    A("s_waitcnt lgkmcnt(0)")
    A("v_mul_f32 %s, %s, %s" % (v(G), v(R + 8), v(R)))
    A("v_mul_f32 %s, %s, %s" % (v(G + 1), v(R + 8), v(R + 1)))
    A("v_mul_f32 %s, %s, %s" % (v(G + 5), v(R + 8), v(R + 9)))
    for w in range(1, 4):
        A("v_fmac_f32 %s, %s, %s" % (v(G), v(R + 8 + 2 * w), v(R + 2 * w)))
        A("v_fmac_f32 %s, %s, %s" % (v(G + 1), v(R + 8 + 2 * w), v(R + 2 * w + 1)))
        A("v_fmac_f32 %s, %s, %s" % (v(G + 5), v(R + 8 + 2 * w), v(R + 9 + 2 * w)))
    publish(G, vT0)
    A("s_mov_b64 exec, 1")
    publish(G + 4, vMLST)
    A("s_mov_b64 exec, -1")
    stamp("p_pub")
    def stage_w12():
        A("v_lshlrev_b32 %s, 4, v0" % v(vT0))
        if not W1C:
            A("ds_write_b128 %s, %s offset:%d" % (v(vT0), vr(W1RAW, 4), L_W1))
            A("ds_write_b128 %s, %s offset:%d" % (v(vT0), vr(W1RAW + 4, 4), L_W1 + 4096))
        for k in range(8):
            A("v_lshlrev_b32 %s, 16, %s" % (v(vW2 + k), v(vW2 + 8 + k)))
            A("v_and_b32 %s, 0xffff0000, %s" % (v(vW2 + 8 + k), v(vW2 + 8 + k)))
        A("v_lshlrev_b32 %s, 16, %s" % (v(vB1), v(vB1)))
        A("s_waitcnt lgkmcnt(0)")
    lf = first_begin() if DEFER != 4 else None
    if DEFER != 4:
      A.c("unpack wo, stage w1, unpack w2")
    if DEFER != 4:
        A("s_waitcnt vmcnt(2)")
        for k in range(16):
            A("v_lshlrev_b32 %s, 16, %s" % (v(vWO + k), v(vWO + 16 + k)))
            A("v_and_b32 %s, 0xffff0000, %s" % (v(vWO + 16 + k), v(vWO + 16 + k)))
        if DEFER in (1, 3, 5):
            w12_loads()
        else:
            stage_w12()
        A.lab(lf)

    A.c("================= o-proj")
    G = vS0 + 8
    T = vS0
    phase(2)
    set_tags(G)
    A("v_mov_b32 %s, %d" % (v(vT1), L_O))
    A("v_add_u32 %s, 0x%x, %s" % (v(vT0), RS_OFF, v(vPOST)))
    A("s_barrier")
    O = vA
    for i in range(4):
        A("ds_read_b128 %s, %s offset:%d" % (vr(O + 4 * i, 4), v(vT1), 16 * i))
    stamp("b3")
    for i in range(4):
        A("s_waitcnt lgkmcnt(%d)" % (3 - i))
        for kk in range(4):
            k = 4 * i + kk
            a0, a1 = (G, G + 1) if k % 2 == 0 else (T + 4, T + 5)
            ins = "v_mul_f32" if k < 2 else "v_fmac_f32"
            A("%s %s, %s, %s" % (ins, v(a0), v(O + k), v(vWO + k)))
            A("%s %s, %s, %s" % (ins, v(a1), v(O + k), v(vWO + 16 + k)))
    A("v_add_f32 %s, %s, %s" % (v(G), v(G), v(T + 4)))
    A("v_add_f32 %s, %s, %s" % (v(G + 1), v(G + 1), v(T + 5)))
    publish(G, vT0)
    stamp("rs_pub0")

    A.c("================= MLP")
    if DEFER in (1, 3, 5):
        lf = first_begin()
        A("s_waitcnt vmcnt(0)")
        stage_w12()
        A.lab(lf)
        ln = notfirst_begin()
        prefetch_W1()
        A.lab(ln)
    else:
        prefetch_W1()
    A("v_add_u32 %s, 0x%x, %s" % (v(vT0), RS_OFF, v(vPOST)))
    A("s_barrier")
    if DEFER in (1, 3, 5):
        lf = first_begin()
        prefetch_W1()
        A.lab(lf)
    stamp("b4")
    gemv(vS0, 8)
    T = vS0
    A("v_add_f32_dpp %s, %s, %s row_ror:8%s" % (v(T), v(T + 1), v(T), DPPM))
    G = vS0 + 8
    phase(3)
    set_tags(G)
    A("v_cvt_pk_bf16_f32 %s, %s, %s" % (v(T), v(T), v(T)))
    A("v_and_b32 %s, 0xffff0000, %s" % (v(T), v(T)))
    A("v_add_f32 %s, %s, %s" % (v(T), v(T), v(vB1)))
    A("v_cvt_pk_bf16_f32 %s, %s, %s" % (v(T), v(T), v(T)))
    A("v_and_b32 %s, 0xffff0000, %s" % (v(T), v(T)))
    A("v_mul_f32 %s, %s, %s" % (v(T + 1), v(T), v(T)))
    A("v_mov_b32 %s, s%d" % (v(T + 2), sC1))
    A("v_fmac_f32 %s, s%d, %s" % (v(T + 2), sC2, v(T + 1)))
    A("v_mul_f32 %s, %s, %s" % (v(T + 2), v(T + 2), v(T)))
    A("v_exp_f32 %s, %s" % (v(T + 2), v(T + 2)))
    nop(1)
    A("v_add_f32 %s, 1.0, %s" % (v(T + 2), v(T + 2)))
    A("v_rcp_f32 %s, %s" % (v(T + 2), v(T + 2)))
    nop(1)
    A("v_mul_f32 %s, %s, %s" % (v(T), v(T), v(T + 2)))
    A("v_cvt_pk_bf16_f32 %s, %s, %s" % (v(T), v(T), v(T)))
    A("v_and_b32 %s, 0xffff0000, %s" % (v(T), v(T)))
    A("s_cmp_lt_u32 s%d, 28" % sS)
    A("s_cbranch_scc1 L_hok")
    A("v_mov_b32 %s, 0" % v(T))
    A.lab("L_hok")
    nop(1)
    for k in range(8):
        A("v_readlane_b32 s%d, %s, %d" % (sO + k, v(T), k))
    A("v_mul_f32 %s, s%d, %s" % (v(G), sO, v(vW2)))
    A("v_mul_f32 %s, s%d, %s" % (v(G + 1), sO, v(vW2 + 8)))
    A("v_mul_f32 %s, s%d, %s" % (v(T + 4), sO + 1, v(vW2 + 1)))
    A("v_mul_f32 %s, s%d, %s" % (v(T + 5), sO + 1, v(vW2 + 9)))
    for k in range(2, 8, 2):
        A("v_fmac_f32 %s, s%d, %s" % (v(G), sO + k, v(vW2 + k)))
        A("v_fmac_f32 %s, s%d, %s" % (v(G + 1), sO + k, v(vW2 + 8 + k)))
        A("v_fmac_f32 %s, s%d, %s" % (v(T + 4), sO + k + 1, v(vW2 + k + 1)))
        A("v_fmac_f32 %s, s%d, %s" % (v(T + 5), sO + k + 1, v(vW2 + 9 + k)))
    A("v_add_f32 %s, %s, %s" % (v(G), v(G), v(T + 4)))
    A("v_add_f32 %s, %s, %s" % (v(G + 1), v(G + 1), v(T + 5)))
    publish(G, vT0)
    stamp("rs_pub1")
    next_layer()
    A("s_cmp_lt_u32 s%d, 2" % sL)
    A("s_cbranch_scc1 L_cloop")
    dump_stamps()
    A("s_endpgm")

    A.lab("L_comm")
    A("s_setprio 3")
    A("v_lshrrev_b32 %s, 2, %s" % (v(vT3), v(vT1)))
    A("v_lshl_add_u32 %s, %s, 3, %s" % (v(vT3), v(vT2), v(vT3)))
    A("v_and_b32 %s, 3, %s" % (v(vT4), v(vT1)))
    A("v_lshlrev_b32 %s, 5, %s" % (v(vTRA), v(vT3)))
    A("v_lshl_add_u32 %s, %s, 3, %s" % (v(vTRA), v(vT4), v(vTRA)))
    A("v_lshlrev_b32 %s, 4, %s" % (v(vXNR), v(vT2)))
    A("v_add_u32 %s, %d, %s" % (v(vXNR), L_XN, v(vXNR)))
    A("v_lshrrev_b32 %s, 1, %s" % (v(vT3), v(vLANE)))
    A("v_lshlrev_b32 %s, 13, %s" % (v(vT3), v(vT3)))
    A("v_and_b32 %s, 1, %s" % (v(vT4), v(vLANE)))
    A("v_lshl_add_u32 %s, %s, 4, %s" % (v(vT3), v(vT4), v(vT3)))
    A("s_lshl_b32 s%d, s%d, 10" % (sT0, sG))
    A("s_lshl_b32 s%d, s%d, 5" % (sT1, sS))
    A("s_add_u32 s%d, s%d, s%d" % (sT0, sT0, sT1))
    A("v_add_u32 %s, s%d, %s" % (v(vT3), sT0, v(vT3)))
    A("v_lshlrev_b32 %s, 4, %s" % (v(vXNW), v(vLANE)))
    A("v_lshrrev_b32 %s, 5, %s" % (v(vXNW2), v(vLANE)))
    A("v_lshl_add_u32 %s, %s, 6, %s" % (v(vXNW2), v(vXNW2), v(vXNW)))
    A("v_mul_u32_u24 %s, 320, %s" % (v(vQW), v(vT2)))
    A("v_lshl_add_u32 %s, %s, 4, %s" % (v(vQW), v(vT1), v(vQW)))
    A("v_and_b32 %s, 7, %s" % (v(vT4), v(vLANE)))
    A("v_lshlrev_b32 %s, 2, %s" % (v(vT4), v(vT4)))
    A("v_add_u32 %s, s%d, %s" % (v(vT4), sT1, v(vT4)))
    A("s_waitcnt lgkmcnt(0)")
    stamp("start", loop=False)
    A("s_load_dword s%d, %s, 0" % (sE, sr(sWS)))
    A("global_load_dwordx4 %s, %s, %s" % (vr(vX, 4), v(vXNW), sr(sX)))
    for i in range(16):
        if i:
            A("v_add_u32 %s, 0x40000, %s" % (v(vT3), v(vT3)))
        A("global_load_dwordx4 %s, %s, %s%s" % (vr(vK + 4 * i, 4), v(vT3), sr(sWQ), NT))
    A("global_load_dword %s, %s, %s" % (v(vXR1), v(vT4), sr(sX)))
    A("global_load_dword %s, %s, %s" % (v(vB21), v(vT4), sr(sB2)))
    NW1 = 0
    if W1C:
        A("s_min_u32 s%d, s%d, 27" % (sT0, sS))
        A("s_mul_i32 s%d, s%d, 28" % (sT1, sG))
        A("s_add_u32 s%d, s%d, s%d" % (sT0, sT0, sT1))
        A("s_lshl_b32 s%d, s%d, 4" % (sT1, sT0))
        A("v_mul_u32_u24 %s, 0xe00, %s" % (v(vT3), v(vLANE)))
        A("v_add_u32 %s, s%d, %s" % (v(vT3), sT1, v(vT3)))
        for i in range(8):
            if i:
                A("v_add_u32 %s, 0x%x, %s" % (v(vT3), 64 * 3584, v(vT3)))
            A("global_load_dwordx4 %s, %s, %s%s" % (vr(vB + 32 + 4 * i, 4), v(vT3), sr(sW1), NT))
        NW1 = 8
    if B0 == 3: A("s_barrier")
    A("s_lshl_b32 s%d, s%d, 11" % (sT0, sG))
    A("v_lshlrev_b32 %s, 5, %s" % (v(vQLD), v(vLANE)))
    A("v_add_u32 %s, s%d, %s" % (v(vQLD), sT0, v(vQLD)))
    A("v_add_u32 %s, 0x%x, %s" % (v(vAGLD), AG_OFF, v(vQLD)))
    A("s_lshl_b32 s%d, s%d, 6" % (sT1, sS))
    A("s_add_u32 s%d, s%d, s%d" % (sT0, sT0, sT1))
    A("v_and_b32 %s, 12, %s" % (v(vQST), v(vLANE)))
    A("v_lshlrev_b32 %s, 2, %s" % (v(vQST), v(vQST)))
    A("v_add_u32 %s, s%d, %s" % (v(vQST), sT0, v(vQST)))
    A("s_add_u32 s%d, s%d, 0x%x" % (sT0, sT0, AG_OFF))
    A("v_and_b32 %s, 6, %s" % (v(vAGST), v(vLANE)))
    A("v_lshlrev_b32 %s, 3, %s" % (v(vAGST), v(vAGST)))
    A("v_add_u32 %s, s%d, %s" % (v(vAGST), sT0, v(vAGST)))
    A("s_lshl_b32 s%d, s%d, 10" % (sT0, sS))
    A("s_add_u32 s%d, s%d, 0x%x" % (sT0, sT0, XB_OFF))
    A("v_lshlrev_b32 %s, 4, %s" % (v(vXLD), v(vLANE)))
    A("v_add_u32 %s, s%d, %s" % (v(vXLD), sT0, v(vXLD)))
    A("s_lshl_b32 s%d, s%d, 7" % (sT1, sG))
    A("s_add_u32 s%d, s%d, s%d" % (sT0, sT0, sT1))
    A("v_and_b32 %s, 7, %s" % (v(vXST), v(vLANE)))
    A("v_lshlrev_b32 %s, 4, %s" % (v(vXST), v(vXST)))
    A("v_add_u32 %s, s%d, %s" % (v(vXST), sT0, v(vXST)))
    A("s_lshl_b32 s%d, s%d, 5" % (sT1, sG))
    A("s_add_u32 s%d, s%d, s%d" % (sT1, sT1, sS))
    A("s_lshl_b32 s%d, s%d, 12" % (sT1, sT1))
    A("v_lshlrev_b32 %s, 4, %s" % (v(vPLD), v(vLANE)))
    A("v_add_u32 %s, s%d, %s" % (v(vPLD), sT1, v(vPLD)))
    A("s_lshl_b32 s%d, s%d, 2" % (sT1, sG))
    A("s_lshr_b32 s%d, s%d, 3" % (sT2, sS))
    A("s_add_u32 s%d, s%d, s%d" % (sT1, sT1, sT2))
    A("s_lshl_b32 s%d, s%d, 9" % (sT1, sT1))
    A("s_add_u32 s%d, s%d, 0x%x" % (sT1, sT1, ML_OFF))
    A("v_lshrrev_b32 %s, 3, %s" % (v(vT3), v(vLANE)))
    A("v_lshlrev_b32 %s, 4, %s" % (v(vMLLD), v(vT3)))
    A("v_add_u32 %s, s%d, %s" % (v(vMLLD), sT1, v(vMLLD)))
    tags_setup()
    NPT = 0
    HG = vW2
    if HELLO:
        A("v_mov_b32 %s, s%d" % (v(HG), sXCC))
        A("v_mov_b32 %s, 0" % v(HG + 1))
        A("s_add_u32 s%d, s%d, 9" % (sT0, sTA0))
        A("v_mov_b32 %s, s%d" % (v(HG + 2), sT0))
        A("v_mov_b32 %s, s%d" % (v(HG + 3), sTB))
        A("s_lshl_b32 s%d, s%d, 11" % (sT0, sG))
        A("s_add_u32 s%d, s%d, 0x%x" % (sT0, sT0, HB_OFF))
        A("s_lshl_b32 s%d, s%d, 6" % (sT1, sS))
        A("s_add_u32 s%d, s%d, s%d" % (sT1, sT1, sT0))
        A("v_mov_b32 %s, s%d" % (v(HG + 8), sT1))
        A("v_and_b32 %s, 31, %s" % (v(HG + 9), v(vLANE)))
        A("v_lshlrev_b32 %s, 6, %s" % (v(HG + 9), v(HG + 9)))
        A("v_add_u32 %s, s%d, %s" % (v(HG + 9), sT0, v(HG + 9)))
        A("s_mov_b64 exec, 1")
        A("global_store_dwordx4 %s, %s, %s sc1" % (v(HG + 8), vr(HG, 4), sr(sF)))
        A("s_mov_b64 exec, -1")
        NPT = 1
    if PRETOUCH:
        PT = vWO
        A("v_add_u32 %s, 0x%x, %s" % (v(vT0), PO_OFF, v(vPLD)))
        A("v_add_u32 %s, 0x%x, %s" % (v(vT3), RS_OFF, v(vPLD)))
        for i in range(4):
            A("global_load_dword %s, %s, %s offset:%d" % (v(PT + i), v(vT0), sr(sF), 1024 * i))
            A("global_load_dword %s, %s, %s offset:%d" % (v(PT + 4 + i), v(vT3), sr(sF), 1024 * i))
        A("global_load_dword %s, %s, %s" % (v(PT + 8), v(vQLD), sr(sF)))
        A("global_load_dword %s, %s, %s" % (v(PT + 9), v(vAGLD), sr(sF)))
        for i in range(4):
            A("global_load_dword %s, %s, %s offset:%d" % (v(PT + 10 + i), v(vMLLD), sr(sF), 128 * i))
        NPT += 14
    for i in range(16):
        A("s_waitcnt vmcnt(%d)" % (17 + NPT + NW1 - i))
        if i == 7 and B0 == 4:
            A("s_barrier")
        if i == 15 and B0 in (1, 2):
            A("s_barrier")
        A("ds_write_b128 %s, %s offset:%d" % (v(vXNW), vr(vK + 4 * i, 4), L_WQ + i * 1024))
    stamp("wq_staged", loop=False)
    if W1C:
        A("s_waitcnt vmcnt(%d)" % NPT)
        for i in range(8):
            A("ds_write_b128 %s, %s offset:%d" % (v(vXNW), vr(vB + 32 + 4 * i, 4), L_W1 + i * 1024))
        A("s_nop 4")
    if HELLO:
        A("global_load_dwordx4 %s, %s, %s sc1" % (vr(HG + 4, 4), v(HG + 9), sr(sF)))
    prefetch_WQ()
    A.lab("L_mloop")
    phase(0)
    layernorm([vX, vX + 1, vX + 2, vX + 3], L_XN)
    gemv(vS0, 16)
    T = vS0 + 4
    for e in range(4):
        A("v_mov_b32_dpp %s, %s quad_perm:[%d,%d,%d,%d]%s" % (v(T + 4 + e), v(vS0), e, e, e, e, DPPM))
    A("v_mov_b32 %s, s%d" % (v(T + 2), sTA))
    A("v_mov_b32 %s, s%d" % (v(T + 3), sTBX))
    A("v_cvt_pk_bf16_f32 %s, %s, %s" % (v(T), v(T + 4), v(T + 5)))
    A("v_cvt_pk_bf16_f32 %s, %s, %s" % (v(T + 1), v(T + 6), v(T + 7)))
    if HELLO:
        lf = first_begin()
        A("s_add_u32 s%d, s%d, 9" % (sT0, sTA0))
        A("s_waitcnt vmcnt(0)")
        A("v_xor_b32 %s, s%d, %s" % (v(vT3), sT0, v(HG + 6)))
        A("v_xor_b32 %s, s%d, %s" % (v(vT4), sTB, v(HG + 7)))
        A("v_xor_b32 %s, s%d, %s" % (v(vT5), sXCC, v(HG + 4)))
        A("v_or3_b32 %s, %s, %s, %s" % (v(vT3), v(vT3), v(vT4), v(vT5)))
        A("v_cmp_ne_u32 vcc, 0, %s" % v(vT3))
        A("s_cmp_eq_u64 vcc, 0")
        A("s_cselect_b32 s%d, 1, 0" % sMODE)
        A.lab(lf)
    A("s_mov_b64 exec, 0x1111")
    publish(T, vQST)
    A("s_mov_b64 exec, -1")
    if B0 == 5:
        lf = first_begin()
        A("s_barrier")
        A.lab(lf)
    stamp("q_pub")
    Qg = vA
    poll([(Qg, vQLD, 0), (Qg + 4, vQLD, 16)], xcc=True)
    lf = first_begin()
    A("v_lshlrev_b32 %s, 16, %s" % (v(vXR0), v(vXR1)))
    A("v_and_b32 %s, 0xffff0000, %s" % (v(vXR1), v(vXR1)))
    A("v_lshlrev_b32 %s, 16, %s" % (v(vB20), v(vB21)))
    A("v_and_b32 %s, 0xffff0000, %s" % (v(vB21), v(vB21)))
    A("v_xor_b32 %s, s%d, %s" % (v(vT4), sTBX, v(Qg + 3)))
    A("v_xor_b32 %s, s%d, %s" % (v(vT3), sTBX, v(Qg + 7)))
    A("v_or_b32 %s, %s, %s" % (v(vT4), v(vT4), v(vT3)))
    A("v_cmp_ne_u32 vcc, 0, %s" % v(vT4))
    A("s_cmp_eq_u64 vcc, 0")
    A("s_cselect_b32 s%d, 1, 0" % sMODE)
    A("v_mov_b32 %s, s%d" % (v(vT3), sMODE))
    A("v_mov_b32 %s, %d" % (v(vT4), L_MODE))
    A("ds_write_b32 %s, %s" % (v(vT4), v(vT3)))
    A.lab(lf)
    A("v_mov_b32 %s, %s" % (v(Qg + 2), v(Qg + 4)))
    A("v_mov_b32 %s, %s" % (v(Qg + 3), v(Qg + 5)))
    A("ds_write_b128 %s, %s offset:%d" % (v(vQW), vr(Qg, 4), L_Q))
    A("v_add_u32 %s, 0x%x, %s" % (v(vT0), PO_OFF, v(vPLD)))
    A("s_waitcnt lgkmcnt(0)")
    A("s_barrier")
    stamp("q_got")
    A("s_barrier")
    phase(1)
    O = vB
    ML = O + 16
    poll([(ML + 4 * i, vMLLD, 128 * i) for i in range(4)] + [(O + 4 * i, vT0, 1024 * i) for i in range(4)])
    stamp("p_got")
    A("v_max_f32 %s, %s, %s" % (v(vT0), v(ML), v(ML + 4)))
    A("v_max3_f32 %s, %s, %s, %s" % (v(vT0), v(ML + 8), v(ML + 12), v(vT0)))
    dpp_reduce([vT0], ["row_ror:8"], "max")
    xrow([vT0], [vT1], "max")
    for i in range(4):
        A("v_sub_f32 %s, %s, %s" % (v(ML + 4 * i), v(ML + 4 * i), v(vT0)))
    for i in range(4):
        A("v_mul_f32 %s, s%d, %s" % (v(ML + 4 * i), sLOG2E, v(ML + 4 * i)))
    for i in range(4):
        A("v_exp_f32 %s, %s" % (v(ML + 4 * i), v(ML + 4 * i)))
    T = vS0
    A("v_lshlrev_b32 %s, 3, %s" % (v(vT2), v(vLANE)))
    A("v_mul_f32 %s, %s, %s" % (v(T), v(ML), v(O)))
    A("v_mul_f32 %s, %s, %s" % (v(T + 1), v(ML), v(O + 1)))
    A("v_mul_f32 %s, %s, %s" % (v(T + 2), v(ML), v(ML + 1)))
    for i in range(1, 4):
        A("v_fmac_f32 %s, %s, %s" % (v(T), v(ML + 4 * i), v(O + 4 * i)))
        A("v_fmac_f32 %s, %s, %s" % (v(T + 1), v(ML + 4 * i), v(O + 4 * i + 1)))
        A("v_fmac_f32 %s, %s, %s" % (v(T + 2), v(ML + 4 * i), v(ML + 4 * i + 1)))
    dpp_reduce([T, T + 1, T + 2], ["row_ror:8"], "add")
    xrow([T, T + 1, T + 2], [T + 4, T + 5, T + 6], "add")
    A("v_rcp_f32 %s, %s" % (v(T + 2), v(T + 2)))
    nop(1)
    A("v_mul_f32 %s, %s, %s" % (v(T), v(T), v(T + 2)))
    A("v_mul_f32 %s, %s, %s" % (v(T + 1), v(T + 1), v(T + 2)))
    A("v_cvt_pk_bf16_f32 %s, %s, %s" % (v(T + 2), v(T), v(T + 1)))
    A("v_lshlrev_b32 %s, 16, %s" % (v(T), v(T + 2)))
    A("v_and_b32 %s, 0xffff0000, %s" % (v(T + 1), v(T + 2)))
    A("s_mov_b64 exec, 0xff")
    A("ds_write_b64 %s, %s offset:%d" % (v(vT2), vr(T, 2), L_O))
    A("s_mov_b64 exec, -1")
    A("s_waitcnt lgkmcnt(0)")
    A("s_barrier")
    reduce_hops(0, mlp=False)
    stamp("ag1_pub")
    X = poll_AG(0, vA + 8)
    stamp("ag1_got")
    layernorm(X, L_XN + XN_SZ)
    A("s_waitcnt lgkmcnt(0)")
    A("s_barrier")
    reduce_hops(1, mlp=True)
    prefetch_WQ()
    X = poll_AG(1, vA + 8)
    for i in range(4):
        A("v_mov_b32 %s, %s" % (v(vX + i), v(X[i])))
    stamp("ag2_got")
    next_layer()
    A("s_branch L_mloop")
    A.lab("L_final")
    T = vS0
    stamp("ag2_got")
    l = A.new("Lnoout")
    A("s_cmp_lg_u32 s%d, 0" % sG)
    A("s_cbranch_scc1 %s" % l)
    A("s_lshl_b32 s%d, s%d, 5" % (sT0, sS))
    A("v_lshlrev_b32 %s, 2, %s" % (v(vT0), v(vLANE)))
    A("v_add_u32 %s, s%d, %s" % (v(vT0), sT0, v(vT0)))
    A("s_mov_b64 exec, 0xff")
    A("global_store_dword %s, %s, %s" % (v(vT0), v(T), sr(sOUT)))
    A("s_mov_b64 exec, -1")
    A("s_cmp_lg_u32 s%d, 0" % sS)
    A("s_cbranch_scc1 %s" % l)
    A("s_add_u32 s%d, s%d, 1" % (sT0, sE))
    A("v_mov_b32 %s, s%d" % (v(vT1), sT0))
    A("v_mov_b32 %s, 0" % v(vT0))
    A("s_mov_b64 exec, 1")
    A("global_store_dword %s, %s, %s" % (v(vT0), v(vT1), sr(sWS)))
    A("s_mov_b64 exec, -1")
    A.lab(l)
    dump_stamps()
    A.lab("L_end")
    A("s_endpgm")

build()
out = HEADER
out += "; Override launch geometry by editing the next line (default: block=256,\n"
out += "; @launch grid=(256,1,1) block=(320,1,1) lds=%d\n" % LDS_SIZE
out += '.amdgcn_target "amdgcn-amd-amdhsa--gfx950"\n.text\n.globl %s_kernel\n.p2align 8\n.type %s_kernel,@function\n%s_kernel:\n' % (NAME, NAME, NAME)
out += "\n".join(A.L) + "\n"
out += """.section .rodata,"a"
.p2align 6
.amdhsa_kernel %s_kernel
  .amdhsa_next_free_vgpr %d
  .amdhsa_next_free_sgpr 102
  .amdhsa_accum_offset %d
  .amdhsa_group_segment_fixed_size 0
  .amdhsa_kernarg_size 104
  .amdhsa_user_sgpr_count 2
  .amdhsa_user_sgpr_kernarg_segment_ptr 1
  .amdhsa_system_sgpr_workgroup_id_x 1
.end_amdhsa_kernel
""" % (NAME, NVGPR, NVGPR)
dst = sys.argv[1] if len(sys.argv) > 1 else "cdna_kernels/%s.s" % NAME
open(dst, "w").write(out)
print("wrote", dst, len(A.L), "lines")
if STAMPS:
    names = PRO + ["-"] * (4 - len(PRO))
    for n in LOO: names += [n + "_0", n + "_1"]
    open(dst + ".stamps", "w").write(",".join(names))
```
